```python
import torch

def _softmax(x, axis=-1):
    return torch.softmax(x, dim=axis)
def _gelu(x):
    return torch.nn.functional.gelu(x, approximate="tanh")
def _silu(x):
    return torch.nn.functional.silu(x)
def _sigmoid(x):
    return torch.sigmoid(x)
def _layernorm(x, axis=-1, eps=1e-5):
    m = x.mean(dim=axis, keepdim=True)
    v = x.var(dim=axis, keepdim=True, unbiased=False)
    return (x - m) / torch.sqrt(v + eps)
def _scatter_add(tgt, idx, src, axis=0):
    return tgt.clone().index_add_(axis, idx, src)
def _segment_sum(src, seg, n):
    out = torch.zeros((n,) + src.shape[1:], dtype=src.dtype)
    return out.index_add_(0, seg, src)
def _pad(x, pw):
    flat = tuple(v for pair in reversed(pw) for v in pair)
    return torch.nn.functional.pad(x, flat)

kernel_name = 'interleave_layers__mha_block__mixer_channel_mlp__prompt'

def setup_inputs():

    _w = (lambda a: (lambda t: t.to(torch.bfloat16) if t.is_floating_point() else t)(torch.as_tensor(a)))
    def _A_setup():
        B, S, D, H = 1, 2048, 512, 32
        return {
            "x": _w((lambda *s: torch.randn(*s, dtype=torch.bfloat16) * 0.05)(B, S, D)),
            "wqkv": _w((lambda *s: torch.randn(*s, dtype=torch.bfloat16) * 0.05)(D, 3 * D)),
            "wo": _w((lambda *s: torch.randn(*s, dtype=torch.bfloat16) * 0.05)(D, D)),
        }
    _A_in = _A_setup()

    def _B_setup():
        B, S, D, F = 1, 2048, 512, 1792
        return {
            "x": _w((lambda *s: torch.randn(*s, dtype=torch.bfloat16) * 0.05)(B, S, D)),
            "w1": _w((lambda *s: torch.randn(*s, dtype=torch.bfloat16) * 3.2)(D, F) * (D ** -0.5)),
            "b1": _w((lambda *s: torch.randn(*s, dtype=torch.bfloat16) * 0.8)(F)),
            "w2": _w((lambda *s: torch.randn(*s, dtype=torch.bfloat16) * 0.2)(F, D) * (F ** -0.5)),
            "b2": _w((lambda *s: torch.randn(*s, dtype=torch.bfloat16) * 0.2)(D)),
        }
    _B_in = _B_setup()

    return {
        "A_x": _A_in["x"],
        "A_wqkv": _A_in["wqkv"],
        "A_wo": _A_in["wo"],
        "B_x": _B_in["x"],
        "B_w1": _B_in["w1"],
        "B_b1": _B_in["b1"],
        "B_w2": _B_in["w2"],
        "B_b2": _B_in["b2"],
    }

def reference(A_x, A_wqkv, A_wo, B_x, B_w1, B_b1, B_w2, B_b2):
    def _A_ref(x, wqkv, wo):
        B, S, D = x.shape
        H = 32
        Dh = D // H
        qkv = (lambda x, *d: x.permute(*d))((x @ wqkv).reshape(B, S, 3, H, Dh), 2, 0, 3, 1, 4)
        q, k, v = qkv[0], qkv[1], qkv[2]
        scores = torch.einsum("bhqd,bhkd->bhqk", q, k) * (Dh ** -0.5)
        p = _softmax(scores, axis=-1)
        o = torch.einsum("bhqk,bhkd->bhqd", p, v)
        return (lambda x, *d: x.permute(*d))(o, 0, 2, 1, 3).reshape(B, S, D) @ wo

    def _B_ref(x, w1, b1, w2, b2):
        y = _layernorm(x, axis=-1)
        h = _gelu(torch.einsum("bsd,df->bsf", y, w1) + b1)
        return torch.einsum("bsf,fd->bsd", h, w2) + b2

    x = A_x
    x = x + _A_ref(_layernorm(x, axis=-1), A_wqkv, A_wo)
    x = x + _B_ref(_layernorm(x, axis=-1), B_w1, B_b1, B_w2, B_b2)
    x = x + _A_ref(_layernorm(x, axis=-1), A_wqkv, A_wo)
    x = x + _B_ref(_layernorm(x, axis=-1), B_w1, B_b1, B_w2, B_b2)
    return x
```

```python
import re

TRANS = ("v_exp_", "v_log_", "v_rcp_", "v_rsq_", "v_sqrt_", "v_sin_", "v_cos_")


def _regs(op):
    op = op.strip()
    op = op.lstrip("-").strip("|")
    m = re.fullmatch(r"([vas])(\d+)", op)
    if m:
        return {op}
    m = re.fullmatch(r"([vas])\[(\d+):(\d+)\]", op)
    if m:
        return {f"{m.group(1)}{i}" for i in range(int(m.group(2)), int(m.group(3)) + 1)}
    if op in ("vcc", "vcc_lo", "vcc_hi"):
        return {"vcc"}
    if op in ("exec", "exec_lo", "exec_hi"):
        return {"exec"}
    if op == "m0":
        return {"m0"}
    return set()


class Ins:
    __slots__ = ("text", "op", "kind", "dst", "src", "srcC", "srcAB", "passes", "nop", "lds", "wide_store", "trans")

    def __init__(self, text):
        self.text = text
        t = text.split(";")[0].strip()
        parts = t.split(None, 1)
        self.op = parts[0]
        rest = parts[1] if len(parts) > 1 else ""
        ops = [o.strip() for o in re.split(r",(?![^\[]*\])", rest)] if rest else []
        mods = ""
        if ops:
            l = ops[-1].split(None, 1)
            ops[-1] = l[0]
            mods = l[1] if len(l) > 1 else ""
        self.dst, self.src, self.srcC, self.srcAB = set(), set(), set(), set()
        self.passes = 0
        self.nop = 1
        self.lds = False
        self.wide_store = False
        self.trans = False
        op = self.op
        if op.startswith("v_mfma"):
            self.kind = "mfma"
            self.dst = _regs(ops[0])
            self.srcAB = _regs(ops[1]) | _regs(ops[2])
            self.srcC = _regs(ops[3])
            self.src = self.srcAB | self.srcC
            self.passes = 8 if "32x32" in op else 4
        elif op.startswith("v_"):
            self.kind = "valu"
            self.trans = op.startswith(TRANS)
            if op.startswith("v_permlane") and "swap" in op:
                self.dst = _regs(ops[0]) | _regs(ops[1])
                self.src = set(self.dst)
            elif op.startswith("v_nop"):
                pass
            else:
                self.dst = _regs(ops[0])
                rest_ops = ops[1:]
                if "_co_" in op:
                    self.dst |= _regs(ops[1])
                    rest_ops = ops[2:]
                for o in rest_ops:
                    self.src |= _regs(o)
                if op.startswith(("v_fmac", "v_mac", "v_dot2c", "v_pk_fmac")):
                    self.src |= _regs(ops[0])
                if op.startswith("v_cndmask") and len(ops) == 3:
                    self.src |= {"vcc"}
                if op.startswith("v_cmpx"):
                    self.dst |= {"exec"}
        elif op.startswith(("buffer_", "global_")):
            self.kind = "vmem"
            self.lds = (" lds" in (" " + mods)) or "_lds_" in op
            if op.startswith(("buffer_wbl2", "buffer_inv")):
                pass
            elif "store" in op or "atomic" in op:
                for o in ops:
                    self.src |= _regs(o)
                if "x3" in op or "x4" in op:
                    self.wide_store = True
                    self.srcAB = _regs(ops[0] if op.startswith("buffer") else ops[1])
            elif self.lds:
                for o in ops:
                    self.src |= _regs(o)
                self.src |= {"m0"}
            else:
                self.dst = _regs(ops[0])
                for o in ops[1:]:
                    self.src |= _regs(o)
        elif op.startswith("ds_"):
            self.kind = "ds"
            if "read" in op or "permute" in op or "swizzle" in op:
                self.dst = _regs(ops[0])
                for o in ops[1:]:
                    self.src |= _regs(o)
            else:
                for o in ops:
                    self.src |= _regs(o)
        elif op.startswith("s_"):
            self.kind = "salu"
            if op == "s_nop":
                self.nop = int(ops[0], 0) + 1
            elif op.startswith(("s_cmp", "s_cbranch", "s_branch", "s_waitcnt", "s_barrier", "s_endpgm", "s_setprio", "s_sleep", "s_bitcmp")):
                for o in ops:
                    self.src |= _regs(o)
            else:
                if ops:
                    self.dst = _regs(ops[0])
                for o in ops[1:]:
                    self.src |= _regs(o)
        else:
            raise ValueError("unknown instruction " + text)


def need_ws(p, c):
    n = 0
    pv = {r for r in p.dst if r[0] in "va" and r != "vcc"}
    if p.kind == "valu":
        if c.kind == "mfma" and pv & c.src:
            n = max(n, 2)
        if p.trans and c.kind == "valu" and not c.trans and pv & (c.src | c.dst):
            n = max(n, 1)
        if p.trans and c.kind in ("vmem", "ds") and pv & c.src:
            n = max(n, 1)
        ps = {r for r in p.dst if r[0] == "s" or r == "vcc"}
        if ps:
            if c.kind == "vmem" and ps & c.src:
                n = max(n, 5)
            if c.kind == "valu" and ps & c.src:
                n = max(n, 4 if c.op.startswith(("v_readlane", "v_writelane")) else 2)
        if c.kind == "valu" and pv & c.src:
            if c.op.startswith(("v_readfirstlane", "v_readlane")):
                n = max(n, 1)
            if c.op.startswith("v_permlane") or "dpp" in c.text or "quad_perm" in c.text or "row_" in c.text:
                n = max(n, 2)
            if "op_sel" in p.text and not p.op.startswith("v_pk") or "sdwa" in p.op or "dst_sel" in p.text:
                n = max(n, 1)
        if "exec" in p.dst:
            n = max(n, 5)
        if p.op.startswith("v_dot") and pv & (c.src | c.dst):
            same_c = False
            if c.op == p.op:
                ops = [o.strip() for o in c.text.split(";")[0].split(None, 1)[1].split(",")]
                ab = _regs(ops[1]) | _regs(ops[2].split()[0])
                same_c = not (pv & ab)
            if not same_c:
                n = max(n, 3)
    if p.kind == "mfma":
        big = p.passes + 4
        if c.kind in ("valu", "vmem", "ds") and p.dst & (c.src | c.dst):
            n = max(n, big)
        if c.kind == "mfma":
            if p.dst & c.srcAB:
                n = max(n, big)
            if p.dst & c.srcC and p.dst != c.srcC:
                n = max(n, p.passes + 2)
            if p.dst & c.dst and p.dst != c.dst:
                n = max(n, p.passes + 2)
            if p.dst & c.dst and p.dst == c.dst and c.srcC != p.dst:
                n = max(n, p.passes + 2)
        if c.kind == "valu" and p.srcC & c.dst:
            n = max(n, p.passes - 1)
    if p.kind == "salu" and "m0" in p.dst and c.kind == "vmem" and c.lds:
        n = max(n, 1)
    if p.kind == "salu" and "exec" in p.dst and c.kind == "valu" and c.op.startswith("v_permlane"):
        n = max(n, 1)
    if p.kind == "vmem" and p.wide_store and c.kind in ("valu", "mfma", "vmem", "ds") and p.srcAB & c.dst:
        n = max(n, 2)
    return n


WINDOW = 16


def _required(hist, c):
    need = 0
    dist = 0
    for p in reversed(hist):
        if dist >= WINDOW:
            break
        w = need_ws(p, c)
        if w > dist:
            need = max(need, w - dist)
        dist += p.nop
    return need


class Kernel:
    def __init__(self, name, grid, block, lds, vgpr, agpr=0, sgpr=96):
        self.name, self.grid, self.block, self.lds = name, grid, block, lds
        self.vgpr, self.agpr, self.sgpr = vgpr, agpr, sgpr
        self.items = []
        self.vm = []
        self.lg = []

    def __call__(self, text, vm=None, lg=None):
        for line in text.strip().split("\n"):
            line = line.strip()
            if not line:
                continue
            ins = Ins(line)
            self.items.append(ins)
            if ins.kind == "vmem" and not ins.op.startswith(("buffer_wbl2", "buffer_inv")):
                self.vm.append(vm)
            if ins.kind == "ds":
                self.lg.append(lg)

    def label(self, l):
        self.items.append(("label", f"{self.name}_{l}"))

    def L(self, l):
        return f"{self.name}_{l}"

    def raw(self, t):
        self.items.append(("raw", t))

    def _cnt(self, lst, tag):
        idx = max(i for i, t in enumerate(lst) if t == tag)
        return len(lst) - 1 - idx

    def wait(self, vm=None, lg=None):
        parts = []
        if vm is not None:
            n = 0 if vm == 0 else self._cnt(self.vm, vm)
            parts.append(f"vmcnt({min(n, 63)})")
        if lg is not None:
            n = 0 if lg == 0 else self._cnt(self.lg, lg)
            parts.append(f"lgkmcnt({min(n, 15)})")
        self("s_waitcnt " + " ".join(parts))

    def finalize(self):
        out = []
        hist = []
        labels = {}
        for it in self.items:
            if isinstance(it, tuple):
                if it[0] == "label":
                    labels[it[1]] = len(out)
                out.append(it)
                continue
            n = _required(hist, it)
            if it.op.startswith(("s_cbranch", "s_branch")):
                tgt = it.text.split()[1]
                if tgt in labels:
                    h2 = hist + [it]
                    seq = [x for x in out[labels[tgt]:] if not isinstance(x, tuple)][:WINDOW]
                    extra = 0
                    for k, c in enumerate(seq):
                        r = _required(h2 + seq[:k], c)
                        extra = max(extra, r)
                    n = max(n, extra)
            while n > 0:
                k = min(n, 8)
                nop = Ins(f"s_nop {k-1}")
                out.append(nop)
                hist.append(nop)
                n -= k
            out.append(it)
            hist.append(it)
            hist = hist[-WINDOW * 2:]
        pos = {it[1]: i for i, it in enumerate(out) if isinstance(it, tuple) and it[0] == "label"}
        for i, it in enumerate(out):
            if isinstance(it, tuple) or not it.op.startswith(("s_cbranch", "s_branch")):
                continue
            tgt = it.text.split()[1]
            if tgt in pos and pos[tgt] > i:
                h = [x for x in out[max(0, i - 40):i + 1] if not isinstance(x, tuple)]
                seq = [x for x in out[pos[tgt]:] if not isinstance(x, tuple)][:WINDOW]
                for k, c in enumerate(seq):
                    r = _required(h + seq[:k], c)
                    if r > 0:
                        raise RuntimeError(f"hazard across forward branch to {tgt}: {c.text}")
        lines = []
        for it in out:
            if isinstance(it, tuple):
                lines.append(it[1] + (":" if it[0] == "label" else ""))
            else:
                lines.append("    " + it.text)
        return lines


def emit_file(path, header, launches, kernels):
    kd = {k.name: k for k in kernels}
    out = list(header)
    for n in launches:
        k = kd[n]
        out.append(f"; @launch kernel={k.name} grid=({k.grid},1,1) block=({k.block},1,1) lds={k.lds}")
    out.append('.amdgcn_target "amdgcn-amd-amdhsa--gfx950"')
    out.append(".text")
    for k in kernels:
        out.append(f".globl {k.name}")
        out.append(".p2align 8")
        out.append(f".type {k.name},@function")
        out.append(f"{k.name}:")
        out += k.finalize()
    out.append('.section .rodata,"a"')
    for k in kernels:
        acc = (k.vgpr + 3) // 4 * 4
        out.append(f""".p2align 6
.amdhsa_kernel {k.name}
  .amdhsa_next_free_vgpr {acc + k.agpr}
  .amdhsa_next_free_sgpr {k.sgpr}
  .amdhsa_accum_offset {acc}
  .amdhsa_group_segment_fixed_size 0
  .amdhsa_kernarg_size 88
  .amdhsa_user_sgpr_count 2
  .amdhsa_user_sgpr_kernarg_segment_ptr 1
  .amdhsa_system_sgpr_workgroup_id_x 1
.end_amdhsa_kernel""")
    open(path, "w").write("\n".join(out) + "\n")
```

```python
import sys, math, struct
sys.path.insert(0, "gen")
from asmlib import *

QF, KF, VF, OF = 0x000000, 0x200000, 0x400000, 0x600000
XF = [0x800000, 0xA00000, 0xC00000, 0xE00000]
HF = 0x1000000
ST = [0x1700000 + i * 0x40000 for i in range(4)]
WQF, W1F, WOF, W2F = 0x1800000, 0x1A00000, 0x1C00000, 0x1D00000
WSZ = 0x2000000
WQ_CT = 33 * 3072
W1_CT = 33 * 3584
WO_CT = 32 * 2048
W2_CT = 113 * 2048
ONES = "0x3f803f80"
EPS = 1e-5
LOG2E = 1.4426950408889634


def f32(x):
    return "0x%08x" % struct.unpack("<I", struct.pack("<f", x))[0]


def vr(b, n):
    return f"v[{b}:{b+n-1}]"


def ar(b, n):
    return f"a[{b}:{b+n-1}]"


def ws_srd(k, base=4):
    k(f"s_mov_b32 s{base+2}, {WSZ:#x}")
    k(f"s_mov_b32 s{base+3}, 0x00020000")


def gen_prep():
    k = Kernel("prep_kernel", 248, 256, 1024, vgpr=96)
    k(f"""
    s_cmp_ge_u32 s2, 248
    s_cbranch_scc1 {k.L('end')}
    s_load_dwordx16 s[32:47], s[0:1], 0
    s_load_dwordx2 s[8:9], s[0:1], 80
    v_lshrrev_b32 v1, 6, v0
    v_and_b32 v0, 63, v0
    v_readfirstlane_b32 s24, v1
    v_lshrrev_b32 v2, 5, v0
    v_and_b32 v3, 31, v0
    s_mov_b32 s10, {WSZ:#x}
    s_mov_b32 s11, 0x00020000
    s_mov_b32 s7, 0x00020000
    s_mov_b32 s15, 0x00020000
    s_mov_b32 s14, 0
    s_mov_b32 s22, 0
    s_lshl_b32 s18, s24, 3
    v_mov_b32 v5, {ONES}
    s_waitcnt lgkmcnt(0)
    s_mov_b32 s12, s42
    s_mov_b32 s13, s43
    s_cmp_ge_u32 s2, 184
    s_cbranch_scc1 {k.L('x')}
    s_cmp_ge_u32 s2, 120
    s_cbranch_scc1 {k.L('w2')}
    s_cmp_ge_u32 s2, 104
    s_cbranch_scc1 {k.L('wo')}
    s_cmp_ge_u32 s2, 48
    s_cbranch_scc1 {k.L('w1')}
    """)
    k(f"""
    s_mov_b32 s4, s34
    s_mov_b32 s5, s35
    s_mov_b32 s6, {512*1536*2}
    s_mov_b32 s16, 3072
    s_lshr_b32 s25, s2, 4
    s_and_b32 s26, s2, 15
    s_lshl_b32 s25, s25, 10
    s_lshl_b32 s17, s26, 6
    s_add_u32 s17, s17, s25
    s_mul_i32 s19, s26, {WQ_CT}
    s_add_u32 s19, s19, s25
    s_add_u32 s19, s19, {WQF:#x}
    s_add_u32 s20, s19, 512
    s_mov_b32 s21, 3072
    s_mov_b32 s22, 1
    s_branch {k.L('w')}
    """)
    k.label("w1")
    k(f"""
    s_mov_b32 s4, s40
    s_mov_b32 s5, s41
    s_mov_b32 s6, {512*1792*2}
    s_mov_b32 s16, 3584
    s_sub_u32 s25, s2, 48
    s_lshl_b32 s17, s25, 6
    s_lshl_b32 s25, s25, 1
    s_mul_i32 s26, s25, 147
    s_lshr_b32 s26, s26, 10
    s_mul_i32 s19, s26, {W1_CT - 7*512}
    s_lshl_b32 s27, s25, 9
    s_add_u32 s19, s19, s27
    s_add_u32 s19, s19, {W1F:#x}
    s_add_u32 s25, s25, 1
    s_mul_i32 s26, s25, 147
    s_lshr_b32 s26, s26, 10
    s_mul_i32 s20, s26, {W1_CT - 7*512}
    s_lshl_b32 s27, s25, 9
    s_add_u32 s20, s20, s27
    s_add_u32 s20, s20, {W1F:#x}
    s_mov_b32 s21, 3584
    s_mov_b32 s22, 1
    s_mov_b32 s14, 3584
    s_branch {k.L('w')}
    """)
    k.label("wo")
    k(f"""
    s_mov_b32 s4, s36
    s_mov_b32 s5, s37
    s_mov_b32 s6, {512*512*2}
    s_mov_b32 s16, 1024
    s_sub_u32 s25, s2, 104
    s_lshl_b32 s17, s25, 6
    s_lshr_b32 s26, s25, 1
    s_mul_i32 s19, s26, {WO_CT}
    s_and_b32 s25, s25, 1
    s_lshl_b32 s25, s25, 10
    s_add_u32 s19, s19, s25
    s_add_u32 s19, s19, {WOF:#x}
    s_add_u32 s20, s19, 512
    s_mov_b32 s21, 2048
    s_branch {k.L('w')}
    """)
    k.label("w2")
    k(f"""
    s_mov_b32 s4, s44
    s_mov_b32 s5, s45
    s_mov_b32 s6, {1792*512*2}
    s_mov_b32 s16, 1024
    s_sub_u32 s25, s2, 120
    s_lshr_b32 s27, s25, 4
    s_and_b32 s25, s25, 15
    s_mul_i32 s27, s27, 28
    s_mul_i32 s18, s24, 7
    s_add_u32 s18, s18, s27
    s_lshl_b32 s17, s25, 6
    s_lshr_b32 s26, s25, 1
    s_mul_i32 s19, s26, {W2_CT}
    s_and_b32 s25, s25, 1
    s_lshl_b32 s25, s25, 10
    s_add_u32 s19, s19, s25
    s_add_u32 s19, s19, {W2F:#x}
    s_add_u32 s20, s19, 512
    s_mov_b32 s21, 2048
    """)
    k.label("w")
    k(f"""
    s_lshl_b32 s25, s16, 2
    v_mul_u32_u24 v4, s25, v2
    v_lshl_add_u32 v6, v3, 1, s17
    v_add_u32 v4, v4, v6
    v_lshl_add_u32 v6, v2, 16, v6
    s_lshl_b32 s27, s16, 4
    s_mul_i32 s26, s18, s27
    buffer_load_ushort v7, v6, s[12:15], 0 offen
    """)
    rows = [0, 1, 2, 3, 8, 9, 10, 11]
    for j, r in enumerate(rows):
        k(f"s_mul_i32 s25, s16, {r}")
        k(f"v_add_u32 v{8+j}, s25, v4")
    for i in range(8):
        for j in range(8):
            k(f"buffer_load_ushort v{16+i*8+j}, v{8+j}, s[4:7], s26 offen", vm=("w", i))
        k("s_add_u32 s26, s26, s27")
    k(f"""
    v_and_b32 v4, 15, v3
    v_lshlrev_b32 v4, 4, v4
    v_lshl_add_u32 v4, v2, 8, v4
    v_mov_b32 v8, s19
    v_mov_b32 v9, s20
    v_cmp_lt_u32 vcc, 15, v3
    v_cndmask_b32 v8, v8, v9
    v_add_u32 v4, v4, v8
    s_mul_i32 s26, s18, s21
    v_mov_b32 v80, 0
    v_mov_b32 v81, 0
    """)
    for i in range(8):
        b = 16 + i * 8
        k.wait(vm=("w", i))
        for d in range(4):
            k(f"v_lshl_or_b32 v{b+d}, v{b+2*d+1}, 16, v{b+2*d}")
        k(f"buffer_store_dwordx4 {vr(b,4)}, v4, s[8:11], s26 offen")
        k("s_add_u32 s26, s26, s21")
        for d in range(4):
            k(f"v_dot2_f32_bf16 v{80+(d&1)}, v{b+d}, v5, v{80+(d&1)}")
    k(f"""
    s_cmp_eq_u32 s22, 0
    s_cbranch_scc1 {k.L('end')}
    v_add_f32 v80, v80, v81
    v_lshlrev_b32 v8, 2, v0
    v_lshl_add_u32 v9, v1, 8, v8
    ds_write_b32 v9, v80
    s_waitcnt lgkmcnt(0)
    s_barrier
    s_cmp_lg_u32 s24, 0
    s_cbranch_scc1 {k.L('end')}
    ds_read_b32 v10, v8
    ds_read_b32 v11, v8 offset:256
    ds_read_b32 v12, v8 offset:512
    ds_read_b32 v13, v8 offset:768
    s_lshl_b32 s26, s21, 5
    s_waitcnt lgkmcnt(0)
    v_add_f32 v10, v10, v11
    v_add_f32 v12, v12, v13
    v_add_f32 v10, v10, v12
    v_cvt_pk_bf16_f32 v84, v10, v10
    v_and_b32 v11, 0xffff0000, v84
    v_sub_f32 v11, v10, v11
    v_cvt_pk_bf16_f32 v11, v11, v11
    v_and_b32 v11, 0xffff, v11
    v_lshl_or_b32 v85, v7, 16, v11
    v_mov_b32 v86, v7
    v_mov_b32 v87, 0
    buffer_store_dwordx4 v[84:87], v4, s[8:11], s26 offen
    s_endpgm
    """)
    k.label("x")
    k(f"""
    s_mov_b32 s4, s32
    s_mov_b32 s5, s33
    s_mov_b32 s6, {2048*512*2}
    s_sub_u32 s25, s2, 184
    s_lshl_b32 s26, s25, 15
    s_lshl_b32 s27, s24, 8
    s_add_u32 s27, s27, s26
    v_lshlrev_b32 v4, 10, v3
    v_lshl_add_u32 v4, v2, 3, v4
    v_lshlrev_b32 v6, 4, v0
    """)
    for i in range(8):
        k(f"buffer_load_dwordx2 {vr(16+i*4,2)}, v4, s[4:7], s27 offen offset:{i*32}", vm=("x", i))
        k(f"buffer_load_dwordx2 {vr(18+i*4,2)}, v4, s[4:7], s27 offen offset:{i*32+16}", vm=("x", i))
    k(f"""
    s_lshl_b32 s28, s24, 13
    s_add_u32 s28, s28, s26
    s_add_u32 s28, s28, {XF[0]:#x}
    s_add_u32 s29, s28, 4096
    s_lshl_b32 s30, s25, 12
    s_lshl_b32 s31, s24, 10
    s_add_u32 s30, s30, s31
    s_add_u32 s30, s30, {ST[0]:#x}
    v_lshlrev_b32 v7, 4, v3
    v_lshl_add_u32 v7, v2, 2, v7
    """)
    for p in range(4):
        k.wait(vm=("x", 2 * p + 1))
        for i in (2 * p, 2 * p + 1):
            k(f"buffer_store_dwordx4 {vr(16+i*4,4)}, v6, s[8:11], s{28+(i>>2)} offen offset:{(i&3)*1024}")
        a, b = 48 + 2 * p, 49 + 2 * p
        for d in range(8):
            r = 16 + p * 8 + d
            k(f"v_dot2_f32_bf16 v{a}, v{r}, v5, {'0' if d==0 else f'v{a}'}")
            k(f"v_dot2_f32_bf16 v{b}, v{r}, v{r}, {'0' if d==0 else f'v{b}'}")
        k(f"v_permlane32_swap_b32 v{a}, v{b}")
        k(f"v_add_f32 v{a}, v{a}, v{b}")
        k(f"buffer_store_dword v{a}, v7, s[8:11], s30 offen offset:{(p>>1)*512+(p&1)*8}")
    k.label("end")
    k("s_endpgm")
    return k


def stats_math(k, sreg, aug, rs, tmp, kind):
    s, t = sreg, tmp
    for i in (0, 1):
        k(f"v_add_f32 v{s+i}, v{s+i}, v{s+2+i}")
        k(f"v_add_f32 v{s+4+i}, v{s+4+i}, v{s+6+i}")
        k(f"v_add_f32 v{s+8+i}, v{s+8+i}, v{s+10+i}")
        k(f"v_add_f32 v{s+12+i}, v{s+12+i}, v{s+14+i}")
    for i in (0, 1):
        k(f"v_add_f32 v{s+i}, v{s+i}, v{s+4+i}")
        k(f"v_add_f32 v{s+8+i}, v{s+8+i}, v{s+12+i}")
    for i in (0, 1):
        k(f"v_add_f32 v{s+i}, v{s+i}, v{s+8+i}")
    k(f"""
    v_mov_b32 v{s+2}, v{s}
    v_mov_b32 v{s+3}, v{s+1}
    v_permlane32_swap_b32 v{s}, v{s+2}
    v_permlane32_swap_b32 v{s+1}, v{s+3}
    v_add_f32 v{s}, v{s}, v{s+2}
    v_add_f32 v{s+1}, v{s+1}, v{s+3}
    v_mul_f32 v{s}, {f32(-1.0/512)}, v{s}
    v_mul_f32 v{s+1}, {f32(1.0/512)}, v{s+1}
    v_fma_f32 v{s+1}, -v{s}, v{s}, v{s+1}
    v_max_f32 v{s+1}, 0, v{s+1}
    """)
    if kind == "qkv":
        k(f"v_add_f32 v{s+1}, {f32(EPS)}, v{s+1}")
    else:
        k(f"v_mov_b32 v{s+2}, {f32(EPS*EPS)}")
        k(f"v_fmamk_f32 v{s+1}, v{s+1}, {f32(1+EPS)}, v{s+2}")
    k(f"""
    v_rsq_f32 v{rs}, v{s+1}
    v_cvt_pk_bf16_f32 v{s+4}, v{s}, v{s}
    v_and_b32 v{s+5}, 0xffff0000, v{s+4}
    v_sub_f32 v{s+5}, v{s}, v{s+5}
    v_cvt_pk_bf16_f32 v{aug}, v{s}, v{s+5}
    """)
    if kind == "qkv":
        k(f"v_and_b32 v{aug+1}, 0xffff, v{s+4}")
        k(f"v_mov_b32 v{aug+2}, 0")
    else:
        k(f"""
        v_mul_f32 v{s+6}, v{s+1}, v{rs}
        v_cvt_pk_bf16_f32 v{aug+1}, v{s}, v{s+6}
        v_and_b32 v{s+7}, 0xffff0000, v{aug+1}
        v_sub_f32 v{s+7}, v{s+6}, v{s+7}
        v_cvt_pk_bf16_f32 v{aug+2}, v{s+7}, 0
        """)
    k(f"v_mov_b32 v{aug+3}, 0")


def gen_t1(name, kind, xin):
    NT = 3 if kind == "qkv" else 4
    KSB = 3072 if kind == "qkv" else 3584
    WF, WCT = (WQF, WQ_CT) if kind == "qkv" else (W1F, W1_CT)
    ndma = (33 * KSB + 4095) // 4096
    lds = ndma * 4096 + 1024
    SR, AUG, RS, WR, ACC = 8, 24, 28, 32, 80
    k = Kernel(name, 256, 256, lds, vgpr=ACC + 64, agpr=128)
    k(f"""
    s_cmp_ge_u32 s2, 256
    s_cbranch_scc1 {k.L('end')}
    s_load_dwordx2 s[4:5], s[0:1], 80
    v_lshrrev_b32 v1, 6, v0
    v_and_b32 v0, 63, v0
    v_readfirstlane_b32 s3, v1
    s_and_b32 s8, s2, 7
    s_lshr_b32 s9, s2, 3
    s_lshr_b32 s10, s8, 1
    s_lshl_b32 s10, s10, 2
    s_and_b32 s11, s9, 3
    s_add_u32 s10, s10, s11
    s_and_b32 s11, s8, 1
    s_lshl_b32 s11, s11, 3
    s_lshr_b32 s9, s9, 2
    s_add_u32 s11, s11, s9
    s_lshl_b32 s10, s10, 2
    s_add_u32 s10, s10, s3
    v_lshlrev_b32 v1, 4, v0
    s_mul_i32 s12, s11, {WCT}
    s_add_u32 s12, s12, {WF:#x}
    v_add_u32 v2, s12, v1
    v_lshrrev_b32 v5, 5, v0
    v_and_b32 v6, 31, v0
    v_lshlrev_b32 v3, 4, v6
    v_lshl_add_u32 v3, v5, 11, v3
    s_lshl_b32 s13, s10, 12
    s_add_u32 s13, s13, {ST[xin]:#x}
    s_lshl_b32 s14, s10, 15
    s_add_u32 s14, s14, {XF[xin]:#x}
    s_lshl_b32 m0, s3, 10
    """)
    ws_srd(k)
    k("s_waitcnt lgkmcnt(0)")
    for q in range(4):
        k(f"buffer_load_dwordx4 {vr(SR+4*q,4)}, v3, s[4:7], s13 offen offset:{q*512}", vm="st")
    j = 0
    for c in range(9):
        jmax = min(ndma - 1, ((c + 1) * 4 * KSB - 1) // 4096) if c < 8 else ndma - 1
        na = 0
        while j <= jmax or (c < 8 and na < 4):
            if j <= jmax:
                k("buffer_load_dwordx4 v2, s[4:7], m0 offen lds", vm=("c", c))
                k("s_add_u32 m0, m0, 4096")
                j += 1
            if c < 8 and na < 4:
                k(f"buffer_load_dwordx4 {ar((c*4+na)*4,4)}, v1, s[4:7], s14 offen offset:{na*1024}", vm=("c", c))
                na += 1
        if c < 7:
            k("s_add_u32 s14, s14, 4096")
    k(f"""
    v_and_b32 v4, 15, v0
    v_lshlrev_b32 v4, 4, v4
    v_lshl_add_u32 v4, v5, 8, v4
    v_bfe_u32 v7, v0, 4, 1
    v_lshl_add_u32 v4, v7, 9, v4
    v_add_u32 v7, 0x10000, v4
    """)

    def rd(s):
        slot = s % 3
        for t in range(NT):
            off = s * KSB + t * 1024
            a = "v4"
            if off >= 65536:
                off -= 65536
                a = "v7"
            k(f"ds_read_b128 {vr(WR+(slot*NT+t)*4,4)}, {a} offset:{off}", lg=("r", s))

    k.wait(vm=("c", 0))
    k("s_barrier")
    rd(0)
    rd(1)
    for s in range(33):
        if s + 2 <= 32:
            if (s + 2) % 4 == 0:
                k.wait(vm=("c", (s + 2) // 4))
                k("s_barrier")
            rd(s + 2)
        k.wait(lg=("r", s))
        slot = s % 3
        for t in range(NT):
            b = ar(s * 4, 4) if s < 32 else vr(AUG, 4)
            c = "0" if s == 0 else vr(ACC + 16 * t, 16)
            k(f"v_mfma_f32_32x32x16_bf16 {vr(ACC+16*t,16)}, {vr(WR+(slot*NT+t)*4,4)}, {b}, {c}")
        if s == 0:
            stats_math(k, SR, AUG, RS, 29, kind)
    if kind == "qkv":
        k(f"""
        s_lshl_b32 s12, s11, 17
        s_lshl_b32 s13, s10, 10
        s_add_u32 s12, s12, s13
        s_add_u32 s13, s12, 0x10000
        s_add_u32 s14, s12, {KF:#x}
        s_add_u32 s15, s13, {KF:#x}
        s_add_u32 s16, s12, {VF:#x}
        s_add_u32 s17, s13, {VF:#x}
        v_mul_f32 v29, {f32(0.25*LOG2E)}, v{RS}
        v_lshlrev_b32 v2, 5, v6
        v_lshl_add_u32 v2, v5, 4, v2
        """)
        for t in range(3):
            sc = 29 if t == 0 else RS
            for h in range(2):
                a = ACC + 16 * t + 8 * h
                for r in range(8):
                    k(f"v_mul_f32 v{a+r}, v{sc}, v{a+r}")
                o = WR + (t * 2 + h) * 4
                for r in range(4):
                    k(f"v_cvt_pk_bf16_f32 v{o+r}, v{a+2*r}, v{a+2*r+1}")
                k(f"buffer_store_dwordx4 {vr(o,4)}, {'v2' if t==2 else 'v1'}, s[4:7], s{12+2*t+h} offen")
    else:
        c0 = -2.0 * math.sqrt(2.0 / math.pi) * LOG2E
        c1 = c0 * 0.044715
        k(f"""
        s_mul_i32 s12, s10, {112*1024}
        s_mul_i32 s13, s11, {7*1024}
        s_add_u32 s12, s12, s13
        s_add_u32 s12, s12, {HF:#x}
        s_add_u32 s13, s12, 4096
        s_mov_b32 s14, {f32(c1)}
        v_mov_b32 v29, {f32(c0)}
        """)
        for u in range(7):
            a = ACC + 8 * u
            T = 8 + (u & 1) * 8
            for r in range(8):
                k(f"v_mul_f32 v{a+r}, v{RS}, v{a+r}")
            for r in range(8):
                k(f"v_mul_f32 v{T+r}, v{a+r}, v{a+r}")
            for r in range(8):
                k(f"v_fma_f32 v{T+r}, v{T+r}, s14, v29")
            for r in range(8):
                k(f"v_mul_f32 v{T+r}, v{T+r}, v{a+r}")
            for r in range(8):
                k(f"v_exp_f32 v{T+r}, v{T+r}")
            for r in range(8):
                k(f"v_add_f32 v{T+r}, 1.0, v{T+r}")
            for r in range(8):
                k(f"v_rcp_f32 v{T+r}, v{T+r}")
            for r in range(8):
                k(f"v_mul_f32 v{a+r}, v{T+r}, v{a+r}")
            o = WR + u * 4
            for r in range(4):
                k(f"v_cvt_pk_bf16_f32 v{o+r}, v{a+2*r}, v{a+2*r+1}")
            k(f"buffer_store_dwordx4 {vr(o,4)}, v1, s[4:7], s{12+(u>>2)} offen offset:{(u&3)*1024}")
    k.label("end")
    k("s_endpgm")
    return k


def gen_t2(name, kind, xres, xout, final=False):
    NKS = 32 if kind == "wo" else 112
    NI = NKS // 4
    AF = OF if kind == "wo" else HF
    ARB = NKS * 1024
    WF, WCT = (WOF, WO_CT) if kind == "wo" else (W2F, W2_CT)
    DEPTH = min(NI, 14)
    ACC, RES, BI, T = 16, 80, 88, 96
    k = Kernel(name, 256, 256, 49152, vgpr=160, agpr=DEPTH * 16)
    k(f"""
    s_cmp_ge_u32 s2, 256
    s_cbranch_scc1 {k.L('end')}
    s_load_dwordx2 s[4:5], s[0:1], 80
    s_load_dwordx4 s[20:23], s[0:1], 56
    v_lshrrev_b32 v1, 6, v0
    v_and_b32 v0, 63, v0
    v_readfirstlane_b32 s3, v1
    s_and_b32 s8, s2, 7
    s_lshr_b32 s9, s2, 3
    s_lshl_b32 s10, s8, 2
    s_and_b32 s11, s9, 3
    s_add_u32 s10, s10, s11
    s_lshr_b32 s11, s9, 2
    s_lshr_b32 s12, s3, 1
    s_and_b32 s13, s3, 1
    s_lshl_b32 s10, s10, 1
    s_add_u32 s18, s10, s12
    s_lshl_b32 s19, s11, 1
    s_add_u32 s19, s19, s13
    v_lshlrev_b32 v1, 4, v0
    s_mul_i32 s14, s12, {ARB}
    s_xor_b32 s15, s12, 1
    s_mul_i32 s15, s15, {ARB}
    v_add_u32 v2, s14, v1
    v_add_u32 v3, s15, v1
    v_lshrrev_b32 v6, 5, v0
    v_and_b32 v7, 31, v0
    v_and_b32 v4, 15, v0
    v_lshlrev_b32 v4, 4, v4
    v_lshl_add_u32 v4, v6, 8, v4
    v_bfe_u32 v5, v0, 4, 1
    v_lshl_add_u32 v4, v5, 9, v4
    s_lshl_b32 s14, s13, 10
    v_add_u32 v4, s14, v4
    v_xor_b32 v5, 0x400, v4
    s_mul_i32 s14, s10, {ARB}
    s_lshl_b32 s15, s3, 10
    s_add_u32 s14, s14, s15
    s_add_u32 s14, s14, {AF:#x}
    s_mul_i32 s15, s11, {WCT}
    s_lshl_b32 s16, s3, 11
    s_add_u32 s15, s15, s16
    s_add_u32 s15, s15, {WF:#x}
    s_lshl_b32 s16, s18, 15
    s_lshl_b32 s17, s19, 11
    s_add_u32 s16, s16, s17
    s_add_u32 s17, s16, {XF[xres]:#x}
    """)
    ws_srd(k)
    k("s_waitcnt lgkmcnt(0)")

    def ld(i):
        b = (i % DEPTH) * 16
        k(f"buffer_load_dwordx4 {ar(b,4)}, v4, s[4:7], s15 offen", vm=("k", i))
        k(f"buffer_load_dwordx4 {ar(b+4,4)}, v2, s[4:7], s14 offen", vm=("k", i))
        k(f"buffer_load_dwordx4 {ar(b+8,4)}, v5, s[4:7], s15 offen", vm=("k", i))
        k(f"buffer_load_dwordx4 {ar(b+12,4)}, v3, s[4:7], s14 offen", vm=("k", i))
        k("s_add_u32 s14, s14, 4096")
        k("s_add_u32 s15, s15, 8192")

    for i in range(DEPTH):
        ld(i)
    k(f"buffer_load_dwordx4 {vr(RES,4)}, v1, s[4:7], s17 offen", vm="res")
    k(f"buffer_load_dwordx4 {vr(RES+4,4)}, v1, s[4:7], s17 offen offset:1024", vm="res")
    if kind == "w2":
        k(f"""
        s_mov_b32 s24, s20
        s_mov_b32 s25, s21
        s_mov_b32 s26, 1024
        s_mov_b32 s27, 0x00020000
        v_lshlrev_b32 v8, 3, v6
        s_lshl_b32 s28, s19, 6
        """)
        for g in range(4):
            k(f"buffer_load_dwordx2 {vr(BI+2*g,2)}, v8, s[24:27], s28 offen offset:{g*16}", vm="res")
    for a in (1, 2, 3):
        k(f"s_xor_b32 s29, s3, {a}")
        k(f"s_mul_i32 s29, s29, 12288")
        k(f"s_add_u32 s29, s29, {(a-1)*4096}")
        k(f"v_add_u32 v{8+a}, s29, v1")
    k("s_mul_i32 s29, s3, 12288")
    k("v_add_u32 v12, s29, v1")
    for i in range(NI):
        b = (i % DEPTH) * 16
        k.wait(vm=("k", i))
        for a in range(4):
            an, am = a & 1, a >> 1
            c = "0" if i == 0 else vr(ACC + 16 * a, 16)
            k(f"v_mfma_f32_32x32x16_bf16 {vr(ACC+16*a,16)}, {ar(b+8*an,4)}, {ar(b+4+8*am,4)}, {c}")
        if i + DEPTH < NI:
            ld(i + DEPTH)
    for a in (1, 2, 3):
        for q in range(4):
            k(f"ds_write_b128 v{8+a}, {vr(ACC+16*a+4*q,4)} offset:{q*1024}")
    k.wait(vm="res")
    for r in range(8):
        k(f"v_lshlrev_b32 v{T}, 16, v{RES+r}")
        k(f"v_and_b32 v{T+1}, 0xffff0000, v{RES+r}")
        k(f"v_add_f32 v{ACC+2*r}, v{ACC+2*r}, v{T}")
        k(f"v_add_f32 v{ACC+2*r+1}, v{ACC+2*r+1}, v{T+1}")
    if kind == "w2":
        for r in range(8):
            k(f"v_lshlrev_b32 v{T}, 16, v{BI+r}")
            k(f"v_and_b32 v{T+1}, 0xffff0000, v{BI+r}")
            k(f"v_add_f32 v{ACC+2*r}, v{ACC+2*r}, v{T}")
            k(f"v_add_f32 v{ACC+2*r+1}, v{ACC+2*r+1}, v{T+1}")
    k("s_waitcnt lgkmcnt(0)")
    k("s_barrier")
    for a in range(3):
        for q in range(4):
            k(f"ds_read_b128 {vr(T+16*a+4*q,4)}, v12 offset:{a*4096+q*1024}", lg=("p", a))
    for a in range(3):
        k.wait(lg=("p", a))
        for r in range(16):
            k(f"v_add_f32 v{ACC+r}, v{ACC+r}, v{T+16*a+r}")
    O = RES
    for r in range(8):
        k(f"v_cvt_pk_bf16_f32 v{O+r}, v{ACC+2*r}, v{ACC+2*r+1}")
    if not final:
        k(f"""
        s_add_u32 s17, s16, {XF[xout]:#x}
        buffer_store_dwordx4 {vr(O,4)}, v1, s[4:7], s17 offen
        buffer_store_dwordx4 {vr(O+4,4)}, v1, s[4:7], s17 offen offset:1024
        v_mov_b32 v13, {ONES}
        s_lshl_b32 s28, s18, 12
        s_lshr_b32 s29, s19, 1
        s_lshl_b32 s29, s29, 9
        s_add_u32 s28, s28, s29
        s_lshl_b32 s29, s13, 3
        s_add_u32 s28, s28, s29
        s_add_u32 s28, s28, {ST[xout]:#x}
        v_lshlrev_b32 v8, 4, v7
        v_lshl_add_u32 v8, v6, 2, v8
        """)
        for r in range(8):
            k(f"v_dot2_f32_bf16 v14, v{O+r}, v13, {'0' if r==0 else 'v14'}")
            k(f"v_dot2_f32_bf16 v15, v{O+r}, v{O+r}, {'0' if r==0 else 'v15'}")
        k(f"""
        v_permlane32_swap_b32 v14, v15
        v_add_f32 v14, v14, v15
        buffer_store_dword v14, v8, s[4:7], s28 offen
        """)
    else:
        k(f"""
        s_mov_b32 s24, s22
        s_mov_b32 s25, s23
        s_mov_b32 s26, {2048*1024}
        s_mov_b32 s27, 0x00020000
        s_lshl_b32 s28, s18, 15
        s_lshl_b32 s29, s19, 6
        s_add_u32 s28, s28, s29
        v_lshlrev_b32 v8, 10, v7
        v_lshl_add_u32 v8, v6, 4, v8
        v_permlane32_swap_b32 v{O}, v{O+2}
        v_permlane32_swap_b32 v{O+1}, v{O+3}
        v_permlane32_swap_b32 v{O+4}, v{O+6}
        v_permlane32_swap_b32 v{O+5}, v{O+7}
        buffer_store_dwordx4 {vr(O,4)}, v8, s[24:27], s28 offen
        buffer_store_dwordx4 {vr(O+4,4)}, v8, s[24:27], s28 offen offset:32
        """)
    k.label("end")
    k("s_endpgm")
    return k


VB = 65536
VP = 1040


def gen_attn(name):
    k = Kernel(name, 256, 512, VB + 65 * VP, vgpr=128)
    Q, CR, S0, S1, P, KR, VR, O = 12, 16, 32, 48, 64, 72, 80, 96
    k(f"""
    s_cmp_ge_u32 s2, 256
    s_cbranch_scc1 {k.L('end')}
    s_load_dwordx2 s[4:5], s[0:1], 80
    v_lshrrev_b32 v1, 6, v0
    v_and_b32 v0, 63, v0
    v_readfirstlane_b32 s3, v1
    s_and_b32 s8, s2, 31
    s_lshr_b32 s9, s2, 5
    s_lshl_b32 s9, s9, 3
    s_add_u32 s9, s9, s3
    v_lshlrev_b32 v1, 4, v0
    s_lshl_b32 s10, s8, 16
    s_lshl_b32 s11, s9, 10
    s_add_u32 s11, s11, s10
    s_add_u32 s12, s10, {KF:#x}
    v_add_u32 v2, s12, v1
    s_lshl_b32 s13, s3, 10
    s_add_u32 s12, s10, {VF:#x}
    s_add_u32 s12, s12, s13
    s_mul_i32 s14, s3, {VP}
    s_add_u32 s14, s14, {VB}
    """)
    ws_srd(k)
    k("s_waitcnt lgkmcnt(0)")
    k(f"buffer_load_dwordx4 {vr(Q,4)}, v1, s[4:7], s11 offen", vm="q")
    for j in range(8):
        k("s_mov_b32 m0, s13")
        k("s_add_u32 s13, s13, 8192")
        k("buffer_load_dwordx4 v2, s[4:7], m0 offen lds", vm=("kv", j))
        k("s_mov_b32 m0, s14")
        k(f"s_add_u32 s14, s14, {8*VP}")
        k("buffer_load_dwordx4 v1, s[4:7], s12 offen lds", vm=("kv", j))
        k("s_add_u32 s12, s12, 8192")
    k(f"""
    v_mov_b32 v{S0}, {ONES}
    v_mov_b32 v{S0+1}, {ONES}
    v_mov_b32 v{S0+2}, {ONES}
    v_mov_b32 v{S0+3}, {ONES}
    v_mul_u32_u24 v3, {VP}, v0
    v_add_u32 v3, {VB+1024}, v3
    ds_write_b128 v3, {vr(S0,4)}
    v_lshrrev_b32 v3, 5, v0
    v_bfe_u32 v4, v0, 2, 2
    v_lshl_add_u32 v4, v3, 2, v4
    v_lshlrev_b32 v4, 5, v4
    v_and_b32 v5, 1, v0
    v_lshl_add_u32 v4, v5, 4, v4
    v_bfe_u32 v5, v0, 1, 1
    v_lshl_add_u32 v4, v5, 3, v4
    v_add_u32 v4, {VB}, v4
    v_and_b32 v5, 16, v0
    v_cmp_ne_u32 vcc, 0, v5
    """)
    for e in range(4):
        k(f"v_mov_b32 v5, {VB+1024-256*e}")
        k(f"v_cndmask_b32 v{6+e}, v4, v5")
    for r in range(16):
        k(f"v_mov_b32 v{CR+r}, 0")
    k("s_mov_b32 s16, 0")
    k.wait(vm=("kv", 1))
    k("s_waitcnt lgkmcnt(0)")
    k("s_barrier")
    k.label("pass")
    k("v_mov_b32 v10, v1")
    for e in range(4):
        k(f"v_mov_b32 v{2+e}, v{6+e}")
    for r in range(16):
        k(f"v_mov_b32 v{O+r}, 0")
    k("s_mov_b32 s15, 0")
    U = 8

    def rdk(i):
        k(f"ds_read_b128 {vr(KR+(i&1)*4,4)}, v10 offset:{i*1024}", lg=("k", i))

    def rdv(i):
        for e in range(4):
            k(f"ds_read_b64_tr_b16 {vr(VR+(i&1)*8+2*e,2)}, v{2+e} offset:{i*VP+256*e}", lg=("v", i))

    def smfma(i):
        S = S0 if (i & 1) == 0 else S1
        k(f"v_mfma_f32_32x32x16_bf16 {vr(S,16)}, {vr(KR+(i&1)*4,4)}, {vr(Q,4)}, {vr(CR,16)}")

    rdk(0)
    rdk(1)
    rdv(0)
    k.wait(lg=("k", 0))
    smfma(0)
    k.label("loop")
    for i in range(U):
        S = S0 if (i & 1) == 0 else S1
        k.wait(lg=("k", i + 1))
        smfma(i + 1)
        rdk(i + 2)
        rdv(i + 1)
        for h in range(2):
            for r in range(8):
                k(f"v_exp_f32 v{S+8*h+r}, v{S+8*h+r}")
            for r in range(4):
                k(f"v_cvt_pk_bf16_f32 v{P+4*h+r}, v{S+8*h+2*r}, v{S+8*h+2*r+1}")
            if h == 0:
                k.wait(lg=("v", i))
            k(f"v_mfma_f32_32x32x16_bf16 {vr(O,16)}, {vr(VR+(i&1)*8+4*h,4)}, {vr(P+4*h,4)}, {vr(O,16)}")
        if i == U - 3:
            k(f"""
            s_add_u32 s15, s15, 1
            s_cmp_lg_u32 s15, 2
            s_cbranch_scc1 {k.L('nobar')}
            s_cmp_lg_u32 s16, 0
            s_cbranch_scc1 {k.L('nobar')}
            s_waitcnt vmcnt(0)
            s_barrier
            """)
            k.label("nobar")
    k(f"v_add_u32 v10, {U*1024}, v10")
    for e in range(4):
        k(f"v_add_u32 v{2+e}, {U*VP}, v{2+e}")
    k(f"""
    s_cmp_lt_u32 s15, {64//U}
    s_cbranch_scc1 {k.L('loop')}
    s_waitcnt lgkmcnt(0)
    s_nop 7
    s_nop 7
    s_cmp_lg_u32 s16, 0
    s_cbranch_scc1 {k.L('out')}
    s_mov_b32 s17, {f32(2.0**-60)}
    v_cmp_gt_f32 vcc, {f32(2.0**60)}, v{O+8}
    v_cmp_lt_f32 s[18:19], s17, v{O+8}
    s_and_b64 s[18:19], s[18:19], vcc
    s_cmp_eq_u64 s[18:19], exec
    s_cbranch_scc1 {k.L('out')}
    """)
    k(f"""
    v_mov_b32 v10, v1
    v_mov_b32 v11, 0xff7fffff
    s_mov_b32 s15, 0
    """)
    k.label("mx")
    k(f"""
    ds_read_b128 {vr(KR,4)}, v10
    v_add_u32 v10, 1024, v10
    s_waitcnt lgkmcnt(0)
    v_mfma_f32_32x32x16_bf16 {vr(S0,16)}, {vr(KR,4)}, {vr(Q,4)}, 0
    """)
    for r in range(8):
        k(f"v_max3_f32 v11, v11, v{S0+2*r}, v{S0+2*r+1}")
    k(f"""
    s_add_u32 s15, s15, 1
    s_cmp_lt_u32 s15, 64
    s_cbranch_scc1 {k.L('mx')}
    v_mov_b32 v10, v11
    v_permlane32_swap_b32 v10, v11
    v_max_f32 v11, v10, v11
    """)
    for r in range(16):
        k(f"v_sub_f32 v{CR+r}, 0, v11")
    k("s_mov_b32 s16, 1")
    k(f"s_branch {k.L('pass')}")
    k.label("out")
    k(f"""
    v_rcp_f32 v11, v{O+8}
    s_lshl_b32 s10, s9, 15
    s_lshl_b32 s11, s8, 10
    s_add_u32 s10, s10, s11
    s_add_u32 s10, s10, {OF:#x}
    """)
    for r in range(8):
        k(f"v_mul_f32 v{O+r}, v11, v{O+r}")
    for r in range(4):
        k(f"v_cvt_pk_bf16_f32 v{P+r}, v{O+2*r}, v{O+2*r+1}")
    k(f"buffer_store_dwordx4 {vr(P,4)}, v1, s[4:7], s10 offen")
    k.label("end")
    k("s_endpgm")
    return k


def main(path):
    ks = [gen_prep(),
          gen_t1("qkv0_kernel", "qkv", 0), gen_attn("attn_kernel"),
          gen_t2("wo0_kernel", "wo", 0, 1), gen_t1("up0_kernel", "w1", 1), gen_t2("dn0_kernel", "w2", 1, 2),
          gen_t1("qkv1_kernel", "qkv", 2),
          gen_t2("wo1_kernel", "wo", 2, 3), gen_t1("up1_kernel", "w1", 3), gen_t2("dn1_kernel", "w2", 3, None, final=True)]
    order = ["prep_kernel", "qkv0_kernel", "attn_kernel", "wo0_kernel", "up0_kernel", "dn0_kernel",
             "qkv1_kernel", "attn_kernel", "wo1_kernel", "up1_kernel", "dn1_kernel"]
    hdr = ["; 2 x (MHA block + channel MLP) for gfx950; generated by gen/gen.py",
           "; kernarg: x,wqkv,wo,(unused),w1,b1,w2,b2,out,debug,ws"]
    emit_file(path, hdr, order, ks)


if __name__ == "__main__":
    main(sys.argv[1] if len(sys.argv) > 1 else
         "interleave_layers__mha_block__mixer_channel_mlp__prompt.s")
```

```python
import sys, math, struct
sys.path.insert(0, "gen")
from asmlib import *

QF, KF, VF, OF = 0x000000, 0x200000, 0x400000, 0x600000
XF = [0x800000, 0xA00000, 0xC00000, 0xE00000]
HF = 0x1000000
ST = [0x1700000 + i * 0x40000 for i in range(4)]
WQF, W1F, WOF, W2F = 0x1800000, 0x1A00000, 0x1C00000, 0x1D00000
WSZ = 0x2200000
WQ_CT = 33 * 3072
W1_CT = 33 * 3584
WO_CT = 32 * 2048
W2_CT = 113 * 2048
ONES = "0x3f803f80"
EPS = 1e-5
LOG2E = 1.4426950408889634


def f32(x):
    return "0x%08x" % struct.unpack("<I", struct.pack("<f", x))[0]


def vr(b, n):
    return f"v[{b}:{b+n-1}]"


def ar(b, n):
    return f"a[{b}:{b+n-1}]"


import os
PROF = int(os.environ.get("PROF", "0"))
PROFB = 0x1F00000
_kidx = [0]


def stamp(k, i):
    if PROF:
        k(f"s_memtime s[{64+2*i}:{65+2*i}]")
        if i == 0:
            k("s_memrealtime s[90:91]")
        k("s_waitcnt lgkmcnt(0)")


def stamp_end(k, n, wreg="s3", srd="s[4:7]"):
    if not PROF:
        return
    k("s_waitcnt vmcnt(0)")
    k("s_memrealtime s[92:93]")
    stamp(k, n)
    k(f"s_lshl_b32 s94, s2, 3")
    k(f"s_add_u32 s94, s94, {wreg}")
    k(f"s_lshl_b32 s94, s94, 6")
    k(f"s_add_u32 s94, s94, {PROFB + _kidx[0]*0x20000:#x}")
    k("v_mov_b32 v0, 0")
    for i in range(n + 1):
        k(f"v_mov_b32 v1, s{64+2*i}")
        k(f"buffer_store_dword v1, v0, {srd}, s94 offen offset:{4*i}")
    k(f"v_mov_b32 v1, s90")
    k(f"buffer_store_dword v1, v0, {srd}, s94 offen offset:56")
    k(f"v_mov_b32 v1, s92")
    k(f"buffer_store_dword v1, v0, {srd}, s94 offen offset:60")
    k.nstamps = n + 1
    k.kidx = _kidx[0]
    _kidx[0] += 1


def ws_srd(k, base=4):
    k(f"s_mov_b32 s{base+2}, {WSZ:#x}")
    k(f"s_mov_b32 s{base+3}, 0x00020000")


def gen_prep():
    k = Kernel("prep_kernel", 248, 256, 1024, vgpr=96)
    k(f"""
    s_cmp_ge_u32 s2, 248
    s_cbranch_scc1 {k.L('end')}
    s_load_dwordx16 s[32:47], s[0:1], 0
    s_load_dwordx2 s[8:9], s[0:1], 80
    v_lshrrev_b32 v1, 6, v0
    v_and_b32 v0, 63, v0
    v_readfirstlane_b32 s24, v1
    v_lshrrev_b32 v2, 5, v0
    v_and_b32 v3, 31, v0
    s_mov_b32 s10, {WSZ:#x}
    s_mov_b32 s11, 0x00020000
    s_mov_b32 s7, 0x00020000
    s_mov_b32 s15, 0x00020000
    s_mov_b32 s14, 0
    s_mov_b32 s22, 0
    s_lshl_b32 s18, s24, 3
    v_mov_b32 v5, {ONES}
    s_waitcnt lgkmcnt(0)
    s_mov_b32 s12, s42
    s_mov_b32 s13, s43
    s_cmp_ge_u32 s2, 184
    s_cbranch_scc1 {k.L('x')}
    s_cmp_ge_u32 s2, 120
    s_cbranch_scc1 {k.L('w2')}
    s_cmp_ge_u32 s2, 104
    s_cbranch_scc1 {k.L('wo')}
    s_cmp_ge_u32 s2, 48
    s_cbranch_scc1 {k.L('w1')}
    """)
    k(f"""
    s_mov_b32 s4, s34
    s_mov_b32 s5, s35
    s_mov_b32 s6, {512*1536*2}
    s_mov_b32 s16, 3072
    s_lshr_b32 s25, s2, 4
    s_and_b32 s26, s2, 15
    s_lshl_b32 s25, s25, 10
    s_lshl_b32 s17, s26, 6
    s_add_u32 s17, s17, s25
    s_mul_i32 s19, s26, {WQ_CT}
    s_add_u32 s19, s19, s25
    s_add_u32 s19, s19, {WQF:#x}
    s_add_u32 s20, s19, 512
    s_mov_b32 s21, 3072
    s_mov_b32 s22, 1
    s_branch {k.L('w')}
    """)
    k.label("w1")
    k(f"""
    s_mov_b32 s4, s40
    s_mov_b32 s5, s41
    s_mov_b32 s6, {512*1792*2}
    s_mov_b32 s16, 3584
    s_sub_u32 s25, s2, 48
    s_lshl_b32 s17, s25, 6
    s_lshl_b32 s25, s25, 1
    s_mul_i32 s26, s25, 147
    s_lshr_b32 s26, s26, 10
    s_mul_i32 s19, s26, {W1_CT - 7*512}
    s_lshl_b32 s27, s25, 9
    s_add_u32 s19, s19, s27
    s_add_u32 s19, s19, {W1F:#x}
    s_add_u32 s25, s25, 1
    s_mul_i32 s26, s25, 147
    s_lshr_b32 s26, s26, 10
    s_mul_i32 s20, s26, {W1_CT - 7*512}
    s_lshl_b32 s27, s25, 9
    s_add_u32 s20, s20, s27
    s_add_u32 s20, s20, {W1F:#x}
    s_mov_b32 s21, 3584
    s_mov_b32 s22, 1
    s_mov_b32 s14, 3584
    s_branch {k.L('w')}
    """)
    k.label("wo")
    k(f"""
    s_mov_b32 s4, s36
    s_mov_b32 s5, s37
    s_mov_b32 s6, {512*512*2}
    s_mov_b32 s16, 1024
    s_sub_u32 s25, s2, 104
    s_lshl_b32 s17, s25, 6
    s_lshr_b32 s26, s25, 1
    s_mul_i32 s19, s26, {WO_CT}
    s_and_b32 s25, s25, 1
    s_lshl_b32 s25, s25, 10
    s_add_u32 s19, s19, s25
    s_add_u32 s19, s19, {WOF:#x}
    s_add_u32 s20, s19, 512
    s_mov_b32 s21, 2048
    s_branch {k.L('w')}
    """)
    k.label("w2")
    k(f"""
    s_mov_b32 s4, s44
    s_mov_b32 s5, s45
    s_mov_b32 s6, {1792*512*2}
    s_mov_b32 s16, 1024
    s_sub_u32 s25, s2, 120
    s_lshr_b32 s27, s25, 4
    s_and_b32 s25, s25, 15
    s_mul_i32 s27, s27, 28
    s_mul_i32 s18, s24, 7
    s_add_u32 s18, s18, s27
    s_lshl_b32 s17, s25, 6
    s_lshr_b32 s26, s25, 1
    s_mul_i32 s19, s26, {W2_CT}
    s_and_b32 s25, s25, 1
    s_lshl_b32 s25, s25, 10
    s_add_u32 s19, s19, s25
    s_add_u32 s19, s19, {W2F:#x}
    s_add_u32 s20, s19, 512
    s_mov_b32 s21, 2048
    """)
    k.label("w")
    k(f"""
    s_lshl_b32 s25, s16, 2
    v_mul_u32_u24 v4, s25, v2
    v_lshl_add_u32 v6, v3, 1, s17
    v_add_u32 v4, v4, v6
    v_lshl_add_u32 v6, v2, 16, v6
    s_lshl_b32 s27, s16, 4
    s_mul_i32 s26, s18, s27
    buffer_load_ushort v7, v6, s[12:15], 0 offen
    """)
    rows = [0, 1, 2, 3, 8, 9, 10, 11]
    for j, r in enumerate(rows):
        k(f"s_mul_i32 s25, s16, {r}")
        k(f"v_add_u32 v{8+j}, s25, v4")
    for i in range(8):
        for j in range(8):
            k(f"buffer_load_ushort v{16+i*8+j}, v{8+j}, s[4:7], s26 offen", vm=("w", i))
        k("s_add_u32 s26, s26, s27")
    k(f"""
    v_and_b32 v4, 15, v3
    v_lshlrev_b32 v4, 4, v4
    v_lshl_add_u32 v4, v2, 8, v4
    v_mov_b32 v8, s19
    v_mov_b32 v9, s20
    v_cmp_lt_u32 vcc, 15, v3
    v_cndmask_b32 v8, v8, v9
    v_add_u32 v4, v4, v8
    s_mul_i32 s26, s18, s21
    v_mov_b32 v80, 0
    v_mov_b32 v81, 0
    """)
    for i in range(8):
        b = 16 + i * 8
        k.wait(vm=("w", i))
        for d in range(4):
            k(f"v_lshl_or_b32 v{b+d}, v{b+2*d+1}, 16, v{b+2*d}")
        k(f"buffer_store_dwordx4 {vr(b,4)}, v4, s[8:11], s26 offen")
        k("s_add_u32 s26, s26, s21")
        for d in range(4):
            k(f"v_dot2_f32_bf16 v{80+(d&1)}, v{b+d}, v5, v{80+(d&1)}")
    k(f"""
    s_cmp_eq_u32 s22, 0
    s_cbranch_scc1 {k.L('end')}
    v_add_f32 v80, v80, v81
    v_lshlrev_b32 v8, 2, v0
    v_lshl_add_u32 v9, v1, 8, v8
    ds_write_b32 v9, v80
    s_waitcnt lgkmcnt(0)
    s_barrier
    s_cmp_lg_u32 s24, 0
    s_cbranch_scc1 {k.L('end')}
    ds_read_b32 v10, v8
    ds_read_b32 v11, v8 offset:256
    ds_read_b32 v12, v8 offset:512
    ds_read_b32 v13, v8 offset:768
    s_lshl_b32 s26, s21, 5
    s_waitcnt lgkmcnt(0)
    v_add_f32 v10, v10, v11
    v_add_f32 v12, v12, v13
    v_add_f32 v10, v10, v12
    v_cvt_pk_bf16_f32 v84, v10, v10
    v_and_b32 v11, 0xffff0000, v84
    v_sub_f32 v11, v10, v11
    v_cvt_pk_bf16_f32 v11, v11, v11
    v_and_b32 v11, 0xffff, v11
    v_lshl_or_b32 v85, v7, 16, v11
    v_mov_b32 v86, v7
    v_mov_b32 v87, 0
    buffer_store_dwordx4 v[84:87], v4, s[8:11], s26 offen
    s_endpgm
    """)
    k.label("x")
    k(f"""
    s_mov_b32 s4, s32
    s_mov_b32 s5, s33
    s_mov_b32 s6, {2048*512*2}
    s_sub_u32 s25, s2, 184
    s_lshl_b32 s26, s25, 15
    s_lshl_b32 s27, s24, 8
    s_add_u32 s27, s27, s26
    v_lshlrev_b32 v4, 10, v3
    v_lshl_add_u32 v4, v2, 3, v4
    v_lshlrev_b32 v6, 4, v0
    """)
    for i in range(8):
        k(f"buffer_load_dwordx2 {vr(16+i*4,2)}, v4, s[4:7], s27 offen offset:{i*32}", vm=("x", i))
        k(f"buffer_load_dwordx2 {vr(18+i*4,2)}, v4, s[4:7], s27 offen offset:{i*32+16}", vm=("x", i))
    k(f"""
    s_lshl_b32 s28, s24, 13
    s_add_u32 s28, s28, s26
    s_add_u32 s28, s28, {XF[0]:#x}
    s_add_u32 s29, s28, 4096
    s_lshl_b32 s30, s25, 12
    s_lshl_b32 s31, s24, 10
    s_add_u32 s30, s30, s31
    s_add_u32 s30, s30, {ST[0]:#x}
    v_lshlrev_b32 v7, 4, v3
    v_lshl_add_u32 v7, v2, 2, v7
    """)
    for p in range(4):
        k.wait(vm=("x", 2 * p + 1))
        for i in (2 * p, 2 * p + 1):
            k(f"buffer_store_dwordx4 {vr(16+i*4,4)}, v6, s[8:11], s{28+(i>>2)} offen offset:{(i&3)*1024}")
        a, b = 48 + 2 * p, 49 + 2 * p
        for d in range(8):
            r = 16 + p * 8 + d
            k(f"v_dot2_f32_bf16 v{a}, v{r}, v5, {'0' if d==0 else f'v{a}'}")
            k(f"v_dot2_f32_bf16 v{b}, v{r}, v{r}, {'0' if d==0 else f'v{b}'}")
        k(f"v_permlane32_swap_b32 v{a}, v{b}")
        k(f"v_add_f32 v{a}, v{a}, v{b}")
        k(f"buffer_store_dword v{a}, v7, s[8:11], s30 offen offset:{(p>>1)*512+(p&1)*8}")
    k.label("end")
    k("s_endpgm")
    return k


def stats_math(k, sreg, aug, rs, tmp, kind):
    s, t = sreg, tmp
    for i in (0, 1):
        k(f"v_add_f32 v{s+i}, v{s+i}, v{s+2+i}")
        k(f"v_add_f32 v{s+4+i}, v{s+4+i}, v{s+6+i}")
        k(f"v_add_f32 v{s+8+i}, v{s+8+i}, v{s+10+i}")
        k(f"v_add_f32 v{s+12+i}, v{s+12+i}, v{s+14+i}")
    for i in (0, 1):
        k(f"v_add_f32 v{s+i}, v{s+i}, v{s+4+i}")
        k(f"v_add_f32 v{s+8+i}, v{s+8+i}, v{s+12+i}")
    for i in (0, 1):
        k(f"v_add_f32 v{s+i}, v{s+i}, v{s+8+i}")
    k(f"""
    v_mov_b32 v{s+2}, v{s}
    v_mov_b32 v{s+3}, v{s+1}
    v_permlane32_swap_b32 v{s}, v{s+2}
    v_permlane32_swap_b32 v{s+1}, v{s+3}
    v_add_f32 v{s}, v{s}, v{s+2}
    v_add_f32 v{s+1}, v{s+1}, v{s+3}
    v_mul_f32 v{s}, {f32(-1.0/512)}, v{s}
    v_mul_f32 v{s+1}, {f32(1.0/512)}, v{s+1}
    v_fma_f32 v{s+1}, -v{s}, v{s}, v{s+1}
    v_max_f32 v{s+1}, 0, v{s+1}
    """)
    if kind == "qkv":
        k(f"v_add_f32 v{s+1}, {f32(EPS)}, v{s+1}")
    else:
        k(f"v_mov_b32 v{s+2}, {f32(EPS*EPS)}")
        k(f"v_fmamk_f32 v{s+1}, v{s+1}, {f32(1+EPS)}, v{s+2}")
    k(f"""
    v_rsq_f32 v{rs}, v{s+1}
    v_cvt_pk_bf16_f32 v{s+4}, v{s}, v{s}
    v_and_b32 v{s+5}, 0xffff0000, v{s+4}
    v_sub_f32 v{s+5}, v{s}, v{s+5}
    v_cvt_pk_bf16_f32 v{aug}, v{s}, v{s+5}
    """)
    if kind == "qkv":
        k(f"v_and_b32 v{aug+1}, 0xffff, v{s+4}")
        k(f"v_mov_b32 v{aug+2}, 0")
    else:
        k(f"""
        v_mul_f32 v{s+6}, v{s+1}, v{rs}
        v_cvt_pk_bf16_f32 v{aug+1}, v{s}, v{s+6}
        v_and_b32 v{s+7}, 0xffff0000, v{aug+1}
        v_sub_f32 v{s+7}, v{s+6}, v{s+7}
        v_cvt_pk_bf16_f32 v{aug+2}, v{s+7}, 0
        """)
    k(f"v_mov_b32 v{aug+3}, 0")


def gen_t1(name, kind, xin):
    NT = 3 if kind == "qkv" else 4
    KSB = 3072 if kind == "qkv" else 3584
    WF, WCT = (WQF, WQ_CT) if kind == "qkv" else (W1F, W1_CT)
    ndma = (33 * KSB + 4095) // 4096
    lds = ndma * 4096 + 1024
    SR, AUG, RS, WR, ACC = 8, 24, 28, 32, 80
    k = Kernel(name, 256, 256, lds, vgpr=ACC + 64, agpr=128)
    k(f"""
    s_cmp_ge_u32 s2, 256
    s_cbranch_scc1 {k.L('end')}
    s_load_dwordx2 s[4:5], s[0:1], 80
    v_lshrrev_b32 v1, 6, v0
    v_and_b32 v0, 63, v0
    v_readfirstlane_b32 s3, v1
    s_and_b32 s8, s2, 7
    s_lshr_b32 s9, s2, 3
    s_lshr_b32 s10, s8, 1
    s_lshl_b32 s10, s10, 2
    s_and_b32 s11, s9, 3
    s_add_u32 s10, s10, s11
    s_and_b32 s11, s8, 1
    s_lshl_b32 s11, s11, 3
    s_lshr_b32 s9, s9, 2
    s_add_u32 s11, s11, s9
    s_lshl_b32 s10, s10, 2
    s_add_u32 s10, s10, s3
    v_lshlrev_b32 v1, 4, v0
    s_mul_i32 s12, s11, {WCT}
    s_add_u32 s12, s12, {WF:#x}
    v_add_u32 v2, s12, v1
    v_lshrrev_b32 v5, 5, v0
    v_and_b32 v6, 31, v0
    v_lshlrev_b32 v3, 4, v6
    v_lshl_add_u32 v3, v5, 11, v3
    s_lshl_b32 s13, s10, 12
    s_add_u32 s13, s13, {ST[xin]:#x}
    s_lshl_b32 s14, s10, 15
    s_add_u32 s14, s14, {XF[xin]:#x}
    s_lshl_b32 m0, s3, 10
    """)
    stamp(k, 0)
    ws_srd(k)
    k("s_waitcnt lgkmcnt(0)")
    for q in range(4):
        k(f"buffer_load_dwordx4 {vr(SR+4*q,4)}, v3, s[4:7], s13 offen offset:{q*512}", vm="st")
    j = 0
    for c in range(9):
        jmax = min(ndma - 1, ((c + 1) * 4 * KSB - 1) // 4096) if c < 8 else ndma - 1
        na = 0
        while j <= jmax or (c < 8 and na < 4):
            if j <= jmax:
                k("buffer_load_dwordx4 v2, s[4:7], m0 offen lds", vm=("c", c))
                k("s_add_u32 m0, m0, 4096")
                j += 1
            if c < 8 and na < 4:
                k(f"buffer_load_dwordx4 {ar((c*4+na)*4,4)}, v1, s[4:7], s14 offen offset:{na*1024}", vm=("c", c))
                na += 1
        if c < 7:
            k("s_add_u32 s14, s14, 4096")
    k(f"""
    v_and_b32 v4, 15, v0
    v_lshlrev_b32 v4, 4, v4
    v_lshl_add_u32 v4, v5, 8, v4
    v_bfe_u32 v7, v0, 4, 1
    v_lshl_add_u32 v4, v7, 9, v4
    v_add_u32 v7, 0x10000, v4
    """)

    def rd(s):
        slot = s % 3
        for t in range(NT):
            off = s * KSB + t * 1024
            a = "v4"
            if off >= 65536:
                off -= 65536
                a = "v7"
            k(f"ds_read_b128 {vr(WR+(slot*NT+t)*4,4)}, {a} offset:{off}", lg=("r", s))

    stamp(k, 1)
    k.wait(vm=("c", 0))
    k("s_barrier")
    stamp(k, 2)
    rd(0)
    rd(1)
    for s in range(33):
        if s + 2 <= 32:
            if (s + 2) % 4 == 0:
                k.wait(vm=("c", (s + 2) // 4))
                k("s_barrier")
            rd(s + 2)
        k.wait(lg=("r", s))
        slot = s % 3
        for t in range(NT):
            b = ar(s * 4, 4) if s < 32 else vr(AUG, 4)
            c = "0" if s == 0 else vr(ACC + 16 * t, 16)
            k(f"v_mfma_f32_32x32x16_bf16 {vr(ACC+16*t,16)}, {vr(WR+(slot*NT+t)*4,4)}, {b}, {c}")
        if s == 0:
            stats_math(k, SR, AUG, RS, 29, kind)
    stamp(k, 3)
    if kind == "qkv":
        k(f"""
        s_lshl_b32 s12, s11, 17
        s_lshl_b32 s13, s10, 10
        s_add_u32 s12, s12, s13
        s_add_u32 s13, s12, 0x10000
        s_add_u32 s14, s12, {KF:#x}
        s_add_u32 s15, s13, {KF:#x}
        s_add_u32 s16, s12, {VF:#x}
        s_add_u32 s17, s13, {VF:#x}
        v_mul_f32 v29, {f32(0.25*LOG2E)}, v{RS}
        v_lshlrev_b32 v2, 5, v6
        v_lshl_add_u32 v2, v5, 4, v2
        """)
        for t in range(3):
            sc = 29 if t == 0 else RS
            for h in range(2):
                a = ACC + 16 * t + 8 * h
                for r in range(8):
                    k(f"v_mul_f32 v{a+r}, v{sc}, v{a+r}")
                o = WR + (t * 2 + h) * 4
                for r in range(4):
                    k(f"v_cvt_pk_bf16_f32 v{o+r}, v{a+2*r}, v{a+2*r+1}")
                k(f"buffer_store_dwordx4 {vr(o,4)}, {'v2' if t==2 else 'v1'}, s[4:7], s{12+2*t+h} offen")
    else:
        c0 = -2.0 * math.sqrt(2.0 / math.pi) * LOG2E
        c1 = c0 * 0.044715
        k(f"""
        s_mul_i32 s12, s10, {112*1024}
        s_mul_i32 s13, s11, {7*1024}
        s_add_u32 s12, s12, s13
        s_add_u32 s12, s12, {HF:#x}
        s_add_u32 s13, s12, 4096
        s_mov_b32 s14, {f32(c1)}
        v_mov_b32 v29, {f32(c0)}
        """)
        for u in range(7):
            a = ACC + 8 * u
            T = 8 + (u & 1) * 8
            for r in range(8):
                k(f"v_mul_f32 v{a+r}, v{RS}, v{a+r}")
            for r in range(8):
                k(f"v_mul_f32 v{T+r}, v{a+r}, v{a+r}")
            for r in range(8):
                k(f"v_fma_f32 v{T+r}, v{T+r}, s14, v29")
            for r in range(8):
                k(f"v_mul_f32 v{T+r}, v{T+r}, v{a+r}")
            for r in range(8):
                k(f"v_exp_f32 v{T+r}, v{T+r}")
            for r in range(8):
                k(f"v_add_f32 v{T+r}, 1.0, v{T+r}")
            for r in range(8):
                k(f"v_rcp_f32 v{T+r}, v{T+r}")
            for r in range(8):
                k(f"v_mul_f32 v{a+r}, v{T+r}, v{a+r}")
            o = WR + u * 4
            for r in range(4):
                k(f"v_cvt_pk_bf16_f32 v{o+r}, v{a+2*r}, v{a+2*r+1}")
            k(f"buffer_store_dwordx4 {vr(o,4)}, v1, s[4:7], s{12+(u>>2)} offen offset:{(u&3)*1024}")
    stamp(k, 4)
    stamp_end(k, 5)
    k.label("end")
    k("s_endpgm")
    return k


def gen_t2(name, kind, xres, xout, final=False):
    NKS = 32 if kind == "wo" else 112
    NI = NKS // 4
    AF = OF if kind == "wo" else HF
    ARB = NKS * 1024
    WF, WCT = (WOF, WO_CT) if kind == "wo" else (W2F, W2_CT)
    DEPTH = min(NI, 14)
    ACC, RES, BI, T = 16, 80, 88, 96
    k = Kernel(name, 256, 256, 49152, vgpr=160, agpr=DEPTH * 16)
    k(f"""
    s_cmp_ge_u32 s2, 256
    s_cbranch_scc1 {k.L('end')}
    s_load_dwordx2 s[4:5], s[0:1], 80
    s_load_dwordx4 s[20:23], s[0:1], 56
    v_lshrrev_b32 v1, 6, v0
    v_and_b32 v0, 63, v0
    v_readfirstlane_b32 s3, v1
    s_and_b32 s8, s2, 7
    s_lshr_b32 s9, s2, 3
    s_lshl_b32 s10, s8, 2
    s_and_b32 s11, s9, 3
    s_add_u32 s10, s10, s11
    s_lshr_b32 s11, s9, 2
    s_lshr_b32 s12, s3, 1
    s_and_b32 s13, s3, 1
    s_lshl_b32 s10, s10, 1
    s_add_u32 s18, s10, s12
    s_lshl_b32 s19, s11, 1
    s_add_u32 s19, s19, s13
    v_lshlrev_b32 v1, 4, v0
    s_mul_i32 s14, s12, {ARB}
    s_xor_b32 s15, s12, 1
    s_mul_i32 s15, s15, {ARB}
    v_add_u32 v2, s14, v1
    v_add_u32 v3, s15, v1
    v_lshrrev_b32 v6, 5, v0
    v_and_b32 v7, 31, v0
    v_and_b32 v4, 15, v0
    v_lshlrev_b32 v4, 4, v4
    v_lshl_add_u32 v4, v6, 8, v4
    v_bfe_u32 v5, v0, 4, 1
    v_lshl_add_u32 v4, v5, 9, v4
    s_lshl_b32 s14, s13, 10
    v_add_u32 v4, s14, v4
    v_xor_b32 v5, 0x400, v4
    s_mul_i32 s14, s10, {ARB}
    s_lshl_b32 s15, s3, 10
    s_add_u32 s14, s14, s15
    s_add_u32 s14, s14, {AF:#x}
    s_mul_i32 s15, s11, {WCT}
    s_lshl_b32 s16, s3, 11
    s_add_u32 s15, s15, s16
    s_add_u32 s15, s15, {WF:#x}
    s_lshl_b32 s16, s18, 15
    s_lshl_b32 s17, s19, 11
    s_add_u32 s16, s16, s17
    s_add_u32 s17, s16, {XF[xres]:#x}
    """)
    stamp(k, 0)
    ws_srd(k)
    k("s_waitcnt lgkmcnt(0)")

    def ld(i):
        b = (i % DEPTH) * 16
        k(f"buffer_load_dwordx4 {ar(b,4)}, v4, s[4:7], s15 offen", vm=("k", i))
        k(f"buffer_load_dwordx4 {ar(b+4,4)}, v2, s[4:7], s14 offen", vm=("k", i))
        k(f"buffer_load_dwordx4 {ar(b+8,4)}, v5, s[4:7], s15 offen", vm=("k", i))
        k(f"buffer_load_dwordx4 {ar(b+12,4)}, v3, s[4:7], s14 offen", vm=("k", i))
        k("s_add_u32 s14, s14, 4096")
        k("s_add_u32 s15, s15, 8192")

    for i in range(DEPTH):
        ld(i)
    k(f"buffer_load_dwordx4 {vr(RES,4)}, v1, s[4:7], s17 offen", vm="res")
    k(f"buffer_load_dwordx4 {vr(RES+4,4)}, v1, s[4:7], s17 offen offset:1024", vm="res")
    if kind == "w2":
        k(f"""
        s_mov_b32 s24, s20
        s_mov_b32 s25, s21
        s_mov_b32 s26, 1024
        s_mov_b32 s27, 0x00020000
        v_lshlrev_b32 v8, 3, v6
        s_lshl_b32 s28, s19, 6
        """)
        for g in range(4):
            k(f"buffer_load_dwordx2 {vr(BI+2*g,2)}, v8, s[24:27], s28 offen offset:{g*16}", vm="res")
    for a in (1, 2, 3):
        k(f"s_xor_b32 s29, s3, {a}")
        k(f"s_mul_i32 s29, s29, 12288")
        k(f"s_add_u32 s29, s29, {(a-1)*4096}")
        k(f"v_add_u32 v{8+a}, s29, v1")
    k("s_mul_i32 s29, s3, 12288")
    k("v_add_u32 v12, s29, v1")
    stamp(k, 1)
    for i in range(NI):
        b = (i % DEPTH) * 16
        k.wait(vm=("k", i))
        if i == 0:
            stamp(k, 2)
        for a in range(4):
            an, am = a & 1, a >> 1
            c = "0" if i == 0 else vr(ACC + 16 * a, 16)
            k(f"v_mfma_f32_32x32x16_bf16 {vr(ACC+16*a,16)}, {ar(b+8*an,4)}, {ar(b+4+8*am,4)}, {c}")
        if i + DEPTH < NI:
            ld(i + DEPTH)
    stamp(k, 3)
    for a in (1, 2, 3):
        for q in range(4):
            k(f"ds_write_b128 v{8+a}, {vr(ACC+16*a+4*q,4)} offset:{q*1024}")
    k.wait(vm="res")
    for r in range(8):
        k(f"v_lshlrev_b32 v{T}, 16, v{RES+r}")
        k(f"v_and_b32 v{T+1}, 0xffff0000, v{RES+r}")
        k(f"v_add_f32 v{ACC+2*r}, v{ACC+2*r}, v{T}")
        k(f"v_add_f32 v{ACC+2*r+1}, v{ACC+2*r+1}, v{T+1}")
    if kind == "w2":
        for r in range(8):
            k(f"v_lshlrev_b32 v{T}, 16, v{BI+r}")
            k(f"v_and_b32 v{T+1}, 0xffff0000, v{BI+r}")
            k(f"v_add_f32 v{ACC+2*r}, v{ACC+2*r}, v{T}")
            k(f"v_add_f32 v{ACC+2*r+1}, v{ACC+2*r+1}, v{T+1}")
    k("s_waitcnt lgkmcnt(0)")
    k("s_barrier")
    for a in range(3):
        for q in range(4):
            k(f"ds_read_b128 {vr(T+16*a+4*q,4)}, v12 offset:{a*4096+q*1024}", lg=("p", a))
    for a in range(3):
        k.wait(lg=("p", a))
        for r in range(16):
            k(f"v_add_f32 v{ACC+r}, v{ACC+r}, v{T+16*a+r}")
    O = RES
    for r in range(8):
        k(f"v_cvt_pk_bf16_f32 v{O+r}, v{ACC+2*r}, v{ACC+2*r+1}")
    if not final:
        k(f"""
        s_add_u32 s17, s16, {XF[xout]:#x}
        buffer_store_dwordx4 {vr(O,4)}, v1, s[4:7], s17 offen
        buffer_store_dwordx4 {vr(O+4,4)}, v1, s[4:7], s17 offen offset:1024
        v_mov_b32 v13, {ONES}
        s_lshl_b32 s28, s18, 12
        s_lshr_b32 s29, s19, 1
        s_lshl_b32 s29, s29, 9
        s_add_u32 s28, s28, s29
        s_lshl_b32 s29, s13, 3
        s_add_u32 s28, s28, s29
        s_add_u32 s28, s28, {ST[xout]:#x}
        v_lshlrev_b32 v8, 4, v7
        v_lshl_add_u32 v8, v6, 2, v8
        """)
        for r in range(8):
            k(f"v_dot2_f32_bf16 v14, v{O+r}, v13, {'0' if r==0 else 'v14'}")
            k(f"v_dot2_f32_bf16 v15, v{O+r}, v{O+r}, {'0' if r==0 else 'v15'}")
        k(f"""
        v_permlane32_swap_b32 v14, v15
        v_add_f32 v14, v14, v15
        buffer_store_dword v14, v8, s[4:7], s28 offen
        """)
    else:
        k(f"""
        s_mov_b32 s24, s22
        s_mov_b32 s25, s23
        s_mov_b32 s26, {2048*1024}
        s_mov_b32 s27, 0x00020000
        s_lshl_b32 s28, s18, 15
        s_lshl_b32 s29, s19, 6
        s_add_u32 s28, s28, s29
        v_lshlrev_b32 v8, 10, v7
        v_lshl_add_u32 v8, v6, 4, v8
        v_permlane32_swap_b32 v{O}, v{O+2}
        v_permlane32_swap_b32 v{O+1}, v{O+3}
        v_permlane32_swap_b32 v{O+4}, v{O+6}
        v_permlane32_swap_b32 v{O+5}, v{O+7}
        buffer_store_dwordx4 {vr(O,4)}, v8, s[24:27], s28 offen
        buffer_store_dwordx4 {vr(O+4,4)}, v8, s[24:27], s28 offen offset:32
        """)
    stamp(k, 4)
    stamp_end(k, 5)
    k.label("end")
    k("s_endpgm")
    return k


VB = 65536
VP = 1040


def gen_attn(name):
    k = Kernel(name, 256, 512, VB + 65 * VP, vgpr=128)
    Q, CR, S0, S1, P, KR, VR, O = 12, 16, 32, 48, 64, 72, 80, 96
    k(f"""
    s_cmp_ge_u32 s2, 256
    s_cbranch_scc1 {k.L('end')}
    s_load_dwordx2 s[4:5], s[0:1], 80
    v_lshrrev_b32 v1, 6, v0
    v_and_b32 v0, 63, v0
    v_readfirstlane_b32 s3, v1
    s_and_b32 s8, s2, 31
    s_lshr_b32 s9, s2, 5
    s_lshl_b32 s9, s9, 3
    s_add_u32 s9, s9, s3
    v_lshlrev_b32 v1, 4, v0
    s_lshl_b32 s10, s8, 16
    s_lshl_b32 s11, s9, 10
    s_add_u32 s11, s11, s10
    s_add_u32 s12, s10, {KF:#x}
    v_add_u32 v2, s12, v1
    s_lshl_b32 s13, s3, 10
    s_add_u32 s12, s10, {VF:#x}
    s_add_u32 s12, s12, s13
    s_mul_i32 s14, s3, {VP}
    s_add_u32 s14, s14, {VB}
    """)
    stamp(k, 0)
    ws_srd(k)
    k("s_waitcnt lgkmcnt(0)")
    k(f"buffer_load_dwordx4 {vr(Q,4)}, v1, s[4:7], s11 offen", vm="q")
    for j in range(8):
        k("s_mov_b32 m0, s13")
        k("s_add_u32 s13, s13, 8192")
        k("buffer_load_dwordx4 v2, s[4:7], m0 offen lds", vm=("kv", j))
        k("s_mov_b32 m0, s14")
        k(f"s_add_u32 s14, s14, {8*VP}")
        k("buffer_load_dwordx4 v1, s[4:7], s12 offen lds", vm=("kv", j))
        k("s_add_u32 s12, s12, 8192")
    k(f"""
    v_mov_b32 v{S0}, {ONES}
    v_mov_b32 v{S0+1}, {ONES}
    v_mov_b32 v{S0+2}, {ONES}
    v_mov_b32 v{S0+3}, {ONES}
    v_mul_u32_u24 v3, {VP}, v0
    v_add_u32 v3, {VB+1024}, v3
    ds_write_b128 v3, {vr(S0,4)}
    v_lshrrev_b32 v3, 5, v0
    v_bfe_u32 v4, v0, 2, 2
    v_lshl_add_u32 v4, v3, 2, v4
    v_lshlrev_b32 v4, 5, v4
    v_and_b32 v5, 1, v0
    v_lshl_add_u32 v4, v5, 4, v4
    v_bfe_u32 v5, v0, 1, 1
    v_lshl_add_u32 v4, v5, 3, v4
    v_add_u32 v4, {VB}, v4
    v_and_b32 v5, 16, v0
    v_cmp_ne_u32 vcc, 0, v5
    """)
    for e in range(4):
        k(f"v_mov_b32 v5, {VB+1024-256*e}")
        k(f"v_cndmask_b32 v{6+e}, v4, v5")
    for r in range(16):
        k(f"v_mov_b32 v{CR+r}, 0")
    k("s_mov_b32 s16, 0")
    stamp(k, 1)
    k.wait(vm=("kv", 1))
    k("s_waitcnt lgkmcnt(0)")
    k("s_barrier")
    stamp(k, 2)
    k.label("pass")
    k("v_mov_b32 v10, v1")
    for e in range(4):
        k(f"v_mov_b32 v{2+e}, v{6+e}")
    for r in range(16):
        k(f"v_mov_b32 v{O+r}, 0")
    k("s_mov_b32 s15, 0")
    U = 8

    def rdk(i):
        k(f"ds_read_b128 {vr(KR+(i&1)*4,4)}, v10 offset:{i*1024}", lg=("k", i))

    def rdv(i):
        for e in range(4):
            k(f"ds_read_b64_tr_b16 {vr(VR+(i&1)*8+2*e,2)}, v{2+e} offset:{i*VP+256*e}", lg=("v", i))

    def smfma(i):
        S = S0 if (i & 1) == 0 else S1
        k(f"v_mfma_f32_32x32x16_bf16 {vr(S,16)}, {vr(KR+(i&1)*4,4)}, {vr(Q,4)}, {vr(CR,16)}")

    rdk(0)
    rdk(1)
    rdv(0)
    k.wait(lg=("k", 0))
    smfma(0)
    k.label("loop")
    for i in range(U):
        S = S0 if (i & 1) == 0 else S1
        k.wait(lg=("k", i + 1))
        smfma(i + 1)
        rdk(i + 2)
        rdv(i + 1)
        for h in range(2):
            for r in range(8):
                k(f"v_exp_f32 v{S+8*h+r}, v{S+8*h+r}")
            for r in range(4):
                k(f"v_cvt_pk_bf16_f32 v{P+4*h+r}, v{S+8*h+2*r}, v{S+8*h+2*r+1}")
            if h == 0:
                k.wait(lg=("v", i))
            k(f"v_mfma_f32_32x32x16_bf16 {vr(O,16)}, {vr(VR+(i&1)*8+4*h,4)}, {vr(P+4*h,4)}, {vr(O,16)}")
        if i == U - 3:
            k(f"""
            s_add_u32 s15, s15, 1
            s_cmp_lg_u32 s15, 2
            s_cbranch_scc1 {k.L('nobar')}
            s_cmp_lg_u32 s16, 0
            s_cbranch_scc1 {k.L('nobar')}
            s_waitcnt vmcnt(0)
            s_barrier
            """)
            k.label("nobar")
    k(f"v_add_u32 v10, {U*1024}, v10")
    for e in range(4):
        k(f"v_add_u32 v{2+e}, {U*VP}, v{2+e}")
    k(f"""
    s_cmp_lt_u32 s15, {64//U}
    s_cbranch_scc1 {k.L('loop')}
    s_waitcnt lgkmcnt(0)
    s_nop 7
    s_nop 7
    s_cmp_lg_u32 s16, 0
    s_cbranch_scc1 {k.L('out')}
    s_mov_b32 s17, {f32(2.0**-60)}
    v_cmp_gt_f32 vcc, {f32(2.0**60)}, v{O+8}
    v_cmp_lt_f32 s[18:19], s17, v{O+8}
    s_and_b64 s[18:19], s[18:19], vcc
    s_cmp_eq_u64 s[18:19], exec
    s_cbranch_scc1 {k.L('out')}
    """)
    k(f"""
    v_mov_b32 v10, v1
    v_mov_b32 v11, 0xff7fffff
    s_mov_b32 s15, 0
    """)
    k.label("mx")
    k(f"""
    ds_read_b128 {vr(KR,4)}, v10
    v_add_u32 v10, 1024, v10
    s_waitcnt lgkmcnt(0)
    v_mfma_f32_32x32x16_bf16 {vr(S0,16)}, {vr(KR,4)}, {vr(Q,4)}, 0
    """)
    for r in range(8):
        k(f"v_max3_f32 v11, v11, v{S0+2*r}, v{S0+2*r+1}")
    k(f"""
    s_add_u32 s15, s15, 1
    s_cmp_lt_u32 s15, 64
    s_cbranch_scc1 {k.L('mx')}
    v_mov_b32 v10, v11
    v_permlane32_swap_b32 v10, v11
    v_max_f32 v11, v10, v11
    """)
    for r in range(16):
        k(f"v_sub_f32 v{CR+r}, 0, v11")
    k("s_mov_b32 s16, 1")
    k(f"s_branch {k.L('pass')}")
    k.label("out")
    stamp(k, 3)
    k(f"""
    v_rcp_f32 v11, v{O+8}
    s_lshl_b32 s10, s9, 15
    s_lshl_b32 s11, s8, 10
    s_add_u32 s10, s10, s11
    s_add_u32 s10, s10, {OF:#x}
    """)
    for r in range(8):
        k(f"v_mul_f32 v{O+r}, v11, v{O+r}")
    for r in range(4):
        k(f"v_cvt_pk_bf16_f32 v{P+r}, v{O+2*r}, v{O+2*r+1}")
    k(f"buffer_store_dwordx4 {vr(P,4)}, v1, s[4:7], s10 offen")
    stamp_end(k, 4)
    k.label("end")
    k("s_endpgm")
    return k


def main(path):
    ks = [gen_prep(),
          gen_t1("qkv0_kernel", "qkv", 0), gen_attn("attn_kernel"),
          gen_t2("wo0_kernel", "wo", 0, 1), gen_t1("up0_kernel", "w1", 1), gen_t2("dn0_kernel", "w2", 1, 2),
          gen_t1("qkv1_kernel", "qkv", 2),
          gen_t2("wo1_kernel", "wo", 2, 3), gen_t1("up1_kernel", "w1", 3), gen_t2("dn1_kernel", "w2", 3, None, final=True)]
    order = ["prep_kernel", "qkv0_kernel", "attn_kernel", "wo0_kernel", "up0_kernel", "dn0_kernel",
             "qkv1_kernel", "attn_kernel", "wo1_kernel", "up1_kernel", "dn1_kernel"]
    hdr = ["; 2 x (MHA block + channel MLP) for gfx950; generated by gen/gen.py",
           "; kernarg: x,wqkv,wo,(unused),w1,b1,w2,b2,out,debug,ws"]
    emit_file(path, hdr, order, ks)
    return ks


if __name__ == "__main__":
    main(sys.argv[1] if len(sys.argv) > 1 else
         "interleave_layers__mha_block__mixer_channel_mlp__prompt.s")
```

```python
import re

TRANS = ("v_exp_", "v_log_", "v_rcp_", "v_rsq_", "v_sqrt_", "v_sin_", "v_cos_")


def _regs(op):
    op = op.strip()
    op = op.lstrip("-").strip("|")
    m = re.fullmatch(r"([vas])(\d+)", op)
    if m:
        return {op}
    m = re.fullmatch(r"([vas])\[(\d+):(\d+)\]", op)
    if m:
        return {f"{m.group(1)}{i}" for i in range(int(m.group(2)), int(m.group(3)) + 1)}
    if op in ("vcc", "vcc_lo", "vcc_hi"):
        return {"vcc"}
    if op in ("exec", "exec_lo", "exec_hi"):
        return {"exec"}
    if op == "m0":
        return {"m0"}
    return set()


class Ins:
    __slots__ = ("text", "op", "kind", "dst", "src", "srcC", "srcAB", "passes", "nop", "lds", "wide_store", "trans")

    def __init__(self, text):
        self.text = text
        t = text.split(";")[0].strip()
        parts = t.split(None, 1)
        self.op = parts[0]
        rest = parts[1] if len(parts) > 1 else ""
        ops = [o.strip() for o in re.split(r",(?![^\[]*\])", rest)] if rest else []
        mods = ""
        if ops:
            l = ops[-1].split(None, 1)
            ops[-1] = l[0]
            mods = l[1] if len(l) > 1 else ""
        self.dst, self.src, self.srcC, self.srcAB = set(), set(), set(), set()
        self.passes = 0
        self.nop = 1
        self.lds = False
        self.wide_store = False
        self.trans = False
        op = self.op
        if op.startswith("v_mfma"):
            self.kind = "mfma"
            self.dst = _regs(ops[0])
            self.srcAB = _regs(ops[1]) | _regs(ops[2])
            self.srcC = _regs(ops[3])
            self.src = self.srcAB | self.srcC
            self.passes = 8 if "32x32" in op else 4
        elif op.startswith("v_"):
            self.kind = "valu"
            self.trans = op.startswith(TRANS)
            if op.startswith("v_permlane") and "swap" in op:
                self.dst = _regs(ops[0]) | _regs(ops[1])
                self.src = set(self.dst)
            elif op.startswith("v_nop"):
                pass
            else:
                self.dst = _regs(ops[0])
                rest_ops = ops[1:]
                if "_co_" in op:
                    self.dst |= _regs(ops[1])
                    rest_ops = ops[2:]
                for o in rest_ops:
                    self.src |= _regs(o)
                if op.startswith(("v_fmac", "v_mac", "v_dot2c", "v_pk_fmac")):
                    self.src |= _regs(ops[0])
                if op.startswith("v_cndmask") and len(ops) == 3:
                    self.src |= {"vcc"}
                if op.startswith("v_cmpx"):
                    self.dst |= {"exec"}
        elif op.startswith(("buffer_", "global_")):
            self.kind = "vmem"
            self.lds = (" lds" in (" " + mods)) or "_lds_" in op
            if op.startswith(("buffer_wbl2", "buffer_inv")):
                pass
            elif "store" in op or "atomic" in op:
                for o in ops:
                    self.src |= _regs(o)
                if "x3" in op or "x4" in op:
                    self.wide_store = True
                    self.srcAB = _regs(ops[0] if op.startswith("buffer") else ops[1])
            elif self.lds:
                for o in ops:
                    self.src |= _regs(o)
                self.src |= {"m0"}
            else:
                self.dst = _regs(ops[0])
                for o in ops[1:]:
                    self.src |= _regs(o)
        elif op.startswith("ds_"):
            self.kind = "ds"
            if "read" in op or "permute" in op or "swizzle" in op:
                self.dst = _regs(ops[0])
                for o in ops[1:]:
                    self.src |= _regs(o)
            else:
                for o in ops:
                    self.src |= _regs(o)
        elif op.startswith("s_"):
            self.kind = "salu"
            if op == "s_nop":
                self.nop = int(ops[0], 0) + 1
            elif op.startswith(("s_cmp", "s_cbranch", "s_branch", "s_waitcnt", "s_barrier", "s_endpgm", "s_setprio", "s_sleep", "s_bitcmp")):
                for o in ops:
                    self.src |= _regs(o)
            else:
                if ops:
                    self.dst = _regs(ops[0])
                for o in ops[1:]:
                    self.src |= _regs(o)
        else:
            raise ValueError("unknown instruction " + text)


def need_ws(p, c):
    n = 0
    pv = {r for r in p.dst if r[0] in "va" and r != "vcc"}
    if p.kind == "valu":
        if c.kind == "mfma" and pv & c.src:
            n = max(n, 2)
        if p.trans and c.kind == "valu" and not c.trans and pv & (c.src | c.dst):
            n = max(n, 1)
        if p.trans and c.kind in ("vmem", "ds") and pv & c.src:
            n = max(n, 1)
        ps = {r for r in p.dst if r[0] == "s" or r == "vcc"}
        if ps:
            if c.kind == "vmem" and ps & c.src:
                n = max(n, 5)
            if c.kind == "valu" and ps & c.src:
                n = max(n, 4 if c.op.startswith(("v_readlane", "v_writelane")) else 2)
        if c.kind == "valu" and pv & c.src:
            if c.op.startswith(("v_readfirstlane", "v_readlane")):
                n = max(n, 1)
            if c.op.startswith("v_permlane") or "dpp" in c.text or "quad_perm" in c.text or "row_" in c.text:
                n = max(n, 2)
            if "op_sel" in p.text and not p.op.startswith("v_pk") or "sdwa" in p.op or "dst_sel" in p.text:
                n = max(n, 1)
        if "exec" in p.dst:
            n = max(n, 5)
        if p.op.startswith("v_dot") and pv & (c.src | c.dst):
            same_c = False
            if c.op == p.op:
                ops = [o.strip() for o in c.text.split(";")[0].split(None, 1)[1].split(",")]
                ab = _regs(ops[1]) | _regs(ops[2].split()[0])
                same_c = not (pv & ab)
            if not same_c:
                n = max(n, 3)
    if p.kind == "mfma":
        big = p.passes + 4
        if c.kind in ("valu", "vmem", "ds") and p.dst & (c.src | c.dst):
            n = max(n, big)
        if c.kind == "mfma":
            if p.dst & c.srcAB:
                n = max(n, big)
            if p.dst & c.srcC and p.dst != c.srcC:
                n = max(n, p.passes + 2)
            if p.dst & c.dst and p.dst != c.dst:
                n = max(n, p.passes + 2)
            if p.dst & c.dst and p.dst == c.dst and c.srcC != p.dst:
                n = max(n, p.passes + 2)
        if c.kind == "valu" and p.srcC & c.dst:
            n = max(n, p.passes - 1)
    if p.kind == "salu" and "m0" in p.dst and c.kind == "vmem" and c.lds:
        n = max(n, 1)
    if p.kind == "salu" and "exec" in p.dst and c.kind == "valu" and c.op.startswith("v_permlane"):
        n = max(n, 1)
    if p.kind == "vmem" and p.wide_store and c.kind in ("valu", "mfma", "vmem", "ds") and p.srcAB & c.dst:
        n = max(n, 2)
    return n


WINDOW = 16


def _required(hist, c):
    need = 0
    dist = 0
    for p in reversed(hist):
        if dist >= WINDOW:
            break
        w = need_ws(p, c)
        if w > dist:
            need = max(need, w - dist)
        dist += p.nop
    return need


class Kernel:
    def __init__(self, name, grid, block, lds, vgpr, agpr=0, sgpr=96):
        self.name, self.grid, self.block, self.lds = name, grid, block, lds
        self.vgpr, self.agpr, self.sgpr = vgpr, agpr, sgpr
        self.items = []
        self.paths = {"C": ([], []), "H": ([], [])}
        self.active = ["C", "H"]

    def ctx(self, roles):
        self.active = list(roles)

    def __call__(self, text, vm=None, lg=None):
        for line in text.strip().split("\n"):
            line = line.strip()
            if not line:
                continue
            ins = Ins(line)
            self.items.append(ins)
            if ins.kind == "vmem" and not ins.op.startswith(("buffer_wbl2", "buffer_inv")) and vm != "skip":
                for r in self.active:
                    self.paths[r][0].append(vm)
            if ins.kind == "ds":
                for r in self.active:
                    self.paths[r][1].append(lg)

    def label(self, l):
        self.items.append(("label", f"{self.name}_{l}"))

    def L(self, l):
        return f"{self.name}_{l}"

    def raw(self, t):
        self.items.append(("raw", t))

    def _cnt(self, which, tag):
        best = None
        for r in self.active:
            lst = self.paths[r][which]
            idx = [i for i, t in enumerate(lst) if t == tag]
            if idx:
                n = len(lst) - 1 - max(idx)
                best = n if best is None else min(best, n)
        assert best is not None, f"tag {tag} not found"
        return best

    def wait(self, vm=None, lg=None):
        parts = []
        if vm is not None:
            n = 0 if vm == 0 else self._cnt(0, vm)
            parts.append(f"vmcnt({min(n, 63)})")
        if lg is not None:
            n = 0 if lg == 0 else self._cnt(1, lg)
            parts.append(f"lgkmcnt({min(n, 15)})")
        self("s_waitcnt " + " ".join(parts))

    def finalize(self):
        out = []
        hist = []
        labels = {}
        for it in self.items:
            if isinstance(it, tuple):
                if it[0] == "label":
                    labels[it[1]] = len(out)
                out.append(it)
                continue
            n = _required(hist, it)
            if it.op.startswith(("s_cbranch", "s_branch")):
                tgt = it.text.split()[1]
                if tgt in labels:
                    h2 = hist + [it]
                    seq = [x for x in out[labels[tgt]:] if not isinstance(x, tuple)][:WINDOW]
                    extra = 0
                    for k, c in enumerate(seq):
                        r = _required(h2 + seq[:k], c)
                        extra = max(extra, r)
                    n = max(n, extra)
            while n > 0:
                k = min(n, 8)
                nop = Ins(f"s_nop {k-1}")
                out.append(nop)
                hist.append(nop)
                n -= k
            out.append(it)
            hist.append(it)
            hist = hist[-WINDOW * 2:]
        pos = {it[1]: i for i, it in enumerate(out) if isinstance(it, tuple) and it[0] == "label"}
        for i, it in enumerate(out):
            if isinstance(it, tuple) or not it.op.startswith(("s_cbranch", "s_branch")):
                continue
            tgt = it.text.split()[1]
            if tgt in pos and pos[tgt] > i:
                h = [x for x in out[max(0, i - 40):i + 1] if not isinstance(x, tuple)]
                seq = [x for x in out[pos[tgt]:] if not isinstance(x, tuple)][:WINDOW]
                for k, c in enumerate(seq):
                    r = _required(h + seq[:k], c)
                    if r > 0:
                        raise RuntimeError(f"hazard across forward branch to {tgt}: {c.text}")
        lines = []
        for it in out:
            if isinstance(it, tuple):
                lines.append(it[1] + (":" if it[0] == "label" else ""))
            else:
                lines.append("    " + it.text)
        return lines


def emit_file(path, header, launches, kernels):
    kd = {k.name: k for k in kernels}
    out = list(header)
    for n in launches:
        k = kd[n]
        out.append(f"; @launch kernel={k.name} grid=({k.grid},1,1) block=({k.block},1,1) lds={k.lds}")
    out.append('.amdgcn_target "amdgcn-amd-amdhsa--gfx950"')
    out.append(".text")
    for k in kernels:
        out.append(f".globl {k.name}")
        out.append(".p2align 8")
        out.append(f".type {k.name},@function")
        out.append(f"{k.name}:")
        out += k.finalize()
    out.append('.section .rodata,"a"')
    for k in kernels:
        acc = (k.vgpr + 3) // 4 * 4
        out.append(f""".p2align 6
.amdhsa_kernel {k.name}
  .amdhsa_next_free_vgpr {acc + k.agpr}
  .amdhsa_next_free_sgpr {k.sgpr}
  .amdhsa_accum_offset {acc}
  .amdhsa_group_segment_fixed_size 0
  .amdhsa_kernarg_size 88
  .amdhsa_user_sgpr_count 2
  .amdhsa_user_sgpr_kernarg_segment_ptr 1
  .amdhsa_system_sgpr_workgroup_id_x 1
.end_amdhsa_kernel""")
    open(path, "w").write("\n".join(out) + "\n")
```

```python
import sys, math, struct, os
sys.path.insert(0, "gen")
from asmlib import *

LSTRIDE = 0x2000000
XIN, STI, ST1, FLG = 0x000000, 0x200000, 0x240000, 0x280000
QF, KVL, KVG, OF, X1, HF = 0x400000, 0x600000, 0xA00000, 0xE00000, 0x1000000, 0x1200000
FX, FQ, FKV, FO, F1, FH, CNT = (FLG + o for o in (0, 0x2000, 0x6000, 0x8000, 0xA000, 0xC000, 0xE000))
PROFB = 0x1A00000
WBASE = 0x4000000
WQF, W1F, WOF, W2F = 0x000000, 0x200000, 0x400000, 0x500000
WWSZ = 0x800000
WSZ = WBASE + WWSZ
WQ_CT = 33 * 3072
W1_CT = 33 * 3584
WO_CT = 32 * 2048
W2_CT = 113 * 2048
ONES = "0x3f803f80"
EPS = 1e-5
LOG2E = 1.4426950408889634


def f32(x):
    return "0x%08x" % struct.unpack("<I", struct.pack("<f", x))[0]


def vr(b, n):
    return f"v[{b}:{b+n-1}]"
```

```python
from lay2 import *


def gen_prep():
    k = Kernel("prep_kernel", 256, 256, 1024, vgpr=96)
    k(f"""
    s_cmp_ge_u32 s2, 256
    s_cbranch_scc1 {k.L('end')}
    s_load_dwordx16 s[32:47], s[0:1], 0
    s_load_dwordx2 s[8:9], s[0:1], 80
    v_lshrrev_b32 v1, 6, v0
    v_and_b32 v0, 63, v0
    v_readfirstlane_b32 s24, v1
    v_lshrrev_b32 v2, 5, v0
    v_and_b32 v3, 31, v0
    s_mov_b32 s10, {WSZ:#x}
    s_mov_b32 s11, 0x00020000
    s_mov_b32 s7, 0x00020000
    s_mov_b32 s15, 0x00020000
    s_mov_b32 s14, 0
    s_mov_b32 s22, 0
    s_lshl_b32 s18, s24, 3
    v_mov_b32 v5, {ONES}
    s_waitcnt lgkmcnt(0)
    s_mov_b32 s12, s42
    s_mov_b32 s13, s43
    s_cmp_ge_u32 s2, 248
    s_cbranch_scc1 {k.L('fl')}
    s_cmp_ge_u32 s2, 184
    s_cbranch_scc1 {k.L('x')}
    s_cmp_ge_u32 s2, 120
    s_cbranch_scc1 {k.L('w2')}
    s_cmp_ge_u32 s2, 104
    s_cbranch_scc1 {k.L('wo')}
    s_cmp_ge_u32 s2, 48
    s_cbranch_scc1 {k.L('w1')}
    """)
    k(f"""
    s_mov_b32 s4, s34
    s_mov_b32 s5, s35
    s_mov_b32 s6, {512*1536*2}
    s_mov_b32 s16, 3072
    s_lshr_b32 s25, s2, 4
    s_and_b32 s26, s2, 15
    s_lshl_b32 s25, s25, 10
    s_lshl_b32 s17, s26, 6
    s_add_u32 s17, s17, s25
    s_mul_i32 s19, s26, {WQ_CT}
    s_add_u32 s19, s19, s25
    s_add_u32 s19, s19, {WBASE+WQF:#x}
    s_add_u32 s20, s19, 512
    s_mov_b32 s21, 3072
    s_mov_b32 s22, 1
    s_branch {k.L('w')}
    """)
    k.label("w1")
    k(f"""
    s_mov_b32 s4, s40
    s_mov_b32 s5, s41
    s_mov_b32 s6, {512*1792*2}
    s_mov_b32 s16, 3584
    s_sub_u32 s25, s2, 48
    s_lshl_b32 s17, s25, 6
    s_lshl_b32 s25, s25, 1
    s_mul_i32 s26, s25, 147
    s_lshr_b32 s26, s26, 10
    s_mul_i32 s19, s26, {W1_CT - 7*512}
    s_lshl_b32 s27, s25, 9
    s_add_u32 s19, s19, s27
    s_add_u32 s19, s19, {WBASE+W1F:#x}
    s_add_u32 s25, s25, 1
    s_mul_i32 s26, s25, 147
    s_lshr_b32 s26, s26, 10
    s_mul_i32 s20, s26, {W1_CT - 7*512}
    s_lshl_b32 s27, s25, 9
    s_add_u32 s20, s20, s27
    s_add_u32 s20, s20, {WBASE+W1F:#x}
    s_mov_b32 s21, 3584
    s_mov_b32 s22, 1
    s_mov_b32 s14, 3584
    s_branch {k.L('w')}
    """)
    k.label("wo")
    k(f"""
    s_mov_b32 s4, s36
    s_mov_b32 s5, s37
    s_mov_b32 s6, {512*512*2}
    s_mov_b32 s16, 1024
    s_sub_u32 s25, s2, 104
    s_lshl_b32 s17, s25, 6
    s_lshr_b32 s26, s25, 1
    s_mul_i32 s19, s26, {WO_CT}
    s_and_b32 s25, s25, 1
    s_lshl_b32 s25, s25, 10
    s_add_u32 s19, s19, s25
    s_add_u32 s19, s19, {WBASE+WOF:#x}
    s_add_u32 s20, s19, 512
    s_mov_b32 s21, 2048
    s_branch {k.L('w')}
    """)
    k.label("w2")
    k(f"""
    s_mov_b32 s4, s44
    s_mov_b32 s5, s45
    s_mov_b32 s6, {1792*512*2}
    s_mov_b32 s16, 1024
    s_sub_u32 s25, s2, 120
    s_lshr_b32 s27, s25, 4
    s_and_b32 s25, s25, 15
    s_mul_i32 s27, s27, 28
    s_mul_i32 s18, s24, 7
    s_add_u32 s18, s18, s27
    s_lshl_b32 s17, s25, 6
    s_lshr_b32 s26, s25, 1
    s_mul_i32 s19, s26, {W2_CT}
    s_and_b32 s25, s25, 1
    s_lshl_b32 s25, s25, 10
    s_add_u32 s19, s19, s25
    s_add_u32 s19, s19, {WBASE+W2F:#x}
    s_add_u32 s20, s19, 512
    s_mov_b32 s21, 2048
    """)
    k.label("w")
    k(f"""
    s_lshl_b32 s25, s16, 2
    v_mul_u32_u24 v4, s25, v2
    v_lshl_add_u32 v6, v3, 1, s17
    v_add_u32 v4, v4, v6
    v_lshl_add_u32 v6, v2, 16, v6
    s_lshl_b32 s27, s16, 4
    s_mul_i32 s26, s18, s27
    buffer_load_ushort v7, v6, s[12:15], 0 offen
    """)
    rows = [0, 1, 2, 3, 8, 9, 10, 11]
    for j, r in enumerate(rows):
        k(f"s_mul_i32 s25, s16, {r}")
        k(f"v_add_u32 v{8+j}, s25, v4")
    for i in range(8):
        for j in range(8):
            k(f"buffer_load_ushort v{16+i*8+j}, v{8+j}, s[4:7], s26 offen", vm=("w", i))
        k("s_add_u32 s26, s26, s27")
    k(f"""
    v_and_b32 v4, 15, v3
    v_lshlrev_b32 v4, 4, v4
    v_lshl_add_u32 v4, v2, 8, v4
    v_mov_b32 v8, s19
    v_mov_b32 v9, s20
    v_cmp_lt_u32 vcc, 15, v3
    v_cndmask_b32 v8, v8, v9
    v_add_u32 v4, v4, v8
    s_mul_i32 s26, s18, s21
    v_mov_b32 v80, 0
    v_mov_b32 v81, 0
    """)
    for i in range(8):
        b = 16 + i * 8
        k.wait(vm=("w", i))
        for d in range(4):
            k(f"v_lshl_or_b32 v{b+d}, v{b+2*d+1}, 16, v{b+2*d}")
        k(f"buffer_store_dwordx4 {vr(b,4)}, v4, s[8:11], s26 offen")
        k("s_add_u32 s26, s26, s21")
        for d in range(4):
            k(f"v_dot2_f32_bf16 v{80+(d&1)}, v{b+d}, v5, v{80+(d&1)}")
    k(f"""
    s_cmp_eq_u32 s22, 0
    s_cbranch_scc1 {k.L('end')}
    v_add_f32 v80, v80, v81
    v_lshlrev_b32 v8, 2, v0
    v_lshl_add_u32 v9, v1, 8, v8
    ds_write_b32 v9, v80
    s_waitcnt lgkmcnt(0)
    s_barrier
    s_cmp_lg_u32 s24, 0
    s_cbranch_scc1 {k.L('end')}
    ds_read_b32 v10, v8
    ds_read_b32 v11, v8 offset:256
    ds_read_b32 v12, v8 offset:512
    ds_read_b32 v13, v8 offset:768
    s_lshl_b32 s26, s21, 5
    s_waitcnt lgkmcnt(0)
    v_add_f32 v10, v10, v11
    v_add_f32 v12, v12, v13
    v_add_f32 v10, v10, v12
    v_cvt_pk_bf16_f32 v84, v10, v10
    v_and_b32 v11, 0xffff0000, v84
    v_sub_f32 v11, v10, v11
    v_cvt_pk_bf16_f32 v11, v11, v11
    v_and_b32 v11, 0xffff, v11
    v_lshl_or_b32 v85, v7, 16, v11
    v_mov_b32 v86, v7
    v_mov_b32 v87, 0
    buffer_store_dwordx4 v[84:87], v4, s[8:11], s26 offen
    s_endpgm
    """)
    k.label("x")
    k(f"""
    s_mov_b32 s4, s32
    s_mov_b32 s5, s33
    s_mov_b32 s6, {2048*512*2}
    s_sub_u32 s25, s2, 184
    s_lshl_b32 s26, s25, 15
    s_lshl_b32 s27, s24, 8
    s_add_u32 s27, s27, s26
    v_lshlrev_b32 v4, 10, v3
    v_lshl_add_u32 v4, v2, 3, v4
    v_lshlrev_b32 v6, 4, v0
    """)
    for i in range(8):
        k(f"buffer_load_dwordx2 {vr(16+i*4,2)}, v4, s[4:7], s27 offen offset:{i*32}", vm=("x", i))
        k(f"buffer_load_dwordx2 {vr(18+i*4,2)}, v4, s[4:7], s27 offen offset:{i*32+16}", vm=("x", i))
    k(f"""
    s_lshl_b32 s28, s24, 13
    s_add_u32 s28, s28, s26
    s_add_u32 s28, s28, {XIN:#x}
    s_add_u32 s29, s28, 4096
    s_lshl_b32 s30, s25, 12
    s_lshl_b32 s31, s24, 10
    s_add_u32 s30, s30, s31
    s_add_u32 s30, s30, {STI:#x}
    v_lshlrev_b32 v7, 4, v3
    v_lshl_add_u32 v7, v2, 2, v7
    """)
    for p in range(4):
        k.wait(vm=("x", 2 * p + 1))
        for i in (2 * p, 2 * p + 1):
            k(f"buffer_store_dwordx4 {vr(16+i*4,4)}, v6, s[8:11], s{28+(i>>2)} offen offset:{(i&3)*1024}")
        a, b = 48 + 2 * p, 49 + 2 * p
        for d in range(8):
            r = 16 + p * 8 + d
            k(f"v_dot2_f32_bf16 v{a}, v{r}, v5, {'0' if d==0 else f'v{a}'}")
            k(f"v_dot2_f32_bf16 v{b}, v{r}, v{r}, {'0' if d==0 else f'v{b}'}")
        k(f"v_permlane32_swap_b32 v{a}, v{b}")
        k(f"v_add_f32 v{a}, v{a}, v{b}")
        k(f"buffer_store_dword v{a}, v7, s[8:11], s30 offen offset:{(p>>1)*512+(p&1)*8}")
    k("s_endpgm")
    k.label("fl")
    k(f"""
    s_sub_u32 s25, s2, 248
    s_lshr_b32 s26, s25, 2
    s_mul_i32 s26, s26, {LSTRIDE:#x}
    s_and_b32 s27, s25, 3
    s_lshl_b32 s27, s27, 14
    s_add_u32 s26, s26, s27
    s_lshl_b32 s27, s24, 12
    s_add_u32 s26, s26, s27
    s_add_u32 s26, s26, {FLG:#x}
    s_lshl_b32 s27, s25, 2
    s_add_u32 s27, s27, s24
    s_cmp_lt_u32 s27, 2
    s_cselect_b32 s27, 1, 0
    v_mov_b32 v8, s27
    v_mov_b32 v9, s27
    v_mov_b32 v10, s27
    v_mov_b32 v11, s27
    v_lshlrev_b32 v6, 4, v0
    """)
    for j in range(4):
        k(f"buffer_store_dwordx4 v[8:11], v6, s[8:11], s26 offen offset:{j*1024}")
    k.label("end")
    k("s_endpgm")
    return k


def stats_math(k, sreg, aug, rs, tmp, kind):
    s, t = sreg, tmp
    for i in (0, 1):
        k(f"v_add_f32 v{s+i}, v{s+i}, v{s+2+i}")
        k(f"v_add_f32 v{s+4+i}, v{s+4+i}, v{s+6+i}")
        k(f"v_add_f32 v{s+8+i}, v{s+8+i}, v{s+10+i}")
        k(f"v_add_f32 v{s+12+i}, v{s+12+i}, v{s+14+i}")
    for i in (0, 1):
        k(f"v_add_f32 v{s+i}, v{s+i}, v{s+4+i}")
        k(f"v_add_f32 v{s+8+i}, v{s+8+i}, v{s+12+i}")
    for i in (0, 1):
        k(f"v_add_f32 v{s+i}, v{s+i}, v{s+8+i}")
    k(f"""
    v_mov_b32 v{s+2}, v{s}
    v_mov_b32 v{s+3}, v{s+1}
    v_permlane32_swap_b32 v{s}, v{s+2}
    v_permlane32_swap_b32 v{s+1}, v{s+3}
    v_add_f32 v{s}, v{s}, v{s+2}
    v_add_f32 v{s+1}, v{s+1}, v{s+3}
    v_mul_f32 v{s}, {f32(-1.0/512)}, v{s}
    v_mul_f32 v{s+1}, {f32(1.0/512)}, v{s+1}
    v_fma_f32 v{s+1}, -v{s}, v{s}, v{s+1}
    v_max_f32 v{s+1}, 0, v{s+1}
    """)
    if kind == "qkv":
        k(f"v_add_f32 v{s+1}, {f32(EPS)}, v{s+1}")
    else:
        k(f"v_mov_b32 v{s+2}, {f32(EPS*EPS)}")
        k(f"v_fmamk_f32 v{s+1}, v{s+1}, {f32(1+EPS)}, v{s+2}")
    k(f"""
    v_rsq_f32 v{rs}, v{s+1}
    v_cvt_pk_bf16_f32 v{s+4}, v{s}, v{s}
    v_and_b32 v{s+5}, 0xffff0000, v{s+4}
    v_sub_f32 v{s+5}, v{s}, v{s+5}
    v_cvt_pk_bf16_f32 v{aug}, v{s}, v{s+5}
    """)
    if kind == "qkv":
        k(f"v_and_b32 v{aug+1}, 0xffff, v{s+4}")
        k(f"v_mov_b32 v{aug+2}, 0")
    else:
        k(f"""
        v_mul_f32 v{s+6}, v{s+1}, v{rs}
        v_cvt_pk_bf16_f32 v{aug+1}, v{s}, v{s+6}
        v_and_b32 v{s+7}, 0xffff0000, v{aug+1}
        v_sub_f32 v{s+7}, v{s+6}, v{s+7}
        v_cvt_pk_bf16_f32 v{aug+2}, v{s+7}, 0
        """)
    k(f"v_mov_b32 v{aug+3}, 0")
```

```python
from lay2 import *
from prep2 import gen_prep, stats_math

PROF = int(os.environ.get("PROF", "0"))
FORCE_SAFE = int(os.environ.get("SAFE", "0"))
LIMIT = 20000
L_HAND, L_RST, L_MODE = 114688, 112640, 113664
L_P0, L_ONES, L_CMB, L_OB, L_X, L_Y = 131072, 159744, 131072, 98304, 114688, 65536
MF = "v_mfma_f32_32x32x16_bf16"
STAMPS = []
PF0 = 8


class MK(Kernel):
    def __init__(self, *a, **kw):
        super().__init__(*a, **kw)
        self.deferred = []
        self.uid = 0

    def u(self, p):
        self.uid += 1
        return f"{p}{self.uid}"

    def stamp(self, name):
        if not PROF:
            return
        if name not in STAMPS:
            STAMPS.append(name)
        i = STAMPS.index(name)
        self(f"s_memrealtime s[62:63]\ns_waitcnt lgkmcnt(0)\nv_writelane_b32 v7, s62, {i}")

    def stamp_flush(self, tmp):
        if not PROF:
            return
        self(f"""
        s_lshl_b32 s60, s12, 5
        s_add_u32 s60, s60, s13
        s_lshl_b32 s60, s60, 3
        s_add_u32 s60, s60, s3
        s_lshl_b32 s60, s60, 8
        s_add_u32 s60, s60, {PROFB:#x}
        v_lshlrev_b32 v{tmp}, 2, v0
        buffer_store_dword v7, v{tmp}, s[8:11], s60 offen
        """)

    def poll(self, vaddr, soff, tmp, acquire=True):
        l = self.u("poll")
        self("s_mov_b32 s35, 0")
        self.label(l)
        self(f"""
        buffer_load_dword v{tmp}, v{vaddr}, s[8:11], {soff} offen sc1
        s_add_u32 s35, s35, 1
        s_cmp_gt_u32 s35, {LIMIT}
        s_cbranch_scc1 {self.L('end')}
        s_waitcnt vmcnt(0)
        v_cmp_ne_u32 vcc, 1, v{tmp}
        s_cbranch_vccnz {self.L(l)}
        """)
        if acquire:
            self(f"s_cmp_lg_u32 s15, 0\ns_cbranch_scc1 {self.L(l+'a')}")
            self.label(l + "b")

            def d():
                self.label(l + "a")
                self(f"buffer_inv sc1\ns_waitcnt vmcnt(0)\ns_branch {self.L(l+'b')}")
            self.deferred.append(d)

    def signal(self, soff, tmp, glob=False):
        l = self.u("sig")
        self(f"v_mov_b32 v{tmp}, 1")
        self("s_mov_b64 exec, 1")
        if glob:
            self("s_waitcnt vmcnt(0)")
            self(f"buffer_store_dword v{tmp}, off, s[8:11], {soff} sc1")
        else:
            self(f"s_cmp_lg_u32 s15, 0\ns_waitcnt vmcnt(0)\ns_cbranch_scc1 {self.L(l+'a')}")
            self(f"buffer_store_dword v{tmp}, off, s[8:11], {soff}")
            self.label(l + "b")

            def d():
                self.label(l + "a")
                self(f"buffer_wbl2 sc1\ns_waitcnt vmcnt(0)")
                self(f"buffer_store_dword v{tmp}, off, s[8:11], {soff} sc1", vm="skip")
                self(f"s_branch {self.L(l+'b')}")
            self.deferred.append(d)
        self("s_mov_b64 exec, -1")

    def dma_lin(self, vaddr, srd, n, vm=None):
        for j in range(n):
            if j and j % 4 == 0:
                self("s_add_u32 m0, m0, 4096")
            self(f"buffer_load_dwordx4 v{vaddr}, {srd}, m0 offen offset:{(j%4)*1024} lds", vm=vm)


def gemm_stream(k, ops, WS, fill, budget, ahead=6, areg=None):
    n = len(ops)
    issued = [0]

    def rd_upto(m):
        while issued[0] <= min(m, n - 1):
            j = issued[0]
            off, a = ops[j]["off"], "v2"
            if areg:
                a = areg
            elif off >= 65536:
                off, a = off - 65536, "v3"
            k(f"ds_read_b128 {vr(WS+4*(j%8),4)}, {a} offset:{off}", lg=("w", j))
            issued[0] += 1
    fi = 0
    for j, o in enumerate(ops):
        if o.get("pre"):
            o["pre"]()
        rd_upto(j + ahead)
        k.wait(vm=o.get("vm"), lg=("w", j))
        k(o["mf"](WS + 4 * (j % 8)))
        if o.get("post"):
            o["post"]()
        b = budget
        while fi < len(fill) and fill[fi][2] <= j and b > 0:
            f = fill[fi]
            if callable(f[0]):
                f[0]()
            else:
                k(f[0], **(f[3] if len(f) > 3 else {}))
            b -= f[1]
            fi += 1
    return fill[fi:]


def flush_fill(k, fill):
    for f in fill:
        if callable(f[0]):
            f[0]()
        else:
            k(f[0], **(f[3] if len(f) > 3 else {}))


def load_x(k, xoff, stoff, flags, SR, A, name):
    k(f"""
    s_lshl_b32 s36, s18, 7
    s_add_u32 s36, s36, {flags:#x}
    v_and_b32 v8, 15, v0
    v_lshlrev_b32 v8, 2, v8
    s_lshl_b32 s37, s18, 12
    s_add_u32 s37, s37, {stoff:#x}
    s_lshl_b32 s38, s18, 15
    s_add_u32 s38, s38, {xoff:#x}
    """)
    k.poll(8, "s36", 9)
    k.stamp(name)
    for q in range(4):
        k(f"buffer_load_dwordx4 {vr(SR+4*q,4)}, v4, s[8:11], s37 offen offset:{q*512} sc1", vm="st")

    def lda(s):
        if s >= 32:
            return
        k(f"buffer_load_dwordx4 {vr(A+4*s,4)}, v1, s[8:11], s38 offen offset:{(s&3)*1024} sc1", vm=("a", s))
        if s & 3 == 3:
            k("s_add_u32 s38, s38, 4096")
    return lda


def tile_epilogue(k, ACC, xbase, stbase, flbase, T):
    k(f"s_add_u32 s36, s22, {xbase:#x}")
    k(f"s_add_u32 s37, s23, {stbase:#x}")
    k(f"s_add_u32 s38, s32, {flbase:#x}")
    for h in range(2):
        for r in range(4):
            k(f"v_cvt_pk_bf16_f32 v{ACC+8*h+r}, v{ACC+8*h+2*r}, v{ACC+8*h+2*r+1}")
        k(f"buffer_store_dwordx4 {vr(ACC+8*h,4)}, v1, s[8:11], s36 offen offset:{h*1024}")
    for i, r in enumerate([0, 1, 2, 3, 8, 9, 10, 11]):
        k(f"v_dot2_f32_bf16 v{T}, v{ACC+r}, v6, {'0' if i==0 else f'v{T}'}")
        k(f"v_dot2_f32_bf16 v{T+1}, v{ACC+r}, v{ACC+r}, {'0' if i==0 else f'v{T+1}'}")
    k(f"""
    v_permlane32_swap_b32 v{T}, v{T+1}
    v_add_f32 v{T}, v{T}, v{T+1}
    buffer_store_dword v{T}, v5, s[8:11], s37 offen
    """)
    k.signal("s38", T + 2)


def unpack(k, ACC, src, T=None, add=False):
    for r in range(8):
        if not add:
            k(f"v_lshlrev_b32 v{ACC+2*r}, 16, v{src+r}")
            k(f"v_and_b32 v{ACC+2*r+1}, 0xffff0000, v{src+r}")
        else:
            k(f"v_lshlrev_b32 v{T}, 16, v{src+r}")
            k(f"v_and_b32 v{T+1}, 0xffff0000, v{src+r}")
            k(f"v_add_f32 v{ACC+2*r}, v{ACC+2*r}, v{T}")
            k(f"v_add_f32 v{ACC+2*r+1}, v{ACC+2*r+1}, v{T+1}")


def wq_dma(k, part, tmp):
    k(f"s_mul_i32 s36, s19, {WQ_CT}")
    k(f"s_add_u32 s36, s36, {WQF:#x}")
    k(f"v_add_u32 v{tmp}, s36, v1")
    if part == 0:
        k("s_lshl_b32 m0, s16, 14")
        k.dma_lin(tmp, "s[4:7]", 16)
    else:
        k("s_mul_i32 s36, s16, 9216")
        k("s_add_u32 m0, s36, 65536")
        k.dma_lin(tmp, "s[4:7]", 9)


def kv_offsets(k, base):
    k(f"""
    s_lshl_b32 s40, s19, 18
    s_lshr_b32 s41, s18, 2
    s_lshl_b32 s41, s41, 13
    s_add_u32 s40, s40, s41
    s_lshl_b32 s41, s16, 10
    s_add_u32 s40, s40, s41
    s_add_u32 s40, s40, {base:#x}
    s_add_u32 s41, s40, 0x20000
    s_add_u32 s42, s40, 4096
    v_and_b32 v30, 0x1ff, v2
    v_bfe_u32 v31, v0, 4, 1
    v_lshl_add_u32 v30, v31, 17, v30
    """)


def prologue(k):
    k(f"""
    s_cmp_ge_u32 s2, 256
    s_cbranch_scc1 {k.L('end')}
    s_load_dwordx2 s[8:9], s[0:1], 80
    s_load_dwordx4 s[24:27], s[0:1], 56
    s_getreg_b32 s12, hwreg(HW_REG_XCC_ID)
    s_and_b32 s12, s12, 7
    v_lshrrev_b32 v1, 6, v0
    v_and_b32 v0, 63, v0
    v_readfirstlane_b32 s3, v1
    s_mov_b32 s10, {2*LSTRIDE:#x}
    s_mov_b32 s11, 0x00020000
    s_mov_b32 s6, {WWSZ:#x}
    s_mov_b32 s7, 0x00020000
    s_mov_b32 s14, 0
    s_mov_b32 s15, 0
    s_and_b32 s16, s3, 3
    s_lshr_b32 s17, s3, 2
    v_mov_b32 v7, 0
    v_mov_b32 v8, 0
    s_lshl_b32 s36, s12, 7
    s_add_u32 s36, s36, {CNT:#x}
    s_waitcnt lgkmcnt(0)
    """)
    k.stamp("start")
    k(f"""
    s_cmp_lg_u32 s3, 0
    s_cbranch_scc1 {k.L('noat')}
    v_mov_b32 v9, 1
    s_mov_b64 exec, 1
    buffer_atomic_add v9, off, s[8:11], s36 sc0 sc1
    s_waitcnt vmcnt(0)
    ds_write_b32 v8, v9
    s_mov_b64 exec, -1
    s_waitcnt lgkmcnt(0)
    """)
    k.label("noat")
    k(f"""
    s_add_u32 s4, s8, {WBASE:#x}
    s_addc_u32 s5, s9, 0
    s_mov_b32 s28, s26
    s_mov_b32 s29, s27
    s_mov_b32 s30, {2048*1024}
    s_mov_b32 s31, 0x00020000
    s_mov_b32 s26, 1024
    s_mov_b32 s27, 0x00020000
    v_lshlrev_b32 v1, 4, v0
    v_lshrrev_b32 v10, 5, v0
    v_and_b32 v11, 31, v0
    v_and_b32 v2, 15, v0
    v_lshlrev_b32 v2, 4, v2
    v_lshl_add_u32 v2, v10, 8, v2
    v_bfe_u32 v3, v0, 4, 1
    v_lshl_add_u32 v2, v3, 9, v2
    v_add_u32 v3, 0x10000, v2
    v_lshlrev_b32 v5, 4, v11
    v_lshl_add_u32 v4, v10, 11, v5
    v_lshl_add_u32 v5, v10, 2, v5
    v_mov_b32 v6, {ONES}
    s_barrier
    ds_read_b32 v9, v8
    s_waitcnt lgkmcnt(0)
    v_readfirstlane_b32 s13, v9
    s_cmp_ge_u32 s13, 32
    s_cbranch_scc1 {k.L('ovf')}
    """)
    k.label("role")
    k(f"""
    s_barrier
    s_lshl_b32 s36, s12, 3
    s_and_b32 s37, s13, 1
    s_lshl_b32 s37, s37, 2
    s_add_u32 s18, s36, s37
    s_add_u32 s18, s18, s16
    s_lshr_b32 s19, s13, 1
    s_and_b32 s37, s13, 3
    s_lshl_b32 s37, s37, 1
    s_add_u32 s20, s36, s37
    s_lshr_b32 s21, s13, 2
    s_lshr_b32 s36, s16, 1
    s_add_u32 s36, s36, s20
    s_and_b32 s37, s16, 1
    s_lshl_b32 s38, s21, 1
    s_add_u32 s38, s38, s37
    s_lshl_b32 s22, s36, 15
    s_lshl_b32 s39, s38, 11
    s_add_u32 s22, s22, s39
    s_lshl_b32 s23, s36, 12
    s_lshl_b32 s39, s21, 9
    s_add_u32 s23, s23, s39
    s_lshl_b32 s39, s37, 3
    s_add_u32 s23, s23, s39
    s_lshl_b32 s32, s36, 7
    s_lshl_b32 s39, s38, 2
    s_add_u32 s32, s32, s39
    """)
    k.stamp("role")

    def cnt_poll():
        l = k.u("cp")
        k(f"""
        v_and_b32 v8, 7, v0
        v_lshlrev_b32 v8, 7, v8
        s_mov_b32 s36, {CNT:#x}
        s_mov_b32 s35, 0
        """)
        k.label(l)
        k(f"""
        buffer_load_dword v9, v8, s[8:11], s36 offen sc1
        s_add_u32 s35, s35, 1
        s_cmp_gt_u32 s35, {LIMIT}
        s_cbranch_scc1 {k.L('end')}
        s_waitcnt vmcnt(0)
        v_readlane_b32 s37, v9, 0
        """, vm="skip")
        for i in range(1, 8):
            k(f"v_readlane_b32 s38, v9, {i}\ns_add_u32 s37, s37, s38")
        k(f"s_cmp_lt_u32 s37, 256\ns_cbranch_scc1 {k.L(l)}")

    def ovf():
        k.label("ovf")
        cnt_poll()
        k("s_sub_u32 s39, s13, 32")
        for x in range(8):
            k(f"""
            v_readlane_b32 s37, v9, {x}
            s_max_u32 s37, s37, 32
            s_sub_u32 s37, s37, 32
            s_cmp_gt_u32 s12, {x}
            s_cselect_b32 s37, s37, 0
            s_add_u32 s39, s39, s37
            """)
        for x in range(8):
            k(f"""
            v_readlane_b32 s37, v9, {x}
            s_min_u32 s37, s37, 32
            s_add_u32 s13, s37, s39
            s_mov_b32 s12, {x}
            s_cmp_lt_u32 s13, 32
            s_cbranch_scc1 {k.L('role')}
            s_sub_u32 s39, s13, 32
            """)
        k(f"s_branch {k.L('end')}")
    k.deferred.append(ovf)
    k(f"s_cmp_eq_u32 s17, 0\ns_cbranch_scc1 {k.L('qkv_c')}")
    k.ctx(["H"])
    wq_dma(k, 0, 10)
    wq_dma(k, 1, 10)
    cnt_poll()
    k(f"""
    v_cmp_ne_u32 vcc, 32, v9
    s_cmp_lg_u64 vcc, 0
    s_cselect_b32 s15, 1, {FORCE_SAFE}
    """)


def phase_qkv_h(k):
    k.label("qkv_h")
    k(f"""
    v_mov_b32 v8, {L_MODE}
    v_mov_b32 v9, s15
    ds_write_b32 v8, v9
    s_waitcnt lgkmcnt(0)
    s_barrier
    """)
    k(f"""
    v_mov_b32 v8, v6
    v_mov_b32 v9, v6
    v_mov_b32 v10, v6
    v_mov_b32 v11, v6
    s_lshl_b32 s36, s16, 10
    s_add_u32 s36, s36, {L_ONES}
    v_add_u32 v12, s36, v1
    ds_write_b128 v12, v[8:11]
    s_lshl_b32 s36, s16, 12
    s_add_u32 s36, s36, {L_HAND}
    v_add_u32 v12, s36, v1
    """)
    kv_offsets(k, KVG)
    k(f"""
    s_lshl_b32 s43, s19, 2
    s_add_u32 s43, s43, s16
    s_lshl_b32 s43, s43, 7
    s_lshr_b32 s36, s18, 2
    s_lshl_b32 s36, s36, 2
    s_add_u32 s43, s43, s36
    s_add_u32 s43, s43, {FKV:#x}
    s_barrier
    """)
    k.stamp("kvh")
    for j in range(4):
        k(f"ds_read_b128 {vr(32+4*j,4)}, v12 offset:{j*1024}", lg=("h", j))
    for j in range(4):
        k.wait(lg=("h", j))
        if j < 2:
            k(f"buffer_store_dwordx4 {vr(32+4*j,4)}, v1, s[8:11], s{40+j} offen sc1")
        else:
            k(f"buffer_store_dwordx4 {vr(32+4*j,4)}, v30, s[8:11], s42 offen offset:{(j-2)*512} sc1")
    k.signal("s43", 8, glob=True)
    k.stamp("kvsig")


def phase_qkv_c(k):
    SR, AUG, RS, WS, AK, AV, AQ, RT, A = 8, 24, 28, 32, 64, 80, 96, 112, 128
    k.label("qkv_c")
    lda = load_x(k, XIN, STI, FX, SR, A, "q_flag")
    PD = 12
    for s in range(PD):
        lda(s)
    k(f"s_barrier")
    k(f"v_mov_b32 v29, {L_MODE}\nds_read_b32 v29, v29")
    kv_offsets(k, KVL)
    k(f"""
    s_lshl_b32 s44, s19, 17
    s_lshl_b32 s45, s18, 10
    s_add_u32 s44, s44, s45
    s_add_u32 s44, s44, {QF:#x}
    s_add_u32 s45, s44, 0x10000
    s_lshl_b32 s43, s12, 4
    s_add_u32 s43, s43, s19
    s_lshl_b32 s43, s43, 7
    s_and_b32 s36, s18, 7
    s_lshl_b32 s36, s36, 2
    s_add_u32 s43, s43, s36
    s_add_u32 s43, s43, {FQ:#x}
    s_waitcnt lgkmcnt(0)
    v_readfirstlane_b32 s15, v29
    """)
    k.wait(vm="st")
    k.stamp("q_st")
    stats_math(k, SR, AUG, RS, 29, "qkv")
    k(f"""
    s_lshl_b32 s36, s16, 7
    s_add_u32 s36, s36, {L_RST}
    v_and_b32 v8, 31, v0
    v_lshl_add_u32 v8, v8, 2, s36
    ds_write_b32 v8, v{RS}
    v_lshrrev_b32 v8, 5, v0
    v_lshl_add_u32 v8, v8, 4, s36
    v_mul_f32 v29, {f32(0.25*LOG2E)}, v{RS}
    s_lshl_b32 s36, s16, 12
    s_add_u32 s36, s36, {L_HAND}
    v_add_u32 v31, s36, v1
    """)
    for q in range(4):
        k(f"ds_read_b128 {vr(RT+4*q,4)}, v8 offset:{q*32}")
    ops = []
    for s in range(33):
        b = vr(A + 4 * s, 4) if s < 32 else vr(AUG, 4)
        ck, cv = ("0", "0") if s == 0 else (vr(AK, 16), vr(AV, 16))
        ops.append(dict(off=s * 3072 + 1024, vm=("a", s) if s < 32 else None,
                        mf=lambda w, b=b, c=ck: f"{MF} {vr(AK,16)}, {vr(w,4)}, {b}, {c}",
                        post=lambda s=s: lda(s + PD)))
        ops.append(dict(off=s * 3072 + 2048, mf=lambda w, b=b, c=cv: f"{MF} {vr(AV,16)}, {b}, {vr(w,4)}, {c}"))
    for s in range(33):
        b = vr(A + 4 * s, 4) if s < 32 else vr(AUG, 4)
        c = "0" if s == 0 else vr(AQ, 16)
        ops.append(dict(off=s * 3072, mf=lambda w, b=b, c=c: f"{MF} {vr(AQ,16)}, {vr(w,4)}, {b}, {c}"))
    fill = []
    R0 = 67
    for h in range(2):
        a = AK + 8 * h
        fill += [(f"v_mul_f32 v{a+r}, v{RS}, v{a+r}", 4, R0) for r in range(8)]
        fill += [(f"v_cvt_pk_bf16_f32 v{a+r}, v{a+2*r}, v{a+2*r+1}", 4, R0) for r in range(4)]
        fill += [(f"ds_write_b128 v31, {vr(a,4)} offset:{h*1024}", 4, R0, dict(lg="hw"))]
        fill += [(f"buffer_store_dwordx4 {vr(a,4)}, v1, s[8:11], s{40+h} offen", 4, R0)]
    for h in range(2):
        a = AV + 8 * h
        fill += [(f"v_mul_f32 v{a+r}, v{RT+8*h+r}, v{a+r}", 4, R0) for r in range(8)]
        fill += [(f"v_cvt_pk_bf16_f32 v{a+r}, v{a+2*r}, v{a+2*r+1}", 4, R0) for r in range(4)]
        fill += [(f"ds_write_b128 v31, {vr(a,4)} offset:{2048+h*1024}", 4, R0, dict(lg="hw"))]
        fill += [(f"buffer_store_dwordx4 {vr(a,4)}, v30, s[8:11], s42 offen offset:{h*512}", 4, R0)]

    def bkv():
        k.wait(lg="hw")
        k("s_barrier")
    fill += [("s_nop 0", 100, R0), ("s_nop 0", 100, R0), (bkv, 4, R0)]
    rest = gemm_stream(k, ops, WS, fill, 20)
    assert not rest
    k.stamp("q_mf")
    for h in range(2):
        a = AQ + 8 * h
        for r in range(8):
            k(f"v_mul_f32 v{a+r}, v29, v{a+r}")
        for r in range(4):
            k(f"v_cvt_pk_bf16_f32 v{a+r}, v{a+2*r}, v{a+2*r+1}")
        k(f"buffer_store_dwordx4 {vr(a,4)}, v1, s[8:11], s{44+h} offen")
    k.signal("s43", 8)
    k.stamp("q_sig")


def phase_att(k):
    Q, KR, VR, P, S, O = 12, 20, 28, 44, 60, 92
    k.label("att")
    k.ctx(["C", "H"])
    k(f"""
    s_lshl_b32 s36, s12, 4
    s_add_u32 s36, s36, s19
    s_lshl_b32 s36, s36, 7
    s_add_u32 s36, s36, {FQ:#x}
    v_and_b32 v8, 7, v0
    v_lshlrev_b32 v8, 2, v8
    s_lshl_b32 s38, s12, 3
    s_lshl_b32 s39, s16, 1
    s_add_u32 s38, s38, s39
    s_add_u32 s33, s38, s17
    s_lshl_b32 s37, s13, 16
    s_add_u32 s37, s37, {QF:#x}
    s_lshl_b32 s38, s33, 10
    s_add_u32 s37, s37, s38
    s_xor_b32 s38, s37, 1024
    s_lshl_b32 s39, s17, 13
    s_lshl_b32 s40, s16, 10
    s_add_u32 s39, s39, s40
    s_add_u32 m0, s39, {L_P0}
    s_lshl_b32 s40, s13, 17
    s_lshl_b32 s41, s12, 14
    s_add_u32 s41, s41, s40
    s_add_u32 s41, s41, {KVL - L_P0:#x}
    v_add_u32 v11, s41, v1
    """)
    k.poll(8, "s36", 9)
    k.stamp("a_flag")
    k(f"""
    buffer_load_dwordx4 v11, s[8:11], m0 offen lds
    s_add_u32 m0, m0, 4096
    buffer_load_dwordx4 {vr(Q,4)}, v1, s[8:11], s37 offen
    buffer_load_dwordx4 v11, s[8:11], m0 offen lds
    buffer_load_dwordx4 {vr(Q+4,4)}, v1, s[8:11], s38 offen
    s_lshl_b32 s39, s17, 13
    s_add_u32 s39, s39, {L_P0}
    v_add_u32 v8, s39, v1
    v_and_b32 v9, 0x1ff, v2
    v_add_u32 v10, {L_ONES}, v9
    s_add_u32 s39, s39, 4096
    v_add_u32 v9, s39, v9
    v_and_b32 v124, 16, v0
    v_cmp_ne_u32 vcc, 0, v124
    v_cndmask_b32 v9, v9, v10
    v_mov_b32 v10, 0x4000
    v_cndmask_b32 v10, v10, 0, vcc
    s_lshl_b32 s43, s19, 2
    s_add_u32 s43, s43, s16
    s_lshl_b32 s43, s43, 7
    s_add_u32 s43, s43, {FKV:#x}
    v_and_b32 v124, 15, v0
    v_lshlrev_b32 v124, 2, v124
    """)
    k(f"""
    s_and_b32 s36, s16, 1
    s_lshl_b32 s36, s36, 10
    s_mul_i32 s44, s21, {WO_CT}
    s_add_u32 s44, s44, {WOF:#x}
    s_add_u32 s44, s44, s36
    s_add_u32 s45, s44, 2048
    s_movk_i32 s46, 4096
    s_mul_i32 s47, s21, {W2_CT}
    s_mul_i32 s48, s16, {28*2048}
    s_add_u32 s47, s47, s48
    s_add_u32 s47, s47, {W2F:#x}
    s_add_u32 s48, s47, s36
    s_xor_b32 s36, s36, 1024
    s_add_u32 s49, s47, s36
    s_cmp_eq_u32 s17, 0
    s_cselect_b32 s44, s44, s48
    s_cselect_b32 s45, s45, s49
    s_cselect_b32 s46, s46, 2048
    s_mul_i32 s36, s19, {W1_CT}
    s_add_u32 s36, s36, {W1F:#x}
    v_add_u32 v125, s36, v1
    s_waitcnt vmcnt(0)
    s_barrier
    """)
    k.stamp("a_b0")

    def rdk(t):
        k(f"ds_read_b128 {vr(KR+4*(t&1),4)}, v8 offset:{(t&3)*1024}")

    def rdv(t):
        for h in range(2):
            k(f"ds_read_b128 {vr(VR+8*(t&1)+4*h,4)}, v9 offset:{(t&3)*1024+h*512}")

    def smf(u):
        k(f"{MF} {vr(S+16*(u&1),16)}, {vr(KR+4*((u>>1)&1),4)}, {vr(Q+4*(u&1),4)}, 0")

    def pv(u, h, zero=False):
        o = vr(O + 16 * (u & 1), 16)
        k(f"{MF} {o}, {vr(VR+8*((u>>1)&1)+4*h,4)}, {vr(P+8*(u&1)+4*h,4)}, {'0' if zero else o}")

    def segment(nb, zero, extra):
        rdk(0)
        rdk(1)
        rdv(0)
        k("s_waitcnt lgkmcnt(3)")
        smf(0)
        for u in range(nb):
            x = extra(u)
            i = u >> 1
            if x.get("pre"):
                x["pre"]()
            if u & 1:
                k("s_waitcnt lgkmcnt(0)")
            if u + 1 < nb:
                smf(u + 1)
            if u & 1:
                if 2 * (i + 2) < nb:
                    if (i + 2) & 3 == 0:
                        k("v_add_u32 v8, 0x4000, v8")
                    rdk(i + 2)
                if 2 * (i + 1) < nb:
                    if (i + 1) & 3 == 0:
                        k("v_add_u32 v9, v10, v9")
                    rdv(i + 1)
            s, p = S + 16 * (u & 1), P + 8 * (u & 1)
            ex = [f"v_exp_f32 v{s+r}, v{s+r}" for r in range(16)]
            cv = [f"v_cvt_pk_bf16_f32 v{p+r}, v{s+2*r}, v{s+2*r+1}" for r in range(8)]
            k("\n".join(ex[:4]))
            if u:
                pv(u - 1, 0, zero and u <= 2)
            k("\n".join(ex[4:8] + cv[:2]))
            if u:
                pv(u - 1, 1)
            if x.get("mid"):
                x["mid"]()
            k("\n".join(ex[8:] + cv[2:]))
        pv(nb - 1, 0)
        pv(nb - 1, 1)

    segment(8, True, lambda u: {})
    k.stamp("a_segA")
    k(f"s_cmp_lg_u32 s17, 0\ns_cbranch_scc1 {k.L('a_nodma')}")
    k.ctx(["C"])
    k.poll(124, "s43", 126, acquire=False)
    k.stamp("a_kvflag")
    k(f"""
    s_add_u32 s40, s40, {KVG:#x}
    s_lshl_b32 s41, s16, 10
    s_add_u32 m0, s41, 0x4000
    """)
    for p in range(1, 8):
        k(f"""
        s_add_u32 s41, s12, {p}
        s_and_b32 s41, s41, 7
        s_sub_u32 s41, s41, {p}
        s_lshl_b32 s41, s41, 14
        s_add_u32 s41, s41, s40
        v_add_u32 v11, s41, v1
        """)
        for j in range(4):
            k("buffer_load_dwordx4 v11, s[8:11], m0 offen sc1 lds", vm=("kv", p))
            k("s_add_u32 m0, m0, 4096")
    k.label("a_nodma")
    k.ctx(["C", "H"])
    k(f"v_add_u32 v8, {(16384 - L_P0) & 0xffffffff:#x}, v8\nv_mad_i32_i24 v9, v10, -7, v9")
    k.wait(vm=("kv", 1))
    k("s_barrier")
    k.stamp("a_b1")

    side = {}

    def pfl(j):
        k(f"buffer_load_dwordx4 {vr(128+4*j,4)}, v2, s[4:7], s{44+(j&1)} offen")
        k(f"s_add_u32 s{44+(j&1)}, s{44+(j&1)}, s46")

    def w1d(reg, j):
        if j == 0:
            k(f"s_lshl_b32 s36, s3, 11\ns_add_u32 m0, s36, {reg*16384}")
        k(f"buffer_load_dwordx4 v125, s[4:7], m0 offen offset:{j*1024} lds")
    qa = [lambda j=j: pfl(j) for j in range(32)]
    qb = [(lambda r=r, j=j: w1d(r, j), 21 if r < 3 else 37) for r in range(5) for j in range(2)]
    for u in range(PF0, 56):
        if qb and qb[0][1] <= u:
            side[u] = qb.pop(0)[0]
        elif qa:
            side[u] = qa.pop(0)
    assert not qa and not qb

    def extra(u):
        d = {}
        if u & 7 == 5:
            p = (u >> 3) + 2
            if p in (2, 3, 4, 6):
                def pre(p=p):
                    if p != 6:
                        k.wait(vm=("kv", 7 if p == 4 else p))
                    k("s_barrier")
                d["pre"] = pre
        if u in side:
            d["mid"] = side[u]
        return d
    segment(56, False, extra)
    k.stamp("a_segB")
    k(f"""
    s_mul_i32 s36, s3, 2560
    s_add_u32 s36, s36, {L_CMB}
    v_add_u32 v8, s36, v1
    v_lshlrev_b32 v9, 2, v0
    v_add_u32 v10, s36, v9
    s_xor_b32 s37, s3, 4
    s_mul_i32 s37, s37, 2560
    s_add_u32 s37, s37, {L_CMB}
    v_add_u32 v11, s37, v1
    v_add_u32 v9, s37, v9
    s_lshl_b32 s38, s33, 15
    s_lshl_b32 s39, s13, 10
    s_add_u32 s38, s38, s39
    s_add_u32 s38, s38, {OF:#x}
    s_lshl_b32 s39, s33, 7
    s_lshl_b32 s41, s13, 2
    s_add_u32 s39, s39, s41
    s_add_u32 s39, s39, {FO:#x}
    s_mov_b32 s41, {f32(2.0**-60)}
    ds_write_b128 v8, {vr(O+16,4)}
    ds_write_b128 v8, {vr(O+20,4)} offset:1024
    ds_write_b32 v10, v{O+24} offset:2048
    s_waitcnt lgkmcnt(0)
    s_barrier
    ds_read_b32 v{O+24}, v9 offset:2048
    ds_read_b128 {vr(O+16,4)}, v11
    ds_read_b128 {vr(O+20,4)}, v11 offset:1024
    s_waitcnt lgkmcnt(2)
    v_add_f32 v{O+8}, v{O+8}, v{O+24}
    v_cmp_gt_f32 vcc, {f32(2.0**60)}, v{O+8}
    v_cmp_lt_f32 s[36:37], s41, v{O+8}
    v_rcp_f32 v11, v{O+8}
    s_and_b64 s[36:37], s[36:37], vcc
    s_cmp_eq_u64 s[36:37], exec
    s_waitcnt lgkmcnt(0)
    s_cbranch_scc0 {k.L('a_fb')}
    """)
    for r in range(8):
        k(f"v_add_f32 v{O+r}, v{O+r}, v{O+16+r}")
    k.label("a_out")
    for r in range(8):
        k(f"v_mul_f32 v{O+r}, v11, v{O+r}")
    for r in range(4):
        k(f"v_cvt_pk_bf16_f32 v{P+r}, v{O+2*r}, v{O+2*r+1}")
    k(f"buffer_store_dwordx4 {vr(P,4)}, v1, s[8:11], s38 offen")
    k.signal("s39", 8)
    k.stamp("a_sig")

    def fb():
        C = S + 16
        k.label("a_fb")
        k(f"""
        s_lshl_b32 s40, s13, 17
        s_add_u32 s40, s40, {KVG:#x}
        s_mov_b32 s41, 0
        v_mov_b32 v11, 0xff7fffff
        """)
        k.label("a_fb1")
        k(f"""
        s_lshr_b32 s36, s41, 2
        s_lshl_b32 s36, s36, 12
        s_lshl_b32 s37, s41, 10
        s_add_u32 s36, s36, s37
        s_add_u32 s36, s36, s40
        buffer_load_dwordx4 {vr(KR,4)}, v1, s[8:11], s36 offen sc1
        s_waitcnt vmcnt(0)
        {MF} {vr(S,16)}, {vr(KR,4)}, {vr(Q,4)}, 0
        """, vm="skip")
        for r in range(8):
            k(f"v_max3_f32 v11, v11, v{S+2*r}, v{S+2*r+1}")
        k(f"""
        s_add_u32 s41, s41, 1
        s_cmp_lt_u32 s41, 64
        s_cbranch_scc1 {k.L('a_fb1')}
        v_mov_b32 v10, v11
        v_permlane32_swap_b32 v10, v11
        v_max_f32 v11, v10, v11
        v_and_b32 v9, 0x1ff, v2
        v_add_u32 v9, 4096, v9
        v_and_b32 v10, 16, v0
        v_cmp_ne_u32 vcc, 0, v10
        s_mov_b32 s41, 0
        """)
        for r in range(16):
            k(f"v_sub_f32 v{C+r}, 0, v11\nv_mov_b32 v{O+r}, 0")
        k.label("a_fb2")
        k(f"""
        s_lshr_b32 s36, s41, 2
        s_lshl_b32 s36, s36, 12
        s_lshl_b32 s37, s41, 10
        s_add_u32 s36, s36, s37
        s_add_u32 s36, s36, s40
        buffer_load_dwordx4 {vr(KR,4)}, v1, s[8:11], s36 offen sc1
        buffer_load_dwordx4 {vr(VR,4)}, v9, s[8:11], s36 offen sc1
        buffer_load_dwordx4 {vr(VR+4,4)}, v9, s[8:11], s36 offen offset:512 sc1
        s_waitcnt vmcnt(0)
        {MF} {vr(S,16)}, {vr(KR,4)}, {vr(Q,4)}, {vr(C,16)}
        """, vm="skip")
        for r in range(8):
            k(f"v_cndmask_b32 v{VR+r}, v{VR+r}, v6")
        for r in range(16):
            k(f"v_exp_f32 v{S+r}, v{S+r}")
        for r in range(8):
            k(f"v_cvt_pk_bf16_f32 v{P+r}, v{S+2*r}, v{S+2*r+1}")
        for h in range(2):
            k(f"{MF} {vr(O,16)}, {vr(VR+4*h,4)}, {vr(P+4*h,4)}, {vr(O,16)}")
        k(f"""
        s_add_u32 s41, s41, 1
        s_cmp_lt_u32 s41, 64
        s_cbranch_scc1 {k.L('a_fb2')}
        v_rcp_f32 v11, v{O+8}
        s_nop 1
        s_branch {k.L('a_out')}
        """)
    k.deferred.append(fb)


def phase_wo(k):
    ACC, RES, WS = 64, 80, 32
    k(f"""
    s_lshl_b32 s36, s3, 11
    s_add_u32 m0, s36, {5*16384}
    s_add_u32 s37, s22, {XIN:#x}
    buffer_load_dwordx4 v125, s[4:7], m0 offen lds
    buffer_load_dwordx4 v125, s[4:7], m0 offen offset:1024 lds
    buffer_load_dwordx4 {vr(RES,4)}, v1, s[8:11], s37 offen
    buffer_load_dwordx4 {vr(RES+4,4)}, v1, s[8:11], s37 offen offset:1024
    s_add_u32 m0, s36, {L_OB}
    v_bfe_u32 v8, v0, 2, 1
    v_and_b32 v9, 3, v0
    v_lshlrev_b32 v8, 7, v8
    v_lshl_add_u32 v8, v9, 5, v8
    s_lshl_b32 s36, s20, 7
    s_lshl_b32 s37, s3, 2
    s_add_u32 s36, s36, s37
    s_add_u32 s36, s36, {FO:#x}
    s_lshl_b32 s37, s20, 15
    s_lshl_b32 s38, s3, 10
    s_add_u32 s37, s37, s38
    s_add_u32 s37, s37, {OF:#x}
    s_add_u32 s38, s37, {32768-1024}
    s_lshr_b32 s39, s16, 1
    s_lshl_b32 s39, s39, 10
    s_add_u32 s39, s39, {L_OB}
    v_add_u32 v10, s39, v1
    s_barrier
    """)
    k.poll(8, "s36", 9)
    k.stamp("w_flag")
    for j in range(4):
        k("buffer_load_dwordx4 v1, s[8:11], s37 offen lds", vm=("o", j))
        k("buffer_load_dwordx4 v1, s[8:11], s38 offen offset:1024 lds", vm=("o", j))
        if j < 3:
            k("s_add_u32 m0, m0, 16384\ns_add_u32 s37, s37, 8192\ns_add_u32 s38, s38, 8192")
    k(f"s_cmp_lg_u32 s17, 0\ns_cbranch_scc1 {k.L('wo_h')}")
    k.ctx(["C"])
    unpack(k, ACC, RES)

    def bar(j):
        k.wait(vm=("o", j))
        k("s_barrier")
    AH = 5
    ops = []
    for s in range(32):
        ops.append(dict(off=s * 2048, mf=lambda w, s=s: f"{MF} {vr(ACC,16)}, {vr(128+4*s,4)}, {vr(w,4)}, {vr(ACC,16)}"))
    ops[0]["pre"] = lambda: bar(0)
    for j in (1, 2, 3):
        ops[8 * j - AH]["pre"] = lambda j=j: bar(j)
    ops[31]["post"] = lambda: k("s_barrier")
    gemm_stream(k, ops, WS, [], 0, ahead=AH, areg="v10")
    k.stamp("w_mf")
    tile_epilogue(k, ACC, X1, ST1, F1, 8)
    k.stamp("w_sig")


def phase_up(k):
    SR, AUG, RS, WS, ACC, A = 8, 24, 28, 32, 64, 128
    lda = load_x(k, X1, ST1, F1, SR, A, "u_flag")
    PD = 12
    for s in range(PD):
        lda(s)
    c0 = -2.0 * math.sqrt(2.0 / math.pi) * LOG2E
    c1 = c0 * 0.044715
    k(f"""
    s_mul_i32 s40, s18, {112*1024}
    s_mul_i32 s41, s19, {7*1024}
    s_add_u32 s40, s40, s41
    s_add_u32 s40, s40, {HF:#x}
    s_add_u32 s41, s40, 4096
    s_lshl_b32 s43, s18, 7
    s_lshl_b32 s36, s19, 2
    s_add_u32 s43, s43, s36
    s_add_u32 s43, s43, {FH:#x}
    """)
    k.wait(vm="st")
    k.stamp("u_st")
    stats_math(k, SR, AUG, RS, 29, "w1")
    k(f"""
    v_mov_b32 v31, v{SR+6}
    v_mul_f32 v29, {f32(c0)}, v{RS}
    v_mul_f32 v30, v{RS}, v{RS}
    v_mul_f32 v30, v30, v{RS}
    v_mul_f32 v30, {f32(c1)}, v30
    """)
    ops = []

    def op(s, t, **kw):
        b = vr(A + 4 * s, 4) if s < 32 else vr(AUG, 4)
        c = "0" if s == 0 else vr(ACC + 16 * t, 16)
        ops.append(dict(off=s * 3584 + t * 1024, mf=lambda w: f"{MF} {vr(ACC+16*t,16)}, {vr(w,4)}, {b}, {c}", **kw))
    for s in range(33):
        op(s, 0, vm=("a", s) if s < 32 else None, post=lambda s=s: lda(s + PD))
        op(s, 1)
    for t in (2, 3):
        for s in range(33):
            op(s, t)
    ops[48]["pre"] = lambda: k("s_barrier")
    ops[-1]["post"] = lambda: k("s_barrier")
    fill = []
    for u in range(7):
        a, T = ACC + 8 * u, 8 + (u & 1) * 8
        rdy = 67 if u < 4 else (100 if u < 6 else 1000)
        R = range(8)
        fill += [(f"v_mul_f32 v{T+r}, v{a+r}, v{a+r}", 4, rdy) for r in R]
        fill += [(f"v_fma_f32 v{T+r}, v{T+r}, v30, v29", 4, rdy) for r in R]
        fill += [(f"v_mul_f32 v{T+r}, v{T+r}, v{a+r}", 4, rdy) for r in R]
        fill += [(f"v_exp_f32 v{T+r}, v{T+r}", 8, rdy) for r in R]
        fill += [(f"v_fma_f32 v{T+r}, v{T+r}, v31, v31", 4, rdy) for r in R]
        fill += [(f"v_rcp_f32 v{T+r}, v{T+r}", 8, rdy) for r in R]
        fill += [(f"v_mul_f32 v{a+r}, v{T+r}, v{a+r}", 4, rdy) for r in R]
        fill += [(f"v_cvt_pk_bf16_f32 v{a+r}, v{a+2*r}, v{a+2*r+1}", 4, rdy) for r in range(4)]
        fill += [(f"buffer_store_dwordx4 {vr(a,4)}, v1, s[8:11], s{40+(u>>2)} offen offset:{(u&3)*1024}", 4, rdy)]
    rest = gemm_stream(k, ops, WS, fill, UPB)
    k.stamp("u_mf")
    flush_fill(k, rest)
    k.signal("s43", 8)
    k.stamp("u_sig")
    k.stamp_flush(8)
    k(f"""
    s_cmp_lg_u32 s14, 0
    s_cbranch_scc1 {k.L('end')}
    s_mov_b32 s14, 1
    s_add_u32 s8, s8, {LSTRIDE:#x}
    s_addc_u32 s9, s9, 0
    s_barrier
    """)
    k.stamp("start")
    wq_dma(k, 0, 10)
    wq_dma(k, 1, 10)
    k(f"s_branch {k.L('qkv_c')}")


def phase_dn(k):
    ACC, W = 64, 128
    k.label("wo_h")
    k.ctx(["H"])
    for j in range(4):
        k.wait(vm=("o", j))
        k("s_barrier")
    k(f"""
    s_mul_i32 s36, s16, 5120
    s_add_u32 m0, s36, 98304
    s_mul_i32 s40, s16, 12288
    s_add_u32 s41, s40, {L_Y}
    s_add_u32 s40, s40, {L_X}
    s_add_u32 s36, s47, {16*2048}
    s_sub_u32 s36, s36, s40
    v_add_u32 v8, s36, v1
    s_add_u32 s36, s47, {22*2048}
    s_sub_u32 s36, s36, s41
    v_add_u32 v9, s36, v1
    s_barrier
    """)
    k.dma_lin(125, "s[4:7]", 5, vm="w1")
    k("s_add_u32 m0, s40, 4096")
    k.dma_lin(8, "s[4:7]", 8)
    k(f"""
    s_add_u32 s37, s22, {X1:#x}
    s_and_b32 s38, s22, 0x7fff
    s_lshr_b32 s38, s38, 5
    v_lshrrev_b32 v10, 5, v0
    v_lshlrev_b32 v10, 3, v10
    """)
    for g in range(4):
        k(f"buffer_load_dwordx2 {vr(24+2*g,2)}, v10, s[24:27], s38 offen offset:{g*16}", vm="b2")
    k.wait(vm="w1")
    k("s_barrier")
    k(f"buffer_load_dwordx4 {vr(16,4)}, v1, s[8:11], s37 offen sc1", vm="res")
    k(f"buffer_load_dwordx4 {vr(20,4)}, v1, s[8:11], s37 offen offset:1024 sc1", vm="res")
    k(f"""
    s_and_b32 s36, s16, 1
    s_lshl_b32 s36, s36, 10
    v_add_u32 v10, s36, v2
    v_xor_b32 v11, 0x400, v10
    s_lshl_b32 s36, s20, 7
    s_lshl_b32 s37, s16, 4
    s_add_u32 s36, s36, s37
    s_add_u32 s36, s36, {FH:#x}
    s_lshr_b32 s37, s16, 1
    s_xor_b32 s38, s37, 1
    s_add_u32 s37, s37, s20
    s_add_u32 s38, s38, s20
    s_mul_i32 s37, s37, {112*1024}
    s_mul_i32 s38, s38, {112*1024}
    s_mul_i32 s39, s16, {28*1024}
    s_add_u32 s39, s39, {HF:#x}
    s_add_u32 s37, s37, s39
    s_add_u32 s38, s38, s39
    v_add_u32 v124, s41, v10
    v_add_u32 v125, s41, v11
    v_bfe_u32 v12, v0, 2, 1
    v_and_b32 v13, 3, v0
    v_lshlrev_b32 v12, 7, v12
    v_lshl_add_u32 v12, v13, 2, v12
    """)
    k.wait(vm="res")
    unpack(k, ACC, 16)
    unpack(k, ACC, 24, 14, add=True)
    k("s_mov_b32 m0, s40")
    k("s_barrier")
    k.dma_lin(8, "s[4:7]", 4)
    k("s_mov_b32 m0, s41")
    k.dma_lin(9, "s[4:7]", 12)
    k.poll(12, "s36", 13)
    k.stamp("d_flag")
    k("v_mov_b32 v8, v124\nv_mov_b32 v9, v125")
    free = list(range(12, 64, 4))
    steps = [(1, i) for i in range(28)] + [(0, i) for i in list(range(16, 28)) + list(range(16))]
    hreg, wreg = {}, {}
    nh, nw = [0], [0]
    wsteps = [n for n, (m, i) in enumerate(steps) if i >= 16]

    def ldh():
        n = nh[0]
        m, i = steps[n]
        r = free.pop(0)
        hreg[n] = r
        if i & 3 == 0:
            k(f"s_add_u32 s39, s{37+m}, {(i>>2)*4096}")
        k(f"buffer_load_dwordx4 {vr(r,4)}, v1, s[8:11], s39 offen offset:{(i&3)*1024} sc1", vm=("h", n))
        nh[0] += 1

    def ldw():
        n = wsteps[nw[0]]
        i = steps[n][1]
        off = (i - 22) * 2048 if i >= 22 else (i - 16) * 2048 + L_X - L_Y
        wreg[n] = (free.pop(0), free.pop(0))
        for a in range(2):
            k(f"ds_read_b128 {vr(wreg[n][a],4)}, v{8+a} offset:{off}", lg=("w", n))
        nw[0] += 1

    def refill(n, cap):
        while nw[0] < len(wsteps) and wsteps[nw[0]] <= n + 2 and len(free) >= 2:
            ldw()
        resv = 2 if nw[0] < len(wsteps) and wsteps[nw[0]] <= n + 3 else 0
        c = 0
        while nh[0] < len(steps) and len(free) > resv and c < cap:
            ldh()
            c += 1

    def mf(n, a):
        m, i = steps[n]
        w = wreg[n][a] if i >= 16 else W + 8 * i + 4 * a
        t = ACC + 16 * (2 * m + a)
        first = (n == 0) or (n == 28 and a == 1)
        k(f"{MF} {vr(t,16)}, {vr(w,4)}, {vr(hreg[n],4)}, {'0' if first else vr(t,16)}")
    k("v_add_u32 v10, s40, v1")
    wr = [(a, q) for a in (2, 3) for q in range(4)]
    refill(-1, 99)
    NS = 4
    for n in range(56 - NS):
        m, i = steps[n]
        k.wait(vm=("h", n), lg=("w", n) if i >= 16 else None)
        mf(n, 0)
        refill(n, 1)
        mf(n, 1)
        free.append(hreg[n])
        if i >= 16:
            free += list(wreg[n])
        elif m == 0:
            free += [W + 8 * i, W + 8 * i + 4]
        refill(n, 2)
        if n >= 36 and wr:
            a, q = wr.pop(0)
            k(f"ds_write_b128 v10, {vr(ACC+16*a+4*q,4)} offset:{(a-1)*4096+q*1024}")
    assert not wr and nh[0] == 56
    for a in (1, 2, 3):
        k(f"s_xor_b32 s36, s16, {a}\ns_mul_i32 s36, s36, 12288\ns_add_u32 s36, s36, {L_X+(a-1)*4096}\nv_add_u32 v{96+a}, s36, v1")
    for n in range(56 - NS, 56):
        k.wait(vm=("h", n))
        mf(n, 1)
    mf(56 - NS, 0)
    mf(57 - NS, 0)
    for q in range(4):
        k(f"ds_write_b128 v10, {vr(ACC+16+4*q,4)} offset:{q*1024}")
        if q + 2 < NS:
            mf(58 - NS + q, 0)
    k("s_waitcnt lgkmcnt(0)\ns_barrier")
    k.stamp("d_mf")
    for a in (1, 2, 3):
        for q in range(4):
            k(f"ds_read_b128 {vr(16*a+4*q,4)}, v{96+a} offset:{q*1024}", lg=("p", a))
    for a in (1, 2, 3):
        k.wait(lg=("p", a))
        for r in range(16):
            k(f"v_add_f32 v{ACC+r}, v{ACC+r}, v{16*a+r}")
    k(f"s_cmp_lg_u32 s14, 0\ns_cbranch_scc1 {k.L('final')}")
    tile_epilogue(k, ACC, XIN + LSTRIDE, STI + LSTRIDE, FX + LSTRIDE, 8)
    k.stamp("d_sig")
    k.stamp_flush(8)
    k(f"""
    s_mov_b32 s14, 1
    s_add_u32 s8, s8, {LSTRIDE:#x}
    s_addc_u32 s9, s9, 0
    """)
    k.stamp("start")
    k(f"s_branch {k.L('qkv_h')}")
    k.label("final")
    O = 16
    for r in range(8):
        k(f"v_cvt_pk_bf16_f32 v{O+r}, v{ACC+2*r}, v{ACC+2*r+1}")
    k(f"""
    s_and_b32 s36, s22, 0x7fff
    s_sub_u32 s37, s22, s36
    s_lshr_b32 s36, s36, 5
    s_add_u32 s36, s36, s37
    v_and_b32 v8, 31, v0
    v_lshrrev_b32 v9, 5, v0
    v_lshlrev_b32 v8, 10, v8
    v_lshl_add_u32 v8, v9, 4, v8
    v_permlane32_swap_b32 v{O}, v{O+2}
    v_permlane32_swap_b32 v{O+1}, v{O+3}
    v_permlane32_swap_b32 v{O+4}, v{O+6}
    v_permlane32_swap_b32 v{O+5}, v{O+7}
    buffer_store_dwordx4 {vr(O,4)}, v8, s[28:31], s36 offen
    buffer_store_dwordx4 {vr(O+4,4)}, v8, s[28:31], s36 offen offset:32
    """)
    if PROF:
        k("s_waitcnt vmcnt(0)")
    k.stamp("d_sig")
    k.stamp_flush(8)


UPB = 20


def gen_mega():
    k = MK("mega_kernel", 256, 512, 163840, vgpr=256)
    prologue(k)
    phase_qkv_h(k)
    k(f"s_branch {k.L('att')}")
    k.ctx(["C"])
    phase_qkv_c(k)
    phase_att(k)
    phase_wo(k)
    phase_up(k)
    phase_dn(k)
    k.label("end")
    k("s_endpgm")
    i = 0
    while i < len(k.deferred):
        k.deferred[i]()
        i += 1
    return k


def main(path):
    ks = [gen_prep(), gen_mega()]
    hdr = ["; 2 x (MHA block + channel MLP) for gfx950; generated by gen/gen2.py",
           "; kernarg: x,wqkv,wo,(unused),w1,b1,w2,b2,out,debug,ws"]
    emit_file(path, hdr, ["prep_kernel", "mega_kernel"], ks)
    if PROF:
        import json
        json.dump(STAMPS, open(path + ".stamps", "w"))
    return ks


if __name__ == "__main__":
    main(sys.argv[1] if len(sys.argv) > 1 else "v2.s")
```

```python
import sys, math, struct, os
sys.path.insert(0, "gen")
from asmlib import *

ALIAS = int(os.environ.get("ALIAS", "1"))
LSTRIDE = 0x500000
FLG, KVG, PROFB = 0x0, 0x10000, 0x410000
FX, FQ, FKV, FO, F1, FH, CNT = (FLG + o for o in (0, 0x2000, 0x6000, 0x8000, 0xA000, 0xC000, 0xE000))
WBASE = 0xA00000
WQF, W1F, WOF, W2F = 0x000000, 0x190000, 0x360000, 0x3E0000
WWSZ = 0x600000
ABASE = WBASE + WWSZ
RBS = 112 * 1024
if ALIAS:
    XA = XB = 0
    STA = STB = 0x200000
    RQ = RO = RH = 0x240000
    ASTRIDE = 0
    ASZ = 0x940000
else:
    XA, XB, STA, STB = 0, 0x200000, 0x400000, 0x440000
    RQ, RO, RH = 0x500000, 0xC00000, 0x1300000
    ASTRIDE = 0x1A00000
    ASZ = 2 * ASTRIDE
WSZ = ABASE + ASZ + ASTRIDE
WQ_CT = 33 * 3072
W1_CT = 33 * 3584
WO_CT = 32 * 2048
W2_CT = 113 * 2048
ONES = "0x3f803f80"
EPS = 1e-5
LOG2E = 1.4426950408889634
AS = "s[56:59]"


def f32(x):
    return "0x%08x" % struct.unpack("<I", struct.pack("<f", x))[0]


def vr(b, n):
    return f"v[{b}:{b+n-1}]"
```

```python
from lay3 import *


def gen_prep():
    k = Kernel("prep_kernel", 256, 256, 1024, vgpr=96)
    PROF = int(os.environ.get("PROF", "0"))
    if PROF:
        k("s_memrealtime s[60:61]")
    k(f"""
    s_cmp_ge_u32 s2, 256
    s_cbranch_scc1 {k.L('end2')}
    s_load_dwordx16 s[32:47], s[0:1], 0
    s_load_dwordx2 s[8:9], s[0:1], 80
    v_lshrrev_b32 v1, 6, v0
    v_and_b32 v0, 63, v0
    v_readfirstlane_b32 s24, v1
    v_lshrrev_b32 v2, 5, v0
    v_and_b32 v3, 31, v0
    s_mov_b32 s10, {WSZ:#x}
    s_mov_b32 s11, 0x00020000
    s_mov_b32 s7, 0x00020000
    s_mov_b32 s15, 0x00020000
    s_mov_b32 s14, 0
    s_mov_b32 s22, 0
    s_lshl_b32 s18, s24, 3
    v_mov_b32 v5, {ONES}
    s_waitcnt lgkmcnt(0)
    s_mov_b32 s12, s42
    s_mov_b32 s13, s43
    s_cmp_ge_u32 s2, 248
    s_cbranch_scc1 {k.L('fl')}
    s_cmp_ge_u32 s2, 184
    s_cbranch_scc1 {k.L('x')}
    s_cmp_ge_u32 s2, 120
    s_cbranch_scc1 {k.L('w2')}
    s_cmp_ge_u32 s2, 104
    s_cbranch_scc1 {k.L('wo')}
    s_cmp_ge_u32 s2, 48
    s_cbranch_scc1 {k.L('w1')}
    """)
    k(f"""
    s_mov_b32 s4, s34
    s_mov_b32 s5, s35
    s_mov_b32 s6, {512*1536*2}
    s_mov_b32 s16, 3072
    s_lshr_b32 s25, s2, 4
    s_and_b32 s26, s2, 15
    s_lshl_b32 s25, s25, 10
    s_lshl_b32 s17, s26, 6
    s_add_u32 s17, s17, s25
    s_mul_i32 s19, s26, {WQ_CT}
    s_add_u32 s19, s19, s25
    s_add_u32 s19, s19, {WBASE+WQF:#x}
    s_add_u32 s20, s19, 512
    s_mov_b32 s21, 3072
    s_mov_b32 s22, 1
    s_branch {k.L('w')}
    """)
    k.label("w1")
    k(f"""
    s_mov_b32 s4, s40
    s_mov_b32 s5, s41
    s_mov_b32 s6, {512*1792*2}
    s_mov_b32 s16, 3584
    s_sub_u32 s25, s2, 48
    s_lshl_b32 s17, s25, 6
    s_lshl_b32 s25, s25, 1
    s_mul_i32 s26, s25, 147
    s_lshr_b32 s26, s26, 10
    s_mul_i32 s19, s26, {W1_CT - 7*512}
    s_lshl_b32 s27, s25, 9
    s_add_u32 s19, s19, s27
    s_add_u32 s19, s19, {WBASE+W1F:#x}
    s_add_u32 s25, s25, 1
    s_mul_i32 s26, s25, 147
    s_lshr_b32 s26, s26, 10
    s_mul_i32 s20, s26, {W1_CT - 7*512}
    s_lshl_b32 s27, s25, 9
    s_add_u32 s20, s20, s27
    s_add_u32 s20, s20, {WBASE+W1F:#x}
    s_mov_b32 s21, 3584
    s_mov_b32 s22, 1
    s_mov_b32 s14, 3584
    s_branch {k.L('w')}
    """)
    k.label("wo")
    k(f"""
    s_mov_b32 s4, s36
    s_mov_b32 s5, s37
    s_mov_b32 s6, {512*512*2}
    s_mov_b32 s16, 1024
    s_sub_u32 s25, s2, 104
    s_lshl_b32 s17, s25, 6
    s_lshr_b32 s26, s25, 1
    s_mul_i32 s19, s26, {WO_CT}
    s_and_b32 s25, s25, 1
    s_lshl_b32 s25, s25, 10
    s_add_u32 s19, s19, s25
    s_add_u32 s19, s19, {WBASE+WOF:#x}
    s_add_u32 s20, s19, 512
    s_mov_b32 s21, 2048
    s_branch {k.L('w')}
    """)
    k.label("w2")
    k(f"""
    s_mov_b32 s4, s44
    s_mov_b32 s5, s45
    s_mov_b32 s6, {1792*512*2}
    s_mov_b32 s16, 1024
    s_sub_u32 s25, s2, 120
    s_lshr_b32 s27, s25, 4
    s_and_b32 s25, s25, 15
    s_mul_i32 s27, s27, 28
    s_mul_i32 s18, s24, 7
    s_add_u32 s18, s18, s27
    s_lshl_b32 s17, s25, 6
    s_lshr_b32 s26, s25, 1
    s_mul_i32 s19, s26, {W2_CT}
    s_and_b32 s25, s25, 1
    s_lshl_b32 s25, s25, 10
    s_add_u32 s19, s19, s25
    s_add_u32 s19, s19, {WBASE+W2F:#x}
    s_add_u32 s20, s19, 512
    s_mov_b32 s21, 2048
    """)
    k.label("w")
    k(f"""
    s_lshl_b32 s25, s16, 2
    v_mul_u32_u24 v4, s25, v2
    v_lshl_add_u32 v6, v3, 1, s17
    v_add_u32 v4, v4, v6
    v_lshl_add_u32 v6, v2, 16, v6
    s_lshl_b32 s27, s16, 4
    s_mul_i32 s26, s18, s27
    buffer_load_ushort v7, v6, s[12:15], 0 offen
    """)
    rows = [0, 1, 2, 3, 8, 9, 10, 11]
    for j, r in enumerate(rows):
        k(f"s_mul_i32 s25, s16, {r}")
        k(f"v_add_u32 v{8+j}, s25, v4")
    for i in range(8):
        for j in range(8):
            k(f"buffer_load_ushort v{16+i*8+j}, v{8+j}, s[4:7], s26 offen", vm=("w", i))
        k("s_add_u32 s26, s26, s27")
    k(f"""
    v_and_b32 v4, 15, v3
    v_lshlrev_b32 v4, 4, v4
    v_lshl_add_u32 v4, v2, 8, v4
    v_mov_b32 v8, s19
    v_mov_b32 v9, s20
    v_cmp_lt_u32 vcc, 15, v3
    v_cndmask_b32 v8, v8, v9
    v_add_u32 v4, v4, v8
    s_mul_i32 s26, s18, s21
    v_mov_b32 v80, 0
    v_mov_b32 v81, 0
    """)
    for i in range(8):
        b = 16 + i * 8
        k.wait(vm=("w", i))
        for d in range(4):
            k(f"v_lshl_or_b32 v{b+d}, v{b+2*d+1}, 16, v{b+2*d}")
        k(f"buffer_store_dwordx4 {vr(b,4)}, v4, s[8:11], s26 offen")
        k("s_add_u32 s26, s26, s21")
        for d in range(4):
            k(f"v_dot2_f32_bf16 v{80+(d&1)}, v{b+d}, v5, v{80+(d&1)}")
    k(f"""
    s_cmp_eq_u32 s22, 0
    s_cbranch_scc1 {k.L('end')}
    v_add_f32 v80, v80, v81
    v_lshlrev_b32 v8, 2, v0
    v_lshl_add_u32 v9, v1, 8, v8
    ds_write_b32 v9, v80
    s_waitcnt lgkmcnt(0)
    s_barrier
    s_cmp_lg_u32 s24, 0
    s_cbranch_scc1 {k.L('end')}
    ds_read_b32 v10, v8
    ds_read_b32 v11, v8 offset:256
    ds_read_b32 v12, v8 offset:512
    ds_read_b32 v13, v8 offset:768
    s_lshl_b32 s26, s21, 5
    s_waitcnt lgkmcnt(0)
    v_add_f32 v10, v10, v11
    v_add_f32 v12, v12, v13
    v_add_f32 v10, v10, v12
    v_cvt_pk_bf16_f32 v84, v10, v10
    v_and_b32 v11, 0xffff0000, v84
    v_sub_f32 v11, v10, v11
    v_cvt_pk_bf16_f32 v11, v11, v11
    v_and_b32 v11, 0xffff, v11
    v_lshl_or_b32 v85, v7, 16, v11
    v_mov_b32 v86, v7
    v_mov_b32 v87, 0
    buffer_store_dwordx4 v[84:87], v4, s[8:11], s26 offen
    s_branch {k.L('end')}
    """)
    k.label("x")
    k(f"""
    s_mov_b32 s4, s32
    s_mov_b32 s5, s33
    s_mov_b32 s6, {2048*512*2}
    s_sub_u32 s25, s2, 184
    s_lshl_b32 s26, s25, 15
    s_lshl_b32 s27, s24, 8
    s_add_u32 s27, s27, s26
    v_lshlrev_b32 v4, 10, v3
    v_lshl_add_u32 v4, v2, 3, v4
    v_lshlrev_b32 v6, 4, v0
    """)
    for i in range(8):
        k(f"buffer_load_dwordx2 {vr(16+i*4,2)}, v4, s[4:7], s27 offen offset:{i*32}", vm=("x", i))
        k(f"buffer_load_dwordx2 {vr(18+i*4,2)}, v4, s[4:7], s27 offen offset:{i*32+16}", vm=("x", i))
    k(f"""
    s_lshl_b32 s28, s24, 13
    s_add_u32 s28, s28, s26
    s_add_u32 s28, s28, {ABASE+XA:#x}
    s_add_u32 s29, s28, 4096
    s_lshl_b32 s30, s25, 12
    s_lshl_b32 s31, s24, 10
    s_add_u32 s30, s30, s31
    s_add_u32 s30, s30, {ABASE+STA:#x}
    v_lshlrev_b32 v7, 4, v3
    v_lshl_add_u32 v7, v2, 2, v7
    """)
    for p in range(4):
        k.wait(vm=("x", 2 * p + 1))
        for i in (2 * p, 2 * p + 1):
            k(f"buffer_store_dwordx4 {vr(16+i*4,4)}, v6, s[8:11], s{28+(i>>2)} offen offset:{(i&3)*1024}")
        a, b = 48 + 2 * p, 49 + 2 * p
        for d in range(8):
            r = 16 + p * 8 + d
            k(f"v_dot2_f32_bf16 v{a}, v{r}, v5, {'0' if d==0 else f'v{a}'}")
            k(f"v_dot2_f32_bf16 v{b}, v{r}, v{r}, {'0' if d==0 else f'v{b}'}")
        k(f"v_permlane32_swap_b32 v{a}, v{b}")
        k(f"v_add_f32 v{a}, v{a}, v{b}")
        k(f"buffer_store_dword v{a}, v7, s[8:11], s30 offen offset:{(p>>1)*512+(p&1)*8}")
    k(f"s_branch {k.L('end')}")
    k.label("fl")
    k(f"""
    s_sub_u32 s25, s2, 248
    s_lshr_b32 s26, s25, 2
    s_mul_i32 s26, s26, {LSTRIDE:#x}
    s_and_b32 s27, s25, 3
    s_lshl_b32 s27, s27, 14
    s_add_u32 s26, s26, s27
    s_lshl_b32 s27, s24, 12
    s_add_u32 s26, s26, s27
    s_add_u32 s26, s26, {FLG:#x}
    s_lshl_b32 s27, s25, 2
    s_add_u32 s27, s27, s24
    s_cmp_lt_u32 s27, 2
    s_cselect_b32 s27, 1, 0
    v_mov_b32 v8, s27
    v_mov_b32 v9, s27
    v_mov_b32 v10, s27
    v_mov_b32 v11, s27
    v_lshlrev_b32 v6, 4, v0
    """)
    for j in range(4):
        k(f"buffer_store_dwordx4 v[8:11], v6, s[8:11], s26 offen offset:{j*1024}")
    k.label("end")
    if PROF:
        k(f"""
        s_waitcnt vmcnt(0)
        s_memrealtime s[62:63]
        s_lshl_b32 s26, s2, 2
        s_add_u32 s26, s26, s24
        s_lshl_b32 s26, s26, 3
        s_add_u32 s26, s26, {PROFB+0x80000:#x}
        s_waitcnt lgkmcnt(0)
        v_mov_b32 v8, s60
        v_mov_b32 v9, s62
        s_mov_b64 exec, 1
        buffer_store_dwordx2 v[8:9], off, s[8:11], s26
        """)
    k.label("end2")
    k("s_endpgm")
    return k


def stats_math(k, sreg, aug, rs, tmp, kind):
    s, t = sreg, tmp
    for i in (0, 1):
        k(f"v_add_f32 v{s+i}, v{s+i}, v{s+2+i}")
        k(f"v_add_f32 v{s+4+i}, v{s+4+i}, v{s+6+i}")
        k(f"v_add_f32 v{s+8+i}, v{s+8+i}, v{s+10+i}")
        k(f"v_add_f32 v{s+12+i}, v{s+12+i}, v{s+14+i}")
    for i in (0, 1):
        k(f"v_add_f32 v{s+i}, v{s+i}, v{s+4+i}")
        k(f"v_add_f32 v{s+8+i}, v{s+8+i}, v{s+12+i}")
    for i in (0, 1):
        k(f"v_add_f32 v{s+i}, v{s+i}, v{s+8+i}")
    k(f"""
    v_mov_b32 v{s+2}, v{s}
    v_mov_b32 v{s+3}, v{s+1}
    v_permlane32_swap_b32 v{s}, v{s+2}
    v_permlane32_swap_b32 v{s+1}, v{s+3}
    v_add_f32 v{s}, v{s}, v{s+2}
    v_add_f32 v{s+1}, v{s+1}, v{s+3}
    v_mul_f32 v{s}, {f32(-1.0/512)}, v{s}
    v_mul_f32 v{s+1}, {f32(1.0/512)}, v{s+1}
    v_fma_f32 v{s+1}, -v{s}, v{s}, v{s+1}
    v_max_f32 v{s+1}, 0, v{s+1}
    """)
    if kind == "qkv":
        k(f"v_add_f32 v{s+1}, {f32(EPS)}, v{s+1}")
    else:
        k(f"v_mov_b32 v{s+2}, {f32(EPS*EPS)}")
        k(f"v_fmamk_f32 v{s+1}, v{s+1}, {f32(1+EPS)}, v{s+2}")
    k(f"""
    v_rsq_f32 v{rs}, v{s+1}
    v_cvt_pk_bf16_f32 v{s+4}, v{s}, v{s}
    v_and_b32 v{s+5}, 0xffff0000, v{s+4}
    v_sub_f32 v{s+5}, v{s}, v{s+5}
    v_cvt_pk_bf16_f32 v{aug}, v{s}, v{s+5}
    """)
    if kind == "qkv":
        k(f"v_and_b32 v{aug+1}, 0xffff, v{s+4}")
        k(f"v_mov_b32 v{aug+2}, 0")
    else:
        k(f"""
        v_mul_f32 v{s+6}, v{s+1}, v{rs}
        v_cvt_pk_bf16_f32 v{aug+1}, v{s}, v{s+6}
        v_and_b32 v{s+7}, 0xffff0000, v{aug+1}
        v_sub_f32 v{s+7}, v{s+6}, v{s+7}
        v_cvt_pk_bf16_f32 v{aug+2}, v{s+7}, 0
        """)
    k(f"v_mov_b32 v{aug+3}, 0")
```

```python
from lay3 import *
from prep3 import gen_prep, stats_math

PROF = int(os.environ.get("PROF", "0"))
FORCE_SAFE = int(os.environ.get("SAFE", "0"))
LIMIT = 20000
L_HAND, L_RST, L_MODE = 114688, 112640, 113664
L_P0, L_ONES, L_CMB, L_OB, L_X, L_Y = 131072, 159744, 131072, 98304, 114688, 65536
MF = "v_mfma_f32_32x32x16_bf16"
STAMPS = []
PF0 = 2
QSLP = int(os.environ.get("QSLP", "20"))
EARLY = int(os.environ.get("EARLY", "3"))
KV0 = 0
TOUCH = int(os.environ.get("TOUCH", "1"))


class MK(Kernel):
    def __init__(self, *a, **kw):
        super().__init__(*a, **kw)
        self.deferred = []
        self.uid = 0

    def u(self, p):
        self.uid += 1
        return f"{p}{self.uid}"

    def stamp(self, name):
        if not PROF:
            return
        if name not in STAMPS:
            STAMPS.append(name)
        i = STAMPS.index(name)
        self(f"s_memrealtime s[62:63]\ns_waitcnt lgkmcnt(0)\nv_writelane_b32 v7, s62, {i}")

    def stamp_flush(self, tmp):
        if not PROF:
            return
        self(f"""
        s_lshl_b32 s60, s12, 5
        s_add_u32 s60, s60, s13
        s_lshl_b32 s60, s60, 3
        s_add_u32 s60, s60, s3
        s_lshl_b32 s60, s60, 8
        s_add_u32 s60, s60, {PROFB:#x}
        v_lshlrev_b32 v{tmp}, 2, v0
        buffer_store_dword v7, v{tmp}, s[8:11], s60 offen
        """)

    def poll(self, vaddr, soff, tmp, acquire=True):
        l = self.u("poll")
        self("s_mov_b32 s35, 0")
        self.label(l)
        self(f"""
        buffer_load_dword v{tmp}, v{vaddr}, s[8:11], {soff} offen sc1
        s_add_u32 s35, s35, 1
        s_cmp_gt_u32 s35, {LIMIT}
        s_cbranch_scc1 {self.L('end')}
        s_waitcnt vmcnt(0)
        v_cmp_ne_u32 vcc, 1, v{tmp}
        s_cbranch_vccnz {self.L(l)}
        """)
        if acquire:
            self(f"s_cmp_lg_u32 s15, 0\ns_cbranch_scc1 {self.L(l+'a')}")
            self.label(l + "b")

            def d():
                self.label(l + "a")
                self(f"buffer_inv sc1\ns_waitcnt vmcnt(0)\ns_branch {self.L(l+'b')}")
            self.deferred.append(d)

    def signal(self, soff, tmp, glob=False):
        l = self.u("sig")
        self(f"v_mov_b32 v{tmp}, 1")
        self("s_mov_b64 exec, 1")
        if glob:
            self("s_waitcnt vmcnt(0)")
            self(f"buffer_store_dword v{tmp}, off, s[8:11], {soff} sc1")
        else:
            self(f"s_cmp_lg_u32 s15, 0\ns_waitcnt vmcnt(0)\ns_cbranch_scc1 {self.L(l+'a')}")
            self(f"buffer_store_dword v{tmp}, off, s[8:11], {soff}")
            self.label(l + "b")

            def d():
                self.label(l + "a")
                self(f"buffer_wbl2 sc1\ns_waitcnt vmcnt(0)")
                self(f"buffer_store_dword v{tmp}, off, s[8:11], {soff} sc1", vm="skip")
                self(f"s_branch {self.L(l+'b')}")
            self.deferred.append(d)
        self("s_mov_b64 exec, -1")

    def dma_lin(self, vaddr, srd, n, vm=None):
        for j in range(n):
            if j and j % 4 == 0:
                self("s_add_u32 m0, m0, 4096")
            self(f"buffer_load_dwordx4 v{vaddr}, {srd}, m0 offen offset:{(j%4)*1024} lds", vm=vm)


def gemm_stream(k, ops, WS, fill, budget, ahead=6, areg=None):
    n = len(ops)
    issued = [0]

    def rd_upto(m):
        while issued[0] <= min(m, n - 1):
            j = issued[0]
            off, a = ops[j]["off"], "v2"
            if areg:
                a = areg
            elif off >= 65536:
                off, a = off - 65536, "v3"
            k(f"ds_read_b128 {vr(WS+4*(j%8),4)}, {a} offset:{off}", lg=("w", j))
            issued[0] += 1
    fi = 0
    for j, o in enumerate(ops):
        if o.get("pre"):
            o["pre"]()
        rd_upto(j + ahead)
        k.wait(vm=o.get("vm"), lg=("w", j))
        k(o["mf"](WS + 4 * (j % 8)))
        if o.get("post"):
            o["post"]()
        b = budget
        while fi < len(fill) and fill[fi][2] <= j and b > 0:
            f = fill[fi]
            if callable(f[0]):
                f[0]()
            else:
                k(f[0], **(f[3] if len(f) > 3 else {}))
            b -= f[1]
            fi += 1
    return fill[fi:]


def flush_fill(k, fill):
    for f in fill:
        if callable(f[0]):
            f[0]()
        else:
            k(f[0], **(f[3] if len(f) > 3 else {}))


def load_x(k, xoff, stoff, flags, SR, A, name):
    k(f"""
    s_lshl_b32 s36, s18, 7
    s_add_u32 s36, s36, {flags:#x}
    v_and_b32 v8, 15, v0
    v_lshlrev_b32 v8, 2, v8
    s_lshl_b32 s37, s18, 12
    s_add_u32 s37, s37, {stoff:#x}
    s_lshl_b32 s38, s18, 15
    s_add_u32 s38, s38, {xoff:#x}
    """)
    k.poll(8, "s36", 9)
    k.stamp(name)
    for q in range(4):
        k(f"buffer_load_dwordx4 {vr(SR+4*q,4)}, v4, {AS}, s37 offen offset:{q*512} sc1", vm="st")

    def lda(s):
        if s >= 32:
            return
        k(f"buffer_load_dwordx4 {vr(A+4*s,4)}, v1, {AS}, s38 offen offset:{(s&3)*1024} sc1", vm=("a", s))
        if s & 3 == 3:
            k("s_add_u32 s38, s38, 4096")
    return lda


def tile_epilogue(k, ACC, xbase, stbase, flbase, T):
    k(f"s_add_u32 s36, s22, {xbase:#x}")
    k(f"s_add_u32 s37, s23, {stbase:#x}")
    k(f"s_add_u32 s38, s32, {flbase:#x}")
    for h in range(2):
        for r in range(4):
            k(f"v_cvt_pk_bf16_f32 v{ACC+8*h+r}, v{ACC+8*h+2*r}, v{ACC+8*h+2*r+1}")
        k(f"buffer_store_dwordx4 {vr(ACC+8*h,4)}, v1, {AS}, s36 offen offset:{h*1024}")
    for i, r in enumerate([0, 1, 2, 3, 8, 9, 10, 11]):
        k(f"v_dot2_f32_bf16 v{T}, v{ACC+r}, v6, {'0' if i==0 else f'v{T}'}")
        k(f"v_dot2_f32_bf16 v{T+1}, v{ACC+r}, v{ACC+r}, {'0' if i==0 else f'v{T+1}'}")
    k(f"""
    v_permlane32_swap_b32 v{T}, v{T+1}
    v_add_f32 v{T}, v{T}, v{T+1}
    buffer_store_dword v{T}, v5, {AS}, s37 offen
    """)
    k.signal("s38", T + 2)


def unpack(k, ACC, src, T=None, add=False):
    for r in range(8):
        if not add:
            k(f"v_lshlrev_b32 v{ACC+2*r}, 16, v{src+r}")
            k(f"v_and_b32 v{ACC+2*r+1}, 0xffff0000, v{src+r}")
        else:
            k(f"v_lshlrev_b32 v{T}, 16, v{src+r}")
            k(f"v_and_b32 v{T+1}, 0xffff0000, v{src+r}")
            k(f"v_add_f32 v{ACC+2*r}, v{ACC+2*r}, v{T}")
            k(f"v_add_f32 v{ACC+2*r+1}, v{ACC+2*r+1}, v{T+1}")


def wq_dma(k, part, tmp):
    k(f"s_mul_i32 s36, s19, {WQ_CT}")
    k(f"s_add_u32 s36, s36, {WQF:#x}")
    k(f"v_add_u32 v{tmp}, s36, v1")
    if part == 0:
        k("s_lshl_b32 m0, s16, 14")
        k.dma_lin(tmp, "s[4:7]", 16)
    else:
        k("s_mul_i32 s36, s16, 9216")
        k("s_add_u32 m0, s36, 65536")
        k.dma_lin(tmp, "s[4:7]", 9)


def kv_offsets(k, base):
    k(f"""
    s_lshl_b32 s40, s19, 18
    s_lshr_b32 s41, s18, 2
    s_lshl_b32 s41, s41, 13
    s_add_u32 s40, s40, s41
    s_lshl_b32 s41, s16, 10
    s_add_u32 s40, s40, s41
    s_add_u32 s40, s40, {base:#x}
    s_add_u32 s41, s40, 0x20000
    s_add_u32 s42, s40, 4096
    v_and_b32 v30, 0x1ff, v2
    v_bfe_u32 v31, v0, 4, 1
    v_lshl_add_u32 v30, v31, 17, v30
    """)


def loc_offsets(k):
    k(f"""
    s_mul_i32 s44, s18, {RBS}
    s_lshl_b32 s45, s19, 11
    s_add_u32 s44, s44, s45
    s_add_u32 s44, s44, {RQ:#x}
    s_add_u32 s40, s44, 0x8000
    s_add_u32 s42, s44, 0x10000
    v_and_b32 v30, 0x1ff, v2
    v_bfe_u32 v31, v0, 4, 1
    v_lshl_add_u32 v30, v31, 10, v30
    """)


def touch_qkv(k, J):
    loc_offsets(k)
    k(f"""
    v_lshlrev_b32 v30, 5, v0
    buffer_load_dword v{J}, v30, {AS}, s40 offen sc1
    buffer_load_dword v{J}, v30, {AS}, s42 offen sc1
    buffer_load_dword v{J}, v30, {AS}, s44 offen sc1
    """)


def prologue(k):
    k(f"""
    s_cmp_ge_u32 s2, 256
    s_cbranch_scc1 {k.L('end')}
    s_load_dwordx2 s[8:9], s[0:1], 80
    s_load_dwordx4 s[24:27], s[0:1], 56
    s_getreg_b32 s12, hwreg(HW_REG_XCC_ID)
    s_and_b32 s12, s12, 7
    v_lshrrev_b32 v1, 6, v0
    v_and_b32 v0, 63, v0
    v_readfirstlane_b32 s3, v1
    s_mov_b32 s10, {2*LSTRIDE:#x}
    s_mov_b32 s11, 0x00020000
    s_mov_b32 s6, {WWSZ:#x}
    s_mov_b32 s7, 0x00020000
    s_mov_b32 s14, 0
    s_mov_b32 s15, 0
    s_and_b32 s16, s3, 3
    s_lshr_b32 s17, s3, 2
    v_mov_b32 v7, 0
    v_mov_b32 v8, 0
    s_lshl_b32 s36, s12, 7
    s_add_u32 s36, s36, {CNT:#x}
    s_waitcnt lgkmcnt(0)
    """)
    k.stamp("start")
    k(f"""
    s_cmp_lg_u32 s3, 0
    s_cbranch_scc1 {k.L('noat')}
    v_mov_b32 v9, 1
    s_mov_b64 exec, 1
    buffer_atomic_add v9, off, s[8:11], s36 sc0 sc1
    s_waitcnt vmcnt(0)
    ds_write_b32 v8, v9
    s_mov_b64 exec, -1
    s_waitcnt lgkmcnt(0)
    """)
    k.label("noat")
    k(f"""
    s_add_u32 s4, s8, {WBASE:#x}
    s_addc_u32 s5, s9, 0
    s_add_u32 s56, s8, {ABASE:#x}
    s_addc_u32 s57, s9, 0
    s_mov_b32 s58, {ASZ:#x}
    s_mov_b32 s59, 0x00020000
    s_mov_b32 s28, s26
    s_mov_b32 s29, s27
    s_mov_b32 s30, {2048*1024}
    s_mov_b32 s31, 0x00020000
    s_mov_b32 s26, 1024
    s_mov_b32 s27, 0x00020000
    v_lshlrev_b32 v1, 4, v0
    v_lshrrev_b32 v10, 5, v0
    v_and_b32 v11, 31, v0
    v_and_b32 v2, 15, v0
    v_lshlrev_b32 v2, 4, v2
    v_lshl_add_u32 v2, v10, 8, v2
    v_bfe_u32 v3, v0, 4, 1
    v_lshl_add_u32 v2, v3, 9, v2
    v_add_u32 v3, 0x10000, v2
    v_lshlrev_b32 v5, 4, v11
    v_lshl_add_u32 v4, v10, 11, v5
    v_lshl_add_u32 v5, v10, 2, v5
    v_mov_b32 v6, {ONES}
    s_barrier
    ds_read_b32 v9, v8
    s_waitcnt lgkmcnt(0)
    v_readfirstlane_b32 s13, v9
    s_cmp_ge_u32 s13, 32
    s_cbranch_scc1 {k.L('ovf')}
    """)
    k.label("role")
    k(f"""
    s_barrier
    s_lshl_b32 s36, s12, 3
    s_and_b32 s37, s13, 1
    s_lshl_b32 s37, s37, 2
    s_add_u32 s18, s36, s37
    s_add_u32 s18, s18, s16
    s_lshr_b32 s19, s13, 1
    s_and_b32 s37, s13, 3
    s_lshl_b32 s37, s37, 1
    s_add_u32 s20, s36, s37
    s_lshr_b32 s21, s13, 2
    s_lshr_b32 s36, s16, 1
    s_add_u32 s36, s36, s20
    s_and_b32 s37, s16, 1
    s_lshl_b32 s38, s21, 1
    s_add_u32 s38, s38, s37
    s_lshl_b32 s22, s36, 15
    s_lshl_b32 s39, s38, 11
    s_add_u32 s22, s22, s39
    s_lshl_b32 s23, s36, 12
    s_lshl_b32 s39, s21, 9
    s_add_u32 s23, s23, s39
    s_lshl_b32 s39, s37, 3
    s_add_u32 s23, s23, s39
    s_lshl_b32 s32, s36, 7
    s_lshl_b32 s39, s38, 2
    s_add_u32 s32, s32, s39
    """)
    k.stamp("role")

    def cnt_poll():
        l = k.u("cp")
        k(f"""
        v_and_b32 v8, 7, v0
        v_lshlrev_b32 v8, 7, v8
        s_mov_b32 s36, {CNT:#x}
        s_mov_b32 s35, 0
        """)
        k.label(l)
        k(f"""
        buffer_load_dword v9, v8, s[8:11], s36 offen sc1
        s_add_u32 s35, s35, 1
        s_cmp_gt_u32 s35, {LIMIT}
        s_cbranch_scc1 {k.L('end')}
        s_waitcnt vmcnt(0)
        v_readlane_b32 s37, v9, 0
        """, vm="skip")
        for i in range(1, 8):
            k(f"v_readlane_b32 s38, v9, {i}\ns_add_u32 s37, s37, s38")
        k(f"s_cmp_lt_u32 s37, 256\ns_cbranch_scc1 {k.L(l)}")

    def ovf():
        k.label("ovf")
        cnt_poll()
        k("s_sub_u32 s39, s13, 32")
        for x in range(8):
            k(f"""
            v_readlane_b32 s37, v9, {x}
            s_max_u32 s37, s37, 32
            s_sub_u32 s37, s37, 32
            s_cmp_gt_u32 s12, {x}
            s_cselect_b32 s37, s37, 0
            s_add_u32 s39, s39, s37
            """)
        for x in range(8):
            k(f"""
            v_readlane_b32 s37, v9, {x}
            s_min_u32 s37, s37, 32
            s_add_u32 s13, s37, s39
            s_mov_b32 s12, {x}
            s_cmp_lt_u32 s13, 32
            s_cbranch_scc1 {k.L('role')}
            s_sub_u32 s39, s13, 32
            """)
        k(f"s_branch {k.L('end')}")
    k.deferred.append(ovf)
    k(f"s_cmp_eq_u32 s17, 0\ns_cbranch_scc1 {k.L('qkv_c')}")
    k.ctx(["H"])
    wq_dma(k, 0, 10)
    wq_dma(k, 1, 10)
    cnt_poll()
    k(f"""
    v_cmp_ne_u32 vcc, 32, v9
    s_cmp_lg_u64 vcc, 0
    s_cselect_b32 s15, 1, {FORCE_SAFE}
    """)


def phase_qkv_h(k):
    k.label("qkv_h")
    k(f"""
    v_mov_b32 v8, {L_MODE}
    v_mov_b32 v9, s15
    ds_write_b32 v8, v9
    s_waitcnt lgkmcnt(0)
    s_barrier
    """)
    k(f"""
    v_mov_b32 v8, v6
    v_mov_b32 v9, v6
    v_mov_b32 v10, v6
    v_mov_b32 v11, v6
    s_lshl_b32 s36, s16, 10
    s_add_u32 s36, s36, {L_ONES}
    v_add_u32 v12, s36, v1
    ds_write_b128 v12, v[8:11]
    s_lshl_b32 s36, s16, 12
    s_add_u32 s36, s36, {L_HAND}
    v_add_u32 v12, s36, v1
    """)
    k(f"s_cmp_lg_u32 s14, 0\ns_cbranch_scc1 {k.L('q_nt')}\ns_sleep {QSLP}")
    touch_qkv(k, 13)
    k.label("q_nt")
    kv_offsets(k, KVG)
    k(f"""
    s_lshl_b32 s43, s19, 2
    s_add_u32 s43, s43, s16
    s_lshl_b32 s43, s43, 7
    s_lshr_b32 s36, s18, 2
    s_lshl_b32 s36, s36, 2
    s_add_u32 s43, s43, s36
    s_add_u32 s43, s43, {FKV:#x}
    s_barrier
    """)
    k.stamp("kvh")
    for j in range(4):
        k(f"ds_read_b128 {vr(32+4*j,4)}, v12 offset:{j*1024}", lg=("h", j))
    for j in range(4):
        k.wait(lg=("h", j))
        if j < 2:
            k(f"buffer_store_dwordx4 {vr(32+4*j,4)}, v1, s[8:11], s{40+j} offen sc1")
        else:
            k(f"buffer_store_dwordx4 {vr(32+4*j,4)}, v30, s[8:11], s42 offen offset:{(j-2)*512} sc1")
    k.signal("s43", 8, glob=True)
    k.stamp("kvsig")


def phase_qkv_c(k):
    SR, AUG, RS, WS, AK, AV, AQ, RT, A = 8, 24, 28, 32, 64, 80, 96, 112, 128
    k.label("qkv_c")
    lda = load_x(k, XA, STA, FX, SR, A, "q_flag")
    PD = 12
    for s in range(PD):
        lda(s)
    k(f"s_barrier")
    k(f"v_mov_b32 v29, {L_MODE}\nds_read_b32 v29, v29")
    loc_offsets(k)
    k(f"""
    s_lshl_b32 s43, s12, 4
    s_add_u32 s43, s43, s19
    s_lshl_b32 s43, s43, 7
    s_and_b32 s36, s18, 7
    s_lshl_b32 s36, s36, 2
    s_add_u32 s43, s43, s36
    s_add_u32 s43, s43, {FQ:#x}
    s_waitcnt lgkmcnt(0)
    v_readfirstlane_b32 s15, v29
    """)
    k.wait(vm="st")
    k.stamp("q_st")
    stats_math(k, SR, AUG, RS, 29, "qkv")
    k(f"""
    s_lshl_b32 s36, s16, 7
    s_add_u32 s36, s36, {L_RST}
    v_and_b32 v8, 31, v0
    v_lshl_add_u32 v8, v8, 2, s36
    ds_write_b32 v8, v{RS}
    v_lshrrev_b32 v8, 5, v0
    v_lshl_add_u32 v8, v8, 4, s36
    v_mul_f32 v29, {f32(0.25*LOG2E)}, v{RS}
    s_lshl_b32 s36, s16, 12
    s_add_u32 s36, s36, {L_HAND}
    v_add_u32 v31, s36, v1
    """)
    for q in range(4):
        k(f"ds_read_b128 {vr(RT+4*q,4)}, v8 offset:{q*32}")
    ops = []
    for s in range(33):
        b = vr(A + 4 * s, 4) if s < 32 else vr(AUG, 4)
        ck, cv = ("0", "0") if s == 0 else (vr(AK, 16), vr(AV, 16))
        ops.append(dict(off=s * 3072 + 1024, vm=("a", s) if s < 32 else None,
                        mf=lambda w, b=b, c=ck: f"{MF} {vr(AK,16)}, {vr(w,4)}, {b}, {c}",
                        post=lambda s=s: lda(s + PD)))
        ops.append(dict(off=s * 3072 + 2048, mf=lambda w, b=b, c=cv: f"{MF} {vr(AV,16)}, {b}, {vr(w,4)}, {c}"))
    for s in range(33):
        b = vr(A + 4 * s, 4) if s < 32 else vr(AUG, 4)
        c = "0" if s == 0 else vr(AQ, 16)
        ops.append(dict(off=s * 3072, mf=lambda w, b=b, c=c: f"{MF} {vr(AQ,16)}, {vr(w,4)}, {b}, {c}"))
    fill = []
    R0 = 67
    for h in range(2):
        a = AK + 8 * h
        fill += [(f"v_mul_f32 v{a+r}, v{RS}, v{a+r}", 4, R0) for r in range(8)]
        fill += [(f"v_cvt_pk_bf16_f32 v{a+r}, v{a+2*r}, v{a+2*r+1}", 4, R0) for r in range(4)]
        fill += [(f"ds_write_b128 v31, {vr(a,4)} offset:{h*1024}", 4, R0, dict(lg="hw"))]
        fill += [(f"buffer_store_dwordx4 {vr(a,4)}, v1, {AS}, s40 offen offset:{h*1024}", 4, R0)]
    for h in range(2):
        a = AV + 8 * h
        fill += [(f"v_mul_f32 v{a+r}, v{RT+8*h+r}, v{a+r}", 4, R0) for r in range(8)]
        fill += [(f"v_cvt_pk_bf16_f32 v{a+r}, v{a+2*r}, v{a+2*r+1}", 4, R0) for r in range(4)]
        fill += [(f"ds_write_b128 v31, {vr(a,4)} offset:{2048+h*1024}", 4, R0, dict(lg="hw"))]
        fill += [(f"buffer_store_dwordx4 {vr(a,4)}, v30, {AS}, s42 offen offset:{h*512}", 4, R0)]

    def bkv():
        k.wait(lg="hw")
        k("s_barrier")
    fill += [("s_nop 0", 100, R0), ("s_nop 0", 100, R0), (bkv, 4, R0)]
    rest = gemm_stream(k, ops, WS, fill, 20)
    assert not rest
    k.stamp("q_mf")
    for h in range(2):
        a = AQ + 8 * h
        for r in range(8):
            k(f"v_mul_f32 v{a+r}, v29, v{a+r}")
        for r in range(4):
            k(f"v_cvt_pk_bf16_f32 v{a+r}, v{a+2*r}, v{a+2*r+1}")
        k(f"buffer_store_dwordx4 {vr(a,4)}, v1, {AS}, s44 offen offset:{h*1024}")
    k.signal("s43", 8)
    k.stamp("q_sig")


def phase_att(k):
    Q, KR, VR, P, S, O = 12, 20, 28, 44, 60, 92
    k.label("att")
    k.ctx(["C", "H"])
    k(f"""
    s_lshl_b32 s36, s12, 4
    s_add_u32 s36, s36, s19
    s_lshl_b32 s36, s36, 7
    s_add_u32 s36, s36, {FQ:#x}
    v_and_b32 v8, 7, v0
    v_lshlrev_b32 v8, 2, v8
    s_lshl_b32 s38, s12, 3
    s_lshl_b32 s39, s16, 1
    s_add_u32 s38, s38, s39
    s_add_u32 s33, s38, s17
    s_lshl_b32 s39, s13, 10
    s_add_u32 s39, s39, {RQ:#x}
    s_mul_i32 s37, s33, {RBS}
    s_add_u32 s37, s37, s39
    s_xor_b32 s38, s33, 1
    s_mul_i32 s38, s38, {RBS}
    s_add_u32 s38, s38, s39
    s_lshl_b32 s41, s12, 3
    s_add_u32 s41, s41, s3
    s_mul_i32 s41, s41, {RBS}
    s_add_u32 s41, s41, s39
    s_add_u32 s41, s41, 0x8000
    s_add_u32 s42, s41, 0x8000
    s_lshl_b32 s39, s17, 13
    s_lshl_b32 s40, s16, 10
    s_add_u32 s39, s39, s40
    s_add_u32 m0, s39, {L_P0}
    s_lshl_b32 s40, s13, 17
    """)
    k.poll(8, "s36", 9)
    k.stamp("a_flag")
    k(f"""
    buffer_load_dwordx4 v1, {AS}, s41 offen sc1 lds
    s_add_u32 m0, m0, 4096
    buffer_load_dwordx4 {vr(Q,4)}, v1, {AS}, s37 offen sc1
    buffer_load_dwordx4 v1, {AS}, s42 offen sc1 lds
    buffer_load_dwordx4 {vr(Q+4,4)}, v1, {AS}, s38 offen sc1
    s_add_u32 s50, s37, {RO-RQ:#x}
    s_lshl_b32 s39, s17, 13
    s_add_u32 s39, s39, {L_P0}
    v_add_u32 v8, s39, v1
    v_and_b32 v9, 0x1ff, v2
    v_add_u32 v10, {L_ONES}, v9
    s_add_u32 s39, s39, 4096
    v_add_u32 v9, s39, v9
    v_and_b32 v124, 16, v0
    v_cmp_ne_u32 vcc, 0, v124
    v_cndmask_b32 v9, v9, v10
    v_mov_b32 v10, 0x4000
    v_cndmask_b32 v10, v10, 0, vcc
    s_lshl_b32 s43, s19, 2
    s_add_u32 s43, s43, s16
    s_lshl_b32 s43, s43, 7
    s_add_u32 s43, s43, {FKV:#x}
    v_and_b32 v124, 15, v0
    v_lshlrev_b32 v124, 2, v124
    """)
    k(f"""
    s_and_b32 s36, s16, 1
    s_lshl_b32 s36, s36, 10
    s_mul_i32 s44, s21, {WO_CT}
    s_add_u32 s44, s44, {WOF:#x}
    s_add_u32 s44, s44, s36
    s_add_u32 s45, s44, 2048
    s_movk_i32 s46, 4096
    s_mul_i32 s47, s21, {W2_CT}
    s_mul_i32 s48, s16, {28*2048}
    s_add_u32 s47, s47, s48
    s_add_u32 s47, s47, {W2F:#x}
    s_add_u32 s48, s47, s36
    s_xor_b32 s36, s36, 1024
    s_add_u32 s49, s47, s36
    s_cmp_eq_u32 s17, 0
    s_cselect_b32 s44, s44, s48
    s_cselect_b32 s45, s45, s49
    s_cselect_b32 s46, s46, 2048
    s_mul_i32 s36, s19, {W1_CT}
    s_add_u32 s36, s36, {W1F:#x}
    v_add_u32 v125, s36, v1
    s_waitcnt vmcnt(0)
    s_barrier
    """)
    k.stamp("a_b0")

    def rdk(t):
        k(f"ds_read_b128 {vr(KR+4*(t&1),4)}, v8 offset:{(t&3)*1024}")

    def rdv(t):
        for h in range(2):
            k(f"ds_read_b128 {vr(VR+8*(t&1)+4*h,4)}, v9 offset:{(t&3)*1024+h*512}")

    def smf(u):
        k(f"{MF} {vr(S+16*(u&1),16)}, {vr(KR+4*((u>>1)&1),4)}, {vr(Q+4*(u&1),4)}, 0")

    def pv(u, h, zero=False):
        o = vr(O + 16 * (u & 1), 16)
        k(f"{MF} {o}, {vr(VR+8*((u>>1)&1)+4*h,4)}, {vr(P+8*(u&1)+4*h,4)}, {'0' if zero else o}")

    def segment(nb, zero, extra):
        rdk(0)
        rdk(1)
        rdv(0)
        k("s_waitcnt lgkmcnt(3)")
        smf(0)
        for u in range(nb):
            x = extra(u)
            i = u >> 1
            if x.get("pre"):
                x["pre"]()
            if u & 1:
                k("s_waitcnt lgkmcnt(0)")
            if u + 1 < nb:
                smf(u + 1)
            if u & 1:
                if 2 * (i + 2) < nb:
                    if (i + 2) & 3 == 0:
                        k("v_add_u32 v8, 0x4000, v8")
                    rdk(i + 2)
                if 2 * (i + 1) < nb:
                    if (i + 1) & 3 == 0:
                        k("v_add_u32 v9, v10, v9")
                    rdv(i + 1)
            s, p = S + 16 * (u & 1), P + 8 * (u & 1)
            ex = [f"v_exp_f32 v{s+r}, v{s+r}" for r in range(16)]
            cv = [f"v_cvt_pk_bf16_f32 v{p+r}, v{s+2*r}, v{s+2*r+1}" for r in range(8)]
            k("\n".join(ex[:4]))
            if u:
                pv(u - 1, 0, zero and u <= 2)
            k("\n".join(ex[4:8] + cv[:2]))
            if u:
                pv(u - 1, 1)
            if x.get("mid"):
                x["mid"]()
            k("\n".join(ex[8:] + cv[2:]))
        pv(nb - 1, 0)
        pv(nb - 1, 1)

    k(f"""
    buffer_load_dword v126, v124, s[8:11], s43 offen sc1
    s_add_u32 s40, s40, {KVG:#x}
    s_add_u32 s41, s12, s17
    s_add_u32 s41, s41, 1
    s_and_b32 s41, s41, 7
    s_lshl_b32 s41, s41, 14
    s_add_u32 s41, s41, s40
    s_lshl_b32 s42, s16, 10
    s_add_u32 s41, s41, s42
    s_lshl_b32 s55, s17, 14
    s_add_u32 s42, s42, s55
    s_add_u32 s42, s42, 0x4000
    s_mov_b32 s55, 0
    """, vm="skip")

    def kv12():
        k("s_mov_b32 m0, s42")
        for j in range(4):
            k("buffer_load_dwordx4 v1, s[8:11], s41 offen sc1 lds", vm="skip")
            if j < 3:
                k("s_add_u32 m0, m0, 4096\ns_add_u32 s41, s41, 4096")

    def early():
        k(f"""
        s_waitcnt vmcnt(0)
        v_cmp_ne_u32 vcc, 1, v126
        s_cbranch_vccnz {k.L('a_late')}
        s_mov_b32 s55, 1
        """)
        kv12()
        k.label("a_late")
    segment(8, True, lambda u: {"pre": early} if u == EARLY else {})
    k.stamp("a_segA")
    k(f"s_cmp_eq_u32 s55, 0\ns_cbranch_scc1 {k.L('a_poll')}")
    k.label("a_polled")

    def late():
        k.label("a_poll")
        k.poll(124, "s43", 126, acquire=False)
        kv12()
        k(f"s_branch {k.L('a_polled')}")
    k.deferred.append(late)
    for r in "CH":
        k.paths[r][0].append(("kv", 2))
    k(f"v_add_u32 v8, {(16384 - L_P0) & 0xffffffff:#x}, v8\nv_mad_i32_i24 v9, v10, -7, v9")
    k(f"""
    s_mul_i32 s51, s18, {112*1024}
    s_mul_i32 s52, s19, {7*1024}
    s_add_u32 s51, s51, s52
    s_add_u32 s51, s51, {RH:#x}
    s_add_u32 s52, s51, 3584
    s_add_u32 s53, s22, {XB:#x}
    s_add_u32 s54, s23, {STB:#x}
    v_mul_u32_u24 v11, 56, v0
    v_mov_b32 v124, v11
    s_cmp_eq_u32 s17, 0
    s_cselect_b32 s51, s53, s51
    s_cselect_b32 s52, s54, s52
    s_cselect_b64 exec, -1, 0
    v_lshlrev_b32 v11, 5, v0
    v_mov_b32 v124, v5
    s_mov_b64 exec, -1
    """)
    k(f"s_cbranch_scc0 {k.L('a_now')}\ns_waitcnt vmcnt(0)")
    k.label("a_now")
    k("s_barrier")
    k.stamp("a_b1")

    side = {}

    def pfl(j):
        k(f"buffer_load_dwordx4 {vr(128+4*j,4)}, v2, s[4:7], s{44+(j&1)} offen")
        k(f"s_add_u32 s{44+(j&1)}, s{44+(j&1)}, s46")

    def w1d(reg, j):
        if j == 0:
            k(f"s_lshl_b32 s36, s3, 11\ns_add_u32 m0, s36, {reg*16384}")
        k(f"buffer_load_dwordx4 v125, s[4:7], m0 offen offset:{j*1024} lds")

    def kvd(p, j):
        if j == 0:
            k(f"""
            s_add_u32 s41, s12, {p}
            s_and_b32 s41, s41, 7
            s_lshl_b32 s41, s41, 14
            s_add_u32 s41, s41, s40
            s_add_u32 m0, s42, {p*16384}
            """)
        k(f"buffer_load_dwordx4 v1, s[8:11], s41 offen offset:{j*1024} sc1 lds", vm=("kv", p))
    k("s_lshl_b32 s42, s3, 11\ns_add_u32 s40, s40, s42")
    qa = [lambda j=j: pfl(j) for j in range(32)]
    for p in range(3, 8):
        for j in range(2):
            side[8 * (p - 3) + KV0 + j] = lambda p=p, j=j: kvd(p, j)
    for r in range(6):
        for j in range(2):
            side[8 * r + 6 + j] = lambda r=r, j=j: w1d(r, j)
    for u in range(PF0, 56):
        if u not in side and qa:
            side[u] = qa.pop(0)
    assert not qa

    def extra(u):
        d = {}
        if u & 7 == 5 and u < 48:
            def pre(p=(u >> 3) + 2):
                k.wait(vm=("kv", p))
                k("s_barrier")
            d["pre"] = pre
        if u in side:
            d["mid"] = side[u]
        if TOUCH and u in (40, 42, 44):
            a, so = {40: ("v1", "s50"), 42: ("v11", "s51"), 44: ("v124", "s52")}[u]
            d["pre"] = lambda: k(f"buffer_load_dword v126, {a}, {AS}, {so} offen sc1")
        return d
    segment(56, False, extra)
    k.stamp("a_segB")
    k(f"""
    s_mul_i32 s36, s3, 2560
    s_add_u32 s36, s36, {L_CMB}
    v_add_u32 v8, s36, v1
    v_lshlrev_b32 v9, 2, v0
    v_add_u32 v10, s36, v9
    s_xor_b32 s37, s3, 4
    s_mul_i32 s37, s37, 2560
    s_add_u32 s37, s37, {L_CMB}
    v_add_u32 v11, s37, v1
    v_add_u32 v9, s37, v9
    s_lshl_b32 s39, s33, 7
    s_lshl_b32 s41, s13, 2
    s_add_u32 s39, s39, s41
    s_add_u32 s39, s39, {FO:#x}
    s_mov_b32 s41, {f32(2.0**-60)}
    ds_write_b128 v8, {vr(O+16,4)}
    ds_write_b128 v8, {vr(O+20,4)} offset:1024
    ds_write_b32 v10, v{O+24} offset:2048
    s_waitcnt lgkmcnt(0)
    s_barrier
    ds_read_b32 v{O+24}, v9 offset:2048
    ds_read_b128 {vr(O+16,4)}, v11
    ds_read_b128 {vr(O+20,4)}, v11 offset:1024
    s_waitcnt lgkmcnt(2)
    v_add_f32 v{O+8}, v{O+8}, v{O+24}
    v_cmp_gt_f32 vcc, {f32(2.0**60)}, v{O+8}
    v_cmp_lt_f32 s[36:37], s41, v{O+8}
    v_rcp_f32 v11, v{O+8}
    s_and_b64 s[36:37], s[36:37], vcc
    s_cmp_eq_u64 s[36:37], exec
    s_waitcnt lgkmcnt(0)
    s_cbranch_scc0 {k.L('a_fb')}
    """)
    for r in range(8):
        k(f"v_add_f32 v{O+r}, v{O+r}, v{O+16+r}")
    k.label("a_out")
    for r in range(8):
        k(f"v_mul_f32 v{O+r}, v11, v{O+r}")
    for r in range(4):
        k(f"v_cvt_pk_bf16_f32 v{P+r}, v{O+2*r}, v{O+2*r+1}")
    k(f"buffer_store_dwordx4 {vr(P,4)}, v1, {AS}, s50 offen")
    k.signal("s39", 8)
    k.stamp("a_sig")

    def fb():
        C = S + 16
        k.label("a_fb")
        k(f"""
        s_lshl_b32 s40, s13, 17
        s_add_u32 s40, s40, {KVG:#x}
        s_mov_b32 s41, 0
        v_mov_b32 v11, 0xff7fffff
        """)
        k.label("a_fb1")
        k(f"""
        s_lshr_b32 s36, s41, 2
        s_lshl_b32 s36, s36, 12
        s_lshl_b32 s37, s41, 10
        s_add_u32 s36, s36, s37
        s_add_u32 s36, s36, s40
        buffer_load_dwordx4 {vr(KR,4)}, v1, s[8:11], s36 offen sc1
        s_waitcnt vmcnt(0)
        {MF} {vr(S,16)}, {vr(KR,4)}, {vr(Q,4)}, 0
        """, vm="skip")
        for r in range(8):
            k(f"v_max3_f32 v11, v11, v{S+2*r}, v{S+2*r+1}")
        k(f"""
        s_add_u32 s41, s41, 1
        s_cmp_lt_u32 s41, 64
        s_cbranch_scc1 {k.L('a_fb1')}
        v_mov_b32 v10, v11
        v_permlane32_swap_b32 v10, v11
        v_max_f32 v11, v10, v11
        v_and_b32 v9, 0x1ff, v2
        v_add_u32 v9, 4096, v9
        v_and_b32 v10, 16, v0
        v_cmp_ne_u32 vcc, 0, v10
        s_mov_b32 s41, 0
        """)
        for r in range(16):
            k(f"v_sub_f32 v{C+r}, 0, v11\nv_mov_b32 v{O+r}, 0")
        k.label("a_fb2")
        k(f"""
        s_lshr_b32 s36, s41, 2
        s_lshl_b32 s36, s36, 12
        s_lshl_b32 s37, s41, 10
        s_add_u32 s36, s36, s37
        s_add_u32 s36, s36, s40
        buffer_load_dwordx4 {vr(KR,4)}, v1, s[8:11], s36 offen sc1
        buffer_load_dwordx4 {vr(VR,4)}, v9, s[8:11], s36 offen sc1
        buffer_load_dwordx4 {vr(VR+4,4)}, v9, s[8:11], s36 offen offset:512 sc1
        s_waitcnt vmcnt(0)
        {MF} {vr(S,16)}, {vr(KR,4)}, {vr(Q,4)}, {vr(C,16)}
        """, vm="skip")
        for r in range(8):
            k(f"v_cndmask_b32 v{VR+r}, v{VR+r}, v6")
        for r in range(16):
            k(f"v_exp_f32 v{S+r}, v{S+r}")
        for r in range(8):
            k(f"v_cvt_pk_bf16_f32 v{P+r}, v{S+2*r}, v{S+2*r+1}")
        for h in range(2):
            k(f"{MF} {vr(O,16)}, {vr(VR+4*h,4)}, {vr(P+4*h,4)}, {vr(O,16)}")
        k(f"""
        s_add_u32 s41, s41, 1
        s_cmp_lt_u32 s41, 64
        s_cbranch_scc1 {k.L('a_fb2')}
        v_rcp_f32 v11, v{O+8}
        s_nop 1
        s_branch {k.L('a_out')}
        """)
    k.deferred.append(fb)


def phase_wo(k):
    ACC, RES, WS = 64, 80, 32
    k(f"""
    s_lshl_b32 s36, s3, 11
    s_add_u32 s37, s22, {XA:#x}
    buffer_load_dwordx4 {vr(RES,4)}, v1, {AS}, s37 offen sc1
    buffer_load_dwordx4 {vr(RES+4,4)}, v1, {AS}, s37 offen offset:1024 sc1
    s_add_u32 m0, s36, {L_OB}
    v_bfe_u32 v8, v0, 2, 1
    v_and_b32 v9, 3, v0
    v_lshlrev_b32 v8, 7, v8
    v_lshl_add_u32 v8, v9, 5, v8
    s_lshl_b32 s36, s20, 7
    s_lshl_b32 s37, s3, 2
    s_add_u32 s36, s36, s37
    s_add_u32 s36, s36, {FO:#x}
    s_mul_i32 s37, s20, {RBS}
    s_lshl_b32 s38, s3, 10
    s_add_u32 s37, s37, s38
    s_add_u32 s37, s37, {RO:#x}
    s_add_u32 s38, s37, {RBS-1024}
    s_lshr_b32 s39, s16, 1
    s_lshl_b32 s39, s39, 10
    s_add_u32 s39, s39, {L_OB}
    v_add_u32 v10, s39, v1
    s_barrier
    """)
    k.poll(8, "s36", 9)
    k.stamp("w_flag")
    for j in range(4):
        k(f"buffer_load_dwordx4 v1, {AS}, s37 offen sc1 lds", vm=("o", j))
        k(f"buffer_load_dwordx4 v1, {AS}, s38 offen offset:1024 sc1 lds", vm=("o", j))
        if j < 3:
            k("s_add_u32 m0, m0, 16384\ns_add_u32 s37, s37, 8192\ns_add_u32 s38, s38, 8192")
    k(f"s_cmp_lg_u32 s17, 0\ns_cbranch_scc1 {k.L('wo_h')}")
    k.ctx(["C"])
    unpack(k, ACC, RES)

    def bar(j):
        k.wait(vm=("o", j))
        k("s_barrier")
    AH = 5
    ops = []
    for s in range(32):
        ops.append(dict(off=s * 2048, mf=lambda w, s=s: f"{MF} {vr(ACC,16)}, {vr(128+4*s,4)}, {vr(w,4)}, {vr(ACC,16)}"))
    ops[0]["pre"] = lambda: bar(0)
    for j in (1, 2, 3):
        ops[8 * j - AH]["pre"] = lambda j=j: bar(j)
    ops[31]["post"] = lambda: k("s_barrier")
    gemm_stream(k, ops, WS, [], 0, ahead=AH, areg="v10")
    k.stamp("w_mf")
    tile_epilogue(k, ACC, XB, STB, F1, 8)
    k.stamp("w_sig")


def phase_up(k):
    SR, AUG, RS, WS, ACC, A = 8, 24, 28, 32, 64, 128
    lda = load_x(k, XB, STB, F1, SR, A, "u_flag")
    PD = 12
    for s in range(PD):
        lda(s)
    c0 = -2.0 * math.sqrt(2.0 / math.pi) * LOG2E
    c1 = c0 * 0.044715
    k(f"""
    s_mul_i32 s40, s18, {112*1024}
    s_mul_i32 s41, s19, {7*1024}
    s_add_u32 s40, s40, s41
    s_add_u32 s40, s40, {RH:#x}
    s_add_u32 s41, s40, 4096
    s_lshl_b32 s43, s18, 7
    s_lshl_b32 s36, s19, 2
    s_add_u32 s43, s43, s36
    s_add_u32 s43, s43, {FH:#x}
    """)
    k.wait(vm="st")
    k.stamp("u_st")
    stats_math(k, SR, AUG, RS, 29, "w1")
    k(f"""
    v_mov_b32 v31, v{SR+6}
    v_mul_f32 v29, {f32(c0)}, v{RS}
    v_mul_f32 v30, v{RS}, v{RS}
    v_mul_f32 v30, v30, v{RS}
    v_mul_f32 v30, {f32(c1)}, v30
    """)
    ops = []

    def op(s, t, **kw):
        b = vr(A + 4 * s, 4) if s < 32 else vr(AUG, 4)
        c = "0" if s == 0 else vr(ACC + 16 * t, 16)
        ops.append(dict(off=s * 3584 + t * 1024, mf=lambda w: f"{MF} {vr(ACC+16*t,16)}, {vr(w,4)}, {b}, {c}", **kw))
    for s in range(33):
        op(s, 0, vm=("a", s) if s < 32 else None, post=lambda s=s: lda(s + PD))
        op(s, 1)
    for t in (2, 3):
        for s in range(33):
            op(s, t)
    ops[48]["pre"] = lambda: k("s_barrier")
    ops[-1]["post"] = lambda: k("s_barrier")
    fill = []
    for u in range(7):
        a, T = ACC + 8 * u, 8 + (u & 1) * 8
        rdy = 67 if u < 4 else (100 if u < 6 else 1000)
        R = range(8)
        fill += [(f"v_mul_f32 v{T+r}, v{a+r}, v{a+r}", 4, rdy) for r in R]
        fill += [(f"v_fma_f32 v{T+r}, v{T+r}, v30, v29", 4, rdy) for r in R]
        fill += [(f"v_mul_f32 v{T+r}, v{T+r}, v{a+r}", 4, rdy) for r in R]
        fill += [(f"v_exp_f32 v{T+r}, v{T+r}", 8, rdy) for r in R]
        fill += [(f"v_fma_f32 v{T+r}, v{T+r}, v31, v31", 4, rdy) for r in R]
        fill += [(f"v_rcp_f32 v{T+r}, v{T+r}", 8, rdy) for r in R]
        fill += [(f"v_mul_f32 v{a+r}, v{T+r}, v{a+r}", 4, rdy) for r in R]
        fill += [(f"v_cvt_pk_bf16_f32 v{a+r}, v{a+2*r}, v{a+2*r+1}", 4, rdy) for r in range(4)]
        fill += [(f"buffer_store_dwordx4 {vr(a,4)}, v1, {AS}, s{40+(u>>2)} offen offset:{(u&3)*1024}", 4, rdy)]
    rest = gemm_stream(k, ops, WS, fill, UPB)
    k.stamp("u_mf")
    flush_fill(k, rest)
    k.signal("s43", 8)
    k.stamp("u_sig")
    k.stamp_flush(8)
    k(f"""
    s_cmp_lg_u32 s14, 0
    s_cbranch_scc1 {k.L('end')}
    s_mov_b32 s14, 1
    s_add_u32 s8, s8, {LSTRIDE:#x}
    s_addc_u32 s9, s9, 0
    s_add_u32 s56, s56, {ASTRIDE:#x}
    s_addc_u32 s57, s57, 0
    """)
    k("s_barrier")
    k.stamp("start")
    wq_dma(k, 0, 10)
    wq_dma(k, 1, 10)
    k(f"s_branch {k.L('qkv_c')}")


def phase_dn(k):
    ACC, W = 64, 128
    k.label("wo_h")
    k.ctx(["H"])
    for j in range(4):
        k.wait(vm=("o", j))
        k("s_barrier")
    k(f"""
    s_mul_i32 s36, s16, 5120
    s_add_u32 m0, s36, 98304
    s_mul_i32 s40, s16, 12288
    s_add_u32 s41, s40, {L_Y}
    s_add_u32 s40, s40, {L_X}
    s_add_u32 s36, s47, {16*2048}
    s_sub_u32 s36, s36, s40
    v_add_u32 v8, s36, v1
    s_add_u32 s36, s47, {22*2048}
    s_sub_u32 s36, s36, s41
    v_add_u32 v9, s36, v1
    s_barrier
    """)
    k.dma_lin(125, "s[4:7]", 5, vm="w1")
    k("s_add_u32 m0, s40, 4096")
    k.dma_lin(8, "s[4:7]", 8)
    k(f"""
    s_add_u32 s37, s22, {XB:#x}
    s_and_b32 s38, s22, 0x7fff
    s_lshr_b32 s38, s38, 5
    v_lshrrev_b32 v10, 5, v0
    v_lshlrev_b32 v10, 3, v10
    """)
    for g in range(4):
        k(f"buffer_load_dwordx2 {vr(24+2*g,2)}, v10, s[24:27], s38 offen offset:{g*16}", vm="b2")
    k.wait(vm="w1")
    k("s_barrier")
    k(f"buffer_load_dwordx4 {vr(16,4)}, v1, {AS}, s37 offen sc1", vm="res")
    k(f"buffer_load_dwordx4 {vr(20,4)}, v1, {AS}, s37 offen offset:1024 sc1", vm="res")
    k(f"""
    s_and_b32 s36, s16, 1
    s_lshl_b32 s36, s36, 10
    v_add_u32 v10, s36, v2
    v_xor_b32 v11, 0x400, v10
    s_lshl_b32 s36, s20, 7
    s_lshl_b32 s37, s16, 4
    s_add_u32 s36, s36, s37
    s_add_u32 s36, s36, {FH:#x}
    s_lshr_b32 s37, s16, 1
    s_xor_b32 s38, s37, 1
    s_add_u32 s37, s37, s20
    s_add_u32 s38, s38, s20
    s_mul_i32 s37, s37, {112*1024}
    s_mul_i32 s38, s38, {112*1024}
    s_mul_i32 s39, s16, {28*1024}
    s_add_u32 s39, s39, {RH:#x}
    s_add_u32 s37, s37, s39
    s_add_u32 s38, s38, s39
    v_add_u32 v124, s41, v10
    v_add_u32 v125, s41, v11
    v_bfe_u32 v12, v0, 2, 1
    v_and_b32 v13, 3, v0
    v_lshlrev_b32 v12, 7, v12
    v_lshl_add_u32 v12, v13, 2, v12
    """)
    k.wait(vm="res")
    unpack(k, ACC, 16)
    unpack(k, ACC, 24, 14, add=True)
    k("s_mov_b32 m0, s40")
    k("s_barrier")
    k.dma_lin(8, "s[4:7]", 4)
    k("s_mov_b32 m0, s41")
    k.dma_lin(9, "s[4:7]", 12)
    k.poll(12, "s36", 13)
    k.stamp("d_flag")
    k("v_mov_b32 v8, v124\nv_mov_b32 v9, v125")
    free = list(range(12, 64, 4))
    steps = [(1, i) for i in range(28)] + [(0, i) for i in list(range(16, 28)) + list(range(16))]
    hreg, wreg = {}, {}
    nh, nw = [0], [0]
    wsteps = [n for n, (m, i) in enumerate(steps) if i >= 16]

    def ldh():
        n = nh[0]
        m, i = steps[n]
        r = free.pop(0)
        hreg[n] = r
        if i & 3 == 0:
            k(f"s_add_u32 s39, s{37+m}, {(i>>2)*4096}")
        k(f"buffer_load_dwordx4 {vr(r,4)}, v1, {AS}, s39 offen offset:{(i&3)*1024} sc1", vm=("h", n))
        nh[0] += 1

    def ldw():
        n = wsteps[nw[0]]
        i = steps[n][1]
        off = (i - 22) * 2048 if i >= 22 else (i - 16) * 2048 + L_X - L_Y
        wreg[n] = (free.pop(0), free.pop(0))
        for a in range(2):
            k(f"ds_read_b128 {vr(wreg[n][a],4)}, v{8+a} offset:{off}", lg=("w", n))
        nw[0] += 1

    def refill(n, cap):
        while nw[0] < len(wsteps) and wsteps[nw[0]] <= n + 2 and len(free) >= 2:
            ldw()
        resv = 2 if nw[0] < len(wsteps) and wsteps[nw[0]] <= n + 3 else 0
        c = 0
        while nh[0] < len(steps) and len(free) > resv and c < cap:
            ldh()
            c += 1

    def mf(n, a):
        m, i = steps[n]
        w = wreg[n][a] if i >= 16 else W + 8 * i + 4 * a
        t = ACC + 16 * (2 * m + a)
        first = (n == 0) or (n == 28 and a == 1)
        k(f"{MF} {vr(t,16)}, {vr(w,4)}, {vr(hreg[n],4)}, {'0' if first else vr(t,16)}")
    k("v_add_u32 v10, s40, v1")
    wr = [(a, q) for a in (2, 3) for q in range(4)]
    refill(-1, 99)
    NS = 4
    for n in range(56 - NS):
        m, i = steps[n]
        k.wait(vm=("h", n), lg=("w", n) if i >= 16 else None)
        mf(n, 0)
        refill(n, 1)
        mf(n, 1)
        free.append(hreg[n])
        if i >= 16:
            free += list(wreg[n])
        elif m == 0:
            free += [W + 8 * i, W + 8 * i + 4]
        refill(n, 2)
        if n >= 36 and wr:
            a, q = wr.pop(0)
            k(f"ds_write_b128 v10, {vr(ACC+16*a+4*q,4)} offset:{(a-1)*4096+q*1024}")
    assert not wr and nh[0] == 56
    for a in (1, 2, 3):
        k(f"s_xor_b32 s36, s16, {a}\ns_mul_i32 s36, s36, 12288\ns_add_u32 s36, s36, {L_X+(a-1)*4096}\nv_add_u32 v{96+a}, s36, v1")
    for n in range(56 - NS, 56):
        k.wait(vm=("h", n))
        mf(n, 1)
    mf(56 - NS, 0)
    mf(57 - NS, 0)
    for q in range(4):
        k(f"ds_write_b128 v10, {vr(ACC+16+4*q,4)} offset:{q*1024}")
        if q + 2 < NS:
            mf(58 - NS + q, 0)
    k("s_waitcnt lgkmcnt(0)\ns_barrier")
    k.stamp("d_mf")
    for a in (1, 2, 3):
        for q in range(4):
            k(f"ds_read_b128 {vr(16*a+4*q,4)}, v{96+a} offset:{q*1024}", lg=("p", a))
    for a in (1, 2, 3):
        k.wait(lg=("p", a))
        for r in range(16):
            k(f"v_add_f32 v{ACC+r}, v{ACC+r}, v{16*a+r}")
    k(f"s_cmp_lg_u32 s14, 0\ns_cbranch_scc1 {k.L('final')}")
    tile_epilogue(k, ACC, XA + ASTRIDE, STA + ASTRIDE, FX + LSTRIDE, 8)
    k.stamp("d_sig")
    k.stamp_flush(8)
    k(f"""
    s_mov_b32 s14, 1
    s_add_u32 s8, s8, {LSTRIDE:#x}
    s_addc_u32 s9, s9, 0
    s_add_u32 s56, s56, {ASTRIDE:#x}
    s_addc_u32 s57, s57, 0
    """)
    k.stamp("start")
    k(f"s_branch {k.L('qkv_h')}")
    k.label("final")
    O = 16
    for r in range(8):
        k(f"v_cvt_pk_bf16_f32 v{O+r}, v{ACC+2*r}, v{ACC+2*r+1}")
    k(f"""
    s_and_b32 s36, s22, 0x7fff
    s_sub_u32 s37, s22, s36
    s_lshr_b32 s36, s36, 5
    s_add_u32 s36, s36, s37
    v_and_b32 v8, 31, v0
    v_lshrrev_b32 v9, 5, v0
    v_lshlrev_b32 v8, 10, v8
    v_lshl_add_u32 v8, v9, 4, v8
    v_permlane32_swap_b32 v{O}, v{O+2}
    v_permlane32_swap_b32 v{O+1}, v{O+3}
    v_permlane32_swap_b32 v{O+4}, v{O+6}
    v_permlane32_swap_b32 v{O+5}, v{O+7}
    buffer_store_dwordx4 {vr(O,4)}, v8, s[28:31], s36 offen
    buffer_store_dwordx4 {vr(O+4,4)}, v8, s[28:31], s36 offen offset:32
    """)
    if PROF:
        k("s_waitcnt vmcnt(0)")
    k.stamp("d_sig")
    k.stamp_flush(8)


UPB = 20


def gen_mega():
    k = MK("mega_kernel", 256, 512, 163840, vgpr=256)
    prologue(k)
    phase_qkv_h(k)
    k(f"s_branch {k.L('att')}")
    k.ctx(["C"])
    phase_qkv_c(k)
    phase_att(k)
    phase_wo(k)
    phase_up(k)
    phase_dn(k)
    k.label("end")
    k("s_endpgm")
    i = 0
    while i < len(k.deferred):
        k.deferred[i]()
        i += 1
    return k


def main(path):
    ks = [gen_prep(), gen_mega()]
    hdr = ["; 2 x (MHA block + channel MLP) for gfx950; generated by gen/gen2.py",
           "; kernarg: x,wqkv,wo,(unused),w1,b1,w2,b2,out,debug,ws"]
    emit_file(path, hdr, ["prep_kernel", "mega_kernel"], ks)
    if PROF:
        import json
        json.dump(STAMPS, open(path + ".stamps", "w"))
    return ks


if __name__ == "__main__":
    main(sys.argv[1] if len(sys.argv) > 1 else "v2.s")
```

```python
import sys, math, struct, os
sys.path.insert(0, "gen")
from asmlib import *

ALIAS = int(os.environ.get("ALIAS", "1"))
LSTRIDE = 0x500000
FLG, KVG, PROFB = 0x0, 0x10000, 0x410000
FX, FQ, FKV, FO, F1, FH = (FLG + o for o in (0, 0x2000, 0x6000, 0x8000, 0xA000, 0xC000))
BA, FWR, FWS, FR2, FDN = 0, 0x1000, 0x1400, 0x1800, 0x1c00
WBASE = 0xF00000
WQF, W1F, WOF, W2F = 0x000000, 0x190000, 0x360000, 0x3E0000
WWSZ = 0x600000
ABASE = WBASE + WWSZ
RBS = 112 * 1024
if ALIAS:
    XA = XB = 0
    STA = STB = 0x200000
    RQ = RO = RH = 0x240000
    ASTRIDE = 0
    ASZ = 0x940000
else:
    XA, XB, STA, STB = 0, 0x200000, 0x400000, 0x440000
    RQ, RO, RH = 0x500000, 0xC00000, 0x1300000
    ASTRIDE = 0x1A00000
    ASZ = 2 * ASTRIDE
WSZ = ABASE + ASZ + ASTRIDE
WQ_CT = 33 * 3072
W1_CT = 33 * 3584
WO_CT = 32 * 2048
W2_CT = 113 * 2048
ONES = "0x3f803f80"
EPS = 1e-5
LOG2E = 1.4426950408889634
AS = "s[56:59]"


def f32(x):
    return "0x%08x" % struct.unpack("<I", struct.pack("<f", x))[0]


def vr(b, n):
    return f"v[{b}:{b+n-1}]"


def stats_list(sreg, aug, rs, kind, summed=False):
    s = sreg
    o = []
    if not summed:
        for i in (0, 1):
            for j in (0, 4, 8, 12):
                o.append(f"v_add_f32 v{s+j+i}, v{s+j+i}, v{s+j+2+i}")
        for i in (0, 1):
            o.append(f"v_add_f32 v{s+i}, v{s+i}, v{s+4+i}")
            o.append(f"v_add_f32 v{s+8+i}, v{s+8+i}, v{s+12+i}")
        for i in (0, 1):
            o.append(f"v_add_f32 v{s+i}, v{s+i}, v{s+8+i}")
    o += f"""
    v_mov_b32 v{s+2}, v{s}
    v_mov_b32 v{s+3}, v{s+1}
    v_permlane32_swap_b32 v{s}, v{s+2}
    v_permlane32_swap_b32 v{s+1}, v{s+3}
    v_add_f32 v{s}, v{s}, v{s+2}
    v_add_f32 v{s+1}, v{s+1}, v{s+3}
    v_mul_f32 v{s}, {f32(-1.0/512)}, v{s}
    v_mul_f32 v{s+1}, {f32(1.0/512)}, v{s+1}
    v_fma_f32 v{s+1}, -v{s}, v{s}, v{s+1}
    v_max_f32 v{s+1}, 0, v{s+1}
    """.split("\n")
    if kind == "qkv":
        o.append(f"v_add_f32 v{s+1}, {f32(EPS)}, v{s+1}")
    else:
        o.append(f"v_mov_b32 v{s+2}, {f32(EPS*EPS)}")
        o.append(f"v_fmamk_f32 v{s+1}, v{s+1}, {f32(1+EPS)}, v{s+2}")
    o += f"""
    v_rsq_f32 v{rs}, v{s+1}
    v_cvt_pk_bf16_f32 v{aug+1}, v{s}, 0
    v_lshlrev_b32 v{s+5}, 16, v{aug+1}
    v_sub_f32 v{s+5}, v{s}, v{s+5}
    v_cvt_pk_bf16_f32 v{aug}, v{s}, v{s+5}
    v_cvt_pk_bf16_f32 v{aug+2}, v{s}, v{s+5}
    """.split("\n")
    if kind == "qkv":
        o.append(f"v_mov_b32 v{aug+3}, v{aug+1}")
    else:
        o += f"""
        v_mul_f32 v{s+6}, v{s+1}, v{rs}
        v_cvt_pk_bf16_f32 v{aug+1}, v{s}, v{s+6}
        v_and_b32 v{s+7}, 0xffff0000, v{aug+1}
        v_sub_f32 v{s+7}, v{s+6}, v{s+7}
        v_cvt_pk_bf16_f32 v{aug+3}, v{s}, v{s+7}
        """.split("\n")
    return [x.strip() for x in o if x.strip()]


def stats_math(k, sreg, aug, rs, kind):
    k("\n".join(stats_list(sreg, aug, rs, kind)))
```

```python
from lay4 import *

PROF = int(os.environ.get("PROF", "0"))
FORCE_SAFE = int(os.environ.get("SAFE", "0"))
FORCE_BAD = int(os.environ.get("BAD", "0"))
LIMIT = 20000
L_R0, L_QI, L_AUG = 65536, 98304, 131072
XS, WQS = "s[64:67]", "s[68:71]"
L_HAND, L_RST, L_MODE = 114688, 112640, 113664
L_P0, L_ONES, L_CMB, L_OB, L_X, L_Y = 131072, 159744, 131072, 98304, 114688, 65536
MF = "v_mfma_f32_32x32x16_bf16"
STAMPS = []
PF0 = 6
QSLP = int(os.environ.get("QSLP", "20"))
EARLY = int(os.environ.get("EARLY", "3"))
KV0 = 0
TOUCH = int(os.environ.get("TOUCH", "1"))


class MK(Kernel):
    def __init__(self, *a, **kw):
        super().__init__(*a, **kw)
        self.deferred = []
        self.uid = 0

    def u(self, p):
        self.uid += 1
        return f"{p}{self.uid}"

    def stamp(self, name):
        if not PROF:
            return
        if name not in STAMPS:
            STAMPS.append(name)
        i = STAMPS.index(name)
        self(f"s_memrealtime s[62:63]\ns_waitcnt lgkmcnt(0)\nv_writelane_b32 v7, s62, {i}")

    def stamp_flush(self, tmp):
        if not PROF:
            return
        self(f"""
        s_lshl_b32 s60, s12, 5
        s_add_u32 s60, s60, s13
        s_lshl_b32 s60, s60, 3
        s_add_u32 s60, s60, s3
        s_lshl_b32 s60, s60, 8
        s_add_u32 s60, s60, {PROFB:#x}
        v_lshlrev_b32 v{tmp}, 2, v0
        buffer_store_dword v7, v{tmp}, s[8:11], s60 offen
        """)

    def poll(self, vaddr, soff, tmp, acquire=True, boot=False, wide=False):
        l = self.u("poll")
        self("s_mov_b32 s35, 0")
        self.label(l)
        if wide:
            self(f"buffer_load_dwordx4 {vr(tmp,4)}, v{vaddr}, s[8:11], {soff} offen sc1")
        else:
            self(f"buffer_load_dword v{tmp}, v{vaddr}, s[8:11], {soff} offen sc1")
        self(f"""
        s_add_u32 s35, s35, 1
        s_cmp_gt_u32 s35, {LIMIT}
        s_cbranch_scc1 {self.L('end')}
        """)
        if boot:
            self(f"s_and_b32 s34, s35, s96\ns_cmp_eq_u32 s34, 15\ns_cbranch_scc1 {self.L(l+'s')}")
            self.deferred.append(lambda: self.slow(l))
        self("s_waitcnt vmcnt(0)")
        if wide:
            self(f"v_and_b32 v{tmp}, v{tmp}, v{tmp+1}\nv_and_b32 v{tmp+2}, v{tmp+2}, v{tmp+3}\nv_and_b32 v{tmp}, v{tmp}, v{tmp+2}")
        self(f"""
        v_cmp_ne_u32 vcc, 1, v{tmp}
        s_cbranch_vccnz {self.L(l)}
        """)
        self.label(l + "x")
        if acquire:
            self(f"s_cmp_lg_u32 s15, 0\ns_cbranch_scc1 {self.L(l+'a')}")
            self.label(l + "b")

            def d():
                self.label(l + "a")
                self(f"buffer_inv sc1\ns_waitcnt vmcnt(0)\ns_branch {self.L(l+'b')}")
            self.deferred.append(d)

    def slow(self, l):
        T = 132
        self.label(l + "s")
        self(f"""
        s_mov_b64 exec, 1
        v_mov_b32 v{T}, 1
        s_lshl_b32 s34, s12, 5
        s_add_u32 s34, s34, s13
        s_lshl_b32 s34, s34, 2
        s_add_u32 s34, s34, {FR2:#x}
        buffer_atomic_add v{T}, off, s[8:11], 0 sc1
        s_cmp_lg_u32 s3, 7
        s_cbranch_scc1 {self.L(l+'t')}
        buffer_store_dword v{T}, off, s[8:11], s34 sc1
        s_or_b32 s34, s98, 0x80
        v_mov_b32 v{T+1}, s34
        s_lshl_b32 s34, s2, 2
        s_add_u32 s34, s34, {FWS:#x}
        s_waitcnt vmcnt(0)
        buffer_store_dword v{T+1}, off, s[8:11], s34 sc1
        """, vm="skip")
        self.label(l + "t")
        self(f"""
        s_mov_b64 exec, -1
        s_movk_i32 s34, {FWS:#x}
        buffer_load_dwordx4 {vr(T,4)}, v1, s[8:11], s34 offen sc1
        s_waitcnt vmcnt(0)
        buffer_load_dwordx4 {vr(T+4,4)}, v1, s[8:11], s34 offen offset:{FR2-FWS} sc1
        v_and_b32 v{T}, v{T}, v{T+1}
        v_and_b32 v{T+2}, v{T+2}, v{T+3}
        v_and_b32 v{T}, v{T}, v{T+2}
        v_cmp_gt_u32 vcc, 0x80, v{T}
        s_waitcnt vmcnt(0)
        s_cbranch_vccnz {self.L(l)}
        v_and_b32 v{T+4}, v{T+4}, v{T+5}
        v_and_b32 v{T+6}, v{T+6}, v{T+7}
        v_and_b32 v{T+4}, v{T+4}, v{T+6}
        v_cmp_ne_u32 vcc, 1, v{T+4}
        s_cbranch_vccz {self.L(l)}
        s_mov_b32 s97, 1
        s_branch {self.L(l+'x')}
        """, vm="skip")

    def signal(self, soff, tmp, glob=False, wtag=0):
        l = self.u("sig")
        self(f"v_mov_b32 v{tmp}, 1")
        self("s_mov_b64 exec, 1")
        if glob:
            self.wait(vm=wtag)
            self(f"buffer_store_dword v{tmp}, off, s[8:11], {soff} sc1")
        else:
            self(f"s_cmp_lg_u32 s15, 0\ns_waitcnt vmcnt(0)\ns_cbranch_scc1 {self.L(l+'a')}")
            self(f"buffer_store_dword v{tmp}, off, s[8:11], {soff}")
            self.label(l + "b")

            def d():
                self.label(l + "a")
                self(f"buffer_wbl2 sc1\ns_waitcnt vmcnt(0)")
                self(f"buffer_store_dword v{tmp}, off, s[8:11], {soff} sc1", vm="skip")
                self(f"s_branch {self.L(l+'b')}")
            self.deferred.append(d)
        self("s_mov_b64 exec, -1")

    def dma_lin(self, vaddr, srd, n, vm=None):
        for j in range(n):
            if j and j % 4 == 0:
                self("s_add_u32 m0, m0, 4096")
            self(f"buffer_load_dwordx4 v{vaddr}, {srd}, m0 offen offset:{(j%4)*1024} lds", vm=vm)


def gemm_stream(k, ops, WS, fill, budget, ahead=6, areg=None):
    n = len(ops)
    issued = [0]

    def rd_upto(m):
        while issued[0] <= min(m, n - 1):
            j = issued[0]
            if ops[j].get("rd"):
                ops[j]["rd"](WS + 4 * (j % 8), ("w", j))
                issued[0] += 1
                continue
            off, a = ops[j]["off"], "v2"
            if areg:
                a = areg
            elif off >= 65536:
                off, a = off - 65536, "v3"
            k(f"ds_read_b128 {vr(WS+4*(j%8),4)}, {a} offset:{off}", lg=("w", j))
            issued[0] += 1
    fi = 0
    for j, o in enumerate(ops):
        if o.get("pre"):
            o["pre"]()
        rd_upto(j + ahead)
        k.wait(vm=o.get("vm"), lg=("w", j))
        k(o["mf"](WS + 4 * (j % 8)))
        if o.get("post"):
            o["post"]()
        b = o.get("bud", budget)
        while fi < len(fill) and fill[fi][2] <= j and b > 0:
            f = fill[fi]
            if callable(f[0]):
                f[0]()
            else:
                k(f[0], **(f[3] if len(f) > 3 else {}))
            b -= f[1]
            fi += 1
    return fill[fi:]


def flush_fill(k, fill):
    for f in fill:
        if callable(f[0]):
            f[0]()
        else:
            k(f[0], **(f[3] if len(f) > 3 else {}))


def load_x(k, xoff, stoff, flags, SR, A, name):
    k(f"""
    s_lshl_b32 s36, s18, 7
    s_add_u32 s36, s36, {flags:#x}
    v_and_b32 v8, 15, v0
    v_lshlrev_b32 v8, 2, v8
    s_lshl_b32 s37, s18, 12
    s_add_u32 s37, s37, {stoff:#x}
    s_lshl_b32 s38, s18, 15
    s_add_u32 s38, s38, {xoff:#x}
    """)
    k.poll(8, "s36", 9)
    k.stamp(name)
    for q in range(4):
        k(f"buffer_load_dwordx4 {vr(SR+4*q,4)}, v4, {AS}, s37 offen offset:{q*512} sc1", vm="st")

    def lda(s):
        if s >= 32:
            return
        k(f"buffer_load_dwordx4 {vr(A+4*s,4)}, v1, {AS}, s38 offen offset:{(s&3)*1024} sc1", vm=("a", s))
        if s & 3 == 3:
            k("s_add_u32 s38, s38, 4096")
    return lda


def tile_epilogue(k, ACC, xbase, stbase, flbase, T):
    k(f"s_add_u32 s36, s22, {xbase:#x}")
    k(f"s_add_u32 s37, s23, {stbase:#x}")
    k(f"s_add_u32 s38, s32, {flbase:#x}")
    for h in range(2):
        for r in range(4):
            k(f"v_cvt_pk_bf16_f32 v{ACC+8*h+r}, v{ACC+8*h+2*r}, v{ACC+8*h+2*r+1}")
        k(f"buffer_store_dwordx4 {vr(ACC+8*h,4)}, v1, {AS}, s36 offen offset:{h*1024}")
    for i, r in enumerate([0, 1, 2, 3, 8, 9, 10, 11]):
        k(f"v_dot2_f32_bf16 v{T}, v{ACC+r}, v6, {'0' if i==0 else f'v{T}'}")
        k(f"v_dot2_f32_bf16 v{T+1}, v{ACC+r}, v{ACC+r}, {'0' if i==0 else f'v{T+1}'}")
    k(f"""
    v_permlane32_swap_b32 v{T}, v{T+1}
    v_add_f32 v{T}, v{T}, v{T+1}
    buffer_store_dword v{T}, v5, {AS}, s37 offen
    """)
    k.signal("s38", T + 2)


def unpack(k, ACC, src, T=None, add=False):
    for r in range(8):
        if not add:
            k(f"v_lshlrev_b32 v{ACC+2*r}, 16, v{src+r}")
            k(f"v_and_b32 v{ACC+2*r+1}, 0xffff0000, v{src+r}")
        else:
            k(f"v_lshlrev_b32 v{T}, 16, v{src+r}")
            k(f"v_and_b32 v{T+1}, 0xffff0000, v{src+r}")
            k(f"v_add_f32 v{ACC+2*r}, v{ACC+2*r}, v{T}")
            k(f"v_add_f32 v{ACC+2*r+1}, v{ACC+2*r+1}, v{T+1}")


def wq_dma(k, part, tmp):
    k(f"s_mul_i32 s36, s19, {WQ_CT}")
    k(f"s_add_u32 s36, s36, {WQF:#x}")
    k(f"v_add_u32 v{tmp}, s36, v1")
    if part == 0:
        k("s_lshl_b32 m0, s16, 14")
        k.dma_lin(tmp, "s[4:7]", 16)
    else:
        k("s_mul_i32 s36, s16, 9216")
        k("s_add_u32 m0, s36, 65536")
        k.dma_lin(tmp, "s[4:7]", 9)


def kv_offsets(k, base):
    k(f"""
    s_lshl_b32 s40, s19, 18
    s_lshr_b32 s41, s18, 2
    s_lshl_b32 s41, s41, 13
    s_add_u32 s40, s40, s41
    s_lshl_b32 s41, s16, 10
    s_add_u32 s40, s40, s41
    s_add_u32 s40, s40, {base:#x}
    s_add_u32 s41, s40, 0x20000
    s_add_u32 s42, s40, 4096
    v_and_b32 v30, 0x1ff, v2
    v_bfe_u32 v31, v0, 4, 1
    v_lshl_add_u32 v30, v31, 17, v30
    """)


def loc_offsets(k):
    k(f"""
    s_mul_i32 s44, s18, {RBS}
    s_lshl_b32 s45, s19, 11
    s_add_u32 s44, s44, s45
    s_add_u32 s44, s44, {RQ:#x}
    s_add_u32 s40, s44, 0x8000
    s_add_u32 s42, s44, 0x10000
    v_and_b32 v30, 0x1ff, v2
    v_bfe_u32 v31, v0, 4, 1
    v_lshl_add_u32 v30, v31, 10, v30
    """)


def touch_qkv(k, J):
    loc_offsets(k)
    k(f"""
    v_lshlrev_b32 v30, 5, v0
    buffer_load_dword v{J}, v30, {AS}, s40 offen sc1
    buffer_load_dword v{J}, v30, {AS}, s42 offen sc1
    buffer_load_dword v{J}, v30, {AS}, s44 offen sc1
    """)


OOB = "0x80000000"
CONV_AT = int(os.environ.get("CONV", "0"))
DOTB = int(os.environ.get("DOTB", "4"))
TRD = "ds_read_b64_tr_b16"


def prologue(k):
    k(f"""
    s_cmp_ge_u32 s2, 256
    s_cbranch_scc1 {k.L('end')}
    s_load_dwordx16 s[80:95], s[0:1], 0
    s_load_dwordx2 s[8:9], s[0:1], 80
    s_load_dwordx2 s[28:29], s[0:1], 64
    s_getreg_b32 s98, hwreg(HW_REG_XCC_ID)
    s_lshr_b32 s13, s2, 3
    v_lshrrev_b32 v1, 6, v0
    v_and_b32 v0, 63, v0
    v_readfirstlane_b32 s3, v1
    s_and_b32 s98, s98, 7
    s_mov_b32 s12, s98
    s_mov_b32 s10, {3*LSTRIDE:#x}
    s_mov_b32 s11, 0x00020000
    s_mov_b32 s6, {WWSZ:#x}
    s_mov_b32 s7, 0x00020000
    s_mov_b32 s58, {ASZ:#x}
    s_mov_b32 s59, 0x00020000
    s_mov_b32 s30, {2048*1024}
    s_mov_b32 s31, 0x00020000
    s_mov_b32 s26, 1024
    s_mov_b32 s27, 0x00020000
    s_mov_b32 s66, {2048*1024}
    s_mov_b32 s67, 0x00020000
    s_mov_b32 s70, {512*3072}
    s_mov_b32 s71, 0x00020000
    s_mov_b32 s75, 0x00020000
    s_mov_b32 s79, 0x00020000
    s_mov_b32 s14, 0
    s_mov_b32 s15, {FORCE_SAFE}
    s_mov_b32 s96, 15
    s_mov_b32 s97, 0
    s_and_b32 s16, s3, 3
    s_lshr_b32 s17, s3, 2
    v_mov_b32 v7, 0
    v_lshlrev_b32 v1, 4, v0
    v_lshrrev_b32 v10, 5, v0
    v_and_b32 v11, 31, v0
    v_and_b32 v2, 15, v0
    v_lshlrev_b32 v2, 4, v2
    v_lshl_add_u32 v2, v10, 8, v2
    v_bfe_u32 v3, v0, 4, 1
    v_lshl_add_u32 v2, v3, 9, v2
    v_add_u32 v3, 0x10000, v2
    v_lshlrev_b32 v5, 4, v11
    v_lshl_add_u32 v4, v10, 11, v5
    v_lshl_add_u32 v5, v10, 2, v5
    v_mov_b32 v6, {ONES}
    """)
    if FORCE_BAD:
        k("s_cmp_eq_u32 s13, 5\ns_cselect_b32 s13, 9, s13")
    if FORCE_BAD == 2:
        k("s_min_u32 s98, s98, 6")
    k.label("role")
    k(f"""
    s_lshl_b32 s36, s12, 3
    s_and_b32 s37, s13, 1
    s_lshl_b32 s37, s37, 2
    s_add_u32 s18, s36, s37
    s_add_u32 s18, s18, s16
    s_lshr_b32 s19, s13, 1
    s_and_b32 s37, s13, 3
    s_lshl_b32 s37, s37, 1
    s_add_u32 s20, s36, s37
    s_lshr_b32 s21, s13, 2
    s_lshr_b32 s36, s16, 1
    s_add_u32 s36, s36, s20
    s_and_b32 s37, s16, 1
    s_lshl_b32 s38, s21, 1
    s_add_u32 s38, s38, s37
    s_lshl_b32 s22, s36, 15
    s_lshl_b32 s39, s38, 11
    s_add_u32 s22, s22, s39
    s_lshl_b32 s23, s36, 12
    s_lshl_b32 s39, s21, 9
    s_add_u32 s23, s23, s39
    s_lshl_b32 s39, s37, 3
    s_add_u32 s23, s23, s39
    s_lshl_b32 s32, s36, 7
    s_lshl_b32 s39, s38, 2
    s_add_u32 s32, s32, s39
    v_lshrrev_b32 v12, 2, v0
    v_mul_u32_u24 v12, 3072, v12
    v_and_b32 v13, 3, v0
    v_lshl_add_u32 v12, v13, 4, v12
    v_bfe_u32 v22, v0, 2, 2
    v_lshlrev_b32 v22, 6, v22
    v_lshl_add_u32 v22, v13, 3, v22
    v_bfe_u32 v13, v0, 4, 1
    v_lshl_add_u32 v22, v13, 5, v22
    v_lshrrev_b32 v10, 5, v0
    s_cmp_eq_u32 s96, 0
    s_waitcnt lgkmcnt(0)
    s_cbranch_scc1 {k.L('go')}
    s_mov_b32 s64, s80
    s_mov_b32 s65, s81
    s_mov_b32 s68, s82
    s_mov_b32 s69, s83
    s_add_u32 s4, s8, {WBASE:#x}
    s_addc_u32 s5, s9, 0
    s_add_u32 s56, s8, {ABASE:#x}
    s_addc_u32 s57, s9, 0
    s_mov_b32 s24, s94
    s_mov_b32 s25, s95
    s_mov_b32 s76, s90
    s_mov_b32 s77, s91
    """)
    k.label("go")
    k.stamp("start")
    k(f"s_cmp_eq_u32 s17, 0\ns_cbranch_scc1 {k.L('qkv0_c')}")


def aug_pack(k, C, T, bias=None):
    k(f"""
    v_cvt_pk_bf16_f32 v{T}, v{C}, v{C}
    v_and_b32 v{T+1}, 0xffff0000, v{T}
    v_sub_f32 v{T+1}, v{C}, v{T+1}
    v_cvt_pk_bf16_f32 v{T+1}, v{T+1}, 0
    """)
    if bias is not None:
        k(f"v_lshl_or_b32 v{T+1}, v{bias}, 16, v{T+1}")


def phase_qkv0_h(k):
    k.ctx(["H"])
    CV = 128
    k(f"""
    s_cmp_eq_u32 s3, 7
    s_cselect_b32 s46, s96, 0
    s_cmp_lg_u32 s46, 0
    s_cselect_b32 s36, 0, {OOB}
    v_mov_b32 v13, {OOB}
    v_mov_b32 v14, {OOB}
    v_writelane_b32 v13, s36, 0
    s_or_b32 s37, s36, s2
    s_lshl_b32 s40, s19, 6
    s_mul_i32 s41, s16, {2*49152}
    s_add_u32 s40, s40, s41
    s_add_u32 s40, s40, 1024
    s_lshl_b32 m0, s16, 12
    s_cmp_eq_u32 s37, 0
    s_cbranch_scc1 {k.L('lead')}
    """)
    k.label("led")

    def lead():
        k.label("lead")
        k(f"""
        v_writelane_b32 v14, 0, 0
        v_mov_b32 v32, 0
        v_mov_b32 v33, 0
        v_mov_b32 v34, 0
        v_mov_b32 v35, 0
        v_lshrrev_b32 v36, 1, v0
        v_and_b32 v37, 16, v1
        v_lshl_add_u32 v36, v36, 7, v37
        v_lshrrev_b32 v37, 2, v0
        v_and_b32 v38, 48, v1
        v_lshl_add_u32 v37, v37, 7, v38
        """)
        for i in range(4):
            k(f"s_movk_i32 s36, {FQ+i*4096:#x}")
            k(f"buffer_store_dwordx4 v[32:35], v36, s[8:11], s36 offen sc1", vm="skip")
        for i in range(4):
            k(f"s_movk_i32 s36, {FKV+i*2048:#x}")
            k(f"buffer_store_dwordx4 v[32:35], v37, s[8:11], s36 offen sc1", vm="skip")
        k(f"s_movk_i32 s36, {FWR:#x}")
        for i in range(4):
            k(f"buffer_store_dwordx4 v[32:35], v1, s[8:11], s36 offen offset:{i*1024} sc1", vm="skip")
        k(f"s_branch {k.L('led')}")
    k.deferred.append(lead)
    k(f"buffer_load_dword v16, v13, s[8:11], 0 offen sc1", vm="a0")
    for c in range(4):
        for i in range(2):
            k(f"buffer_load_dwordx4 v12, {WQS}, s40 offen lds", vm=("w", c))
            k(f"buffer_load_dwordx4 v12, {WQS}, s40 offen offset:1024 lds", vm=("w", c))
            if c < 3 or i == 0:
                k(f"s_add_u32 m0, m0, {2048*(7 if i else 1)}\ns_add_u32 s40, s40, {49152*(7 if i else 1)}")
    k(f"""
    v_lshrrev_b32 v8, 4, v0
    v_mul_u32_u24 v8, 3072, v8
    v_and_b32 v9, 15, v0
    v_lshl_add_u32 v8, v9, 6, v8
    s_lshl_b32 s36, s13, 2
    s_add_u32 s36, s36, s16
    s_mul_i32 s37, s36, {4*3072}
    v_bfe_u32 v9, v0, 2, 1
    v_lshlrev_b32 v9, 10, v9
    v_and_b32 v11, 3, v0
    v_lshl_add_u32 v9, v11, 6, v9
    s_lshl_b32 s36, s36, 11
    s_lshl_b32 s38, s12, 18
    s_add_u32 s36, s36, s38
    buffer_load_dword v15, v8, {WQS}, s37 offen
    buffer_load_dword v15, v9, {XS}, s36 offen offset:768
    """)
    k(f"""
    s_lshr_b32 s36, s2, 6
    s_cmp_lt_u32 s2, 32
    s_cselect_b32 s36, 3, s36
    s_cmp_lg_u32 s3, 6
    s_cselect_b32 s36, 3, s36
    s_cmp_eq_u32 s96, 0
    s_cselect_b32 s36, 3, s36
    s_cmp_eq_u32 s36, 3
    s_cbranch_scc1 {k.L('noclr')}
    s_mul_i32 s36, s36, {LSTRIDE:#x}
    s_and_b32 s37, s2, 63
    s_lshl_b32 s37, s37, 10
    s_add_u32 s36, s36, s37
    v_mov_b32 v32, 0
    v_mov_b32 v33, 0
    v_mov_b32 v34, 0
    v_mov_b32 v35, 0
    buffer_store_dwordx4 v[32:35], v1, s[8:11], s36 offen sc1
    """, vm="skip")
    k.label("noclr")
    k(f"""
    s_mov_b32 s78, 0
    s_cmp_ge_u32 s2, 112
    s_cbranch_scc1 {k.L('cv_n1')}
    s_mov_b32 s72, s88
    s_mov_b32 s73, s89
    s_mov_b32 s74, {512*3584}
    s_movk_i32 s47, 3584
    s_movk_i32 s50, 3584
    s_and_b32 s36, s2, 3
    s_andn2_b32 s37, s2, 3
    s_add_u32 s37, s37, s16
    s_lshl_b32 s52, s37, 5
    s_mul_i32 s48, s36, {128*3584}
    s_add_u32 s48, s48, s52
    s_mul_i32 s38, s37, 147
    s_lshr_b32 s38, s38, 10
    s_mul_i32 s38, s38, {W1_CT-7*512}
    s_lshl_b32 s37, s37, 9
    s_add_u32 s38, s38, s37
    s_add_u32 s38, s38, {W1F:#x}
    s_mul_i32 s49, s36, {8*3584}
    s_add_u32 s49, s49, s38
    s_lshr_b32 s51, s36, 1
    s_lshl_b32 s51, s51, 8
    s_add_u32 s51, s51, s38
    s_and_b32 s37, s36, 1
    s_lshl_b32 s37, s37, 3
    s_add_u32 s51, s51, s37
    s_add_u32 s51, s51, {32*3584}
    s_cmp_lt_u32 s36, 2
    s_cselect_b32 s78, 3584, 0
    s_branch {k.L('cv_go')}
    """)
    k.label("cv_n1")
    k(f"""
    s_mov_b32 s72, s92
    s_mov_b32 s73, s93
    s_mov_b32 s74, {1792*1024}
    s_sub_u32 s36, s2, 112
    s_mov_b32 s38, {W2_CT}
    s_mov_b32 s39, {W2F:#x}
    s_mov_b32 s52, 0
    s_mov_b32 s51, 0
    s_cmp_lt_u32 s2, 224
    s_cbranch_scc1 {k.L('cv_n2')}
    s_mov_b32 s72, s84
    s_mov_b32 s73, s85
    s_mov_b32 s74, {512*1024}
    s_sub_u32 s36, s2, 224
    s_mov_b32 s38, {WO_CT}
    s_mov_b32 s39, {WOF:#x}
    """)
    k.label("cv_n2")
    k(f"""
    s_movk_i32 s47, 1024
    s_movk_i32 s50, 2048
    s_and_b32 s37, s36, 7
    s_lshr_b32 s36, s36, 3
    s_lshl_b32 s48, s36, 17
    s_lshl_b32 s49, s37, 7
    s_add_u32 s48, s48, s49
    s_lshl_b32 s49, s16, 5
    s_add_u32 s48, s48, s49
    s_mul_i32 s49, s37, s38
    s_add_u32 s49, s49, s39
    s_lshl_b32 s36, s36, 14
    s_add_u32 s49, s49, s36
    s_lshl_b32 s36, s16, 9
    s_add_u32 s49, s49, s36
    """)
    k.label("cv_go")
    k(f"""
    v_bfe_u32 v8, v0, 4, 1
    v_lshl_add_u32 v8, v10, 2, v8
    s_lshl_b32 s36, s47, 2
    v_mul_u32_u24 v23, s36, v8
    v_and_b32 v25, 15, v0
    v_lshlrev_b32 v25, 1, v25
    v_add_u32 v23, v23, v25
    v_mul_u32_u24 v24, s50, v10
    v_and_b32 v8, 0x1f0, v1
    v_add_u32 v24, v24, v8
    s_mul_i32 s53, s47, 5
    s_mul_i32 s54, s47, 21
    v_lshl_add_u32 v17, v10, 8, v22
    s_lshl_b32 s36, s16, 11
    s_add_u32 s37, s36, {L_QI}
    v_add_u32 v18, s37, v17
    s_lshl_b32 s36, s16, 12
    v_add_u32 v17, s36, v17
    v_and_b32 v21, 0x2ff, v2
    s_lshr_b32 s36, s16, 1
    s_lshl_b32 s36, s36, 8
    s_and_b32 s37, s16, 1
    s_lshl_b32 s37, s37, 3
    s_add_u32 s36, s36, s37
    v_add_u32 v21, s36, v21
    v_add_u32 v20, {L_AUG}, v21
    s_lshr_b32 s36, s18, 2
    s_and_b32 s37, s36, 3
    s_lshr_b32 s45, s36, 2
    s_cmp_eq_u32 s37, s16
    s_cselect_b32 s55, s45, 99
    s_mul_i32 s99, s19, {WQ_CT}
    s_add_u32 s99, s99, {WQF:#x}
    s_mul_i32 s100, s36, 6144
    s_add_u32 s100, s100, s99
    s_add_u32 s101, s100, 3072
    s_add_u32 s99, s99, {32*3072}
    v_mov_b32 v19, 1
    """)

    def conv_loads():
        k(f"buffer_load_ushort v26, v25, s[76:79], s52 offen", vm="cv")
        for i in range(4):
            for j in range(8):
                k(f"buffer_load_ushort v{CV+8*i+j}, v23, s[72:75], s48 offen", vm=("cv", i))
                if i < 3 or j < 7:
                    k(f"s_add_u32 s48, s48, s{47 if j&3 != 3 else (53 if j == 3 else 54)}")

    def bump():
        k("buffer_atomic_add v19, v14, s[8:11], 0 offen sc1")
    k.wait(vm="a0")
    bump()
    if CONV_AT < 0:
        conv_loads()
    for c in range(4):
        k.wait(vm=("w", c))
        k("s_barrier")
        k.stamp(f"hb{c}")
        for i in range(2):
            for t in range(2):
                r = 32 + 8 * i + 4 * t
                for h in range(2):
                    k(f"{TRD} {vr(r+2*h,2)}, v17 offset:{c*16384+i*2048+t*1024+h*512}", lg=("f", i))
        bump()
        if c in (2, 3):
            k(f"buffer_load_dword v{25+c}, v13, s[8:11], 0 offen sc1", vm=("a", c))
        if c == CONV_AT:
            conv_loads()
        if c == 1:
            touch_qkv(k, 15)
        for i in range(2):
            k.wait(lg=("f", i))
            for d in range(4):
                for t in range(2):
                    z = "0" if (c, i, d) == (0, 0, 0) else f"v{8+t}"
                    k(f"v_dot2_f32_bf16 v{8+t}, v{32+8*i+4*t+d}, v6, {z}")
        l = k.u("ncp")
        k(f"s_cmp_lg_u32 s55, {c}\ns_cbranch_scc1 {k.L(l)}")
        for i in range(2):
            for t in range(2):
                k(f"buffer_store_dwordx4 {vr(32+8*i+4*t,4)}, v2, s[4:7], s{100+i} offen offset:{1024+t*1024} sc1", vm="skip")
        k.label(l)

    def augw(ts):
        for t in ts:
            k(f"v_mov_b32 v{48+t}, v{8+t}")
        for t in ts:
            k(f"v_permlane32_swap_b32 v{48+t}, v{8+t}")
        for t in ts:
            k(f"v_add_f32 v{8+t}, v{8+t}, v{48+t}")
        for t in ts:
            aug_pack(k, 8 + t, 52 + 2 * t)
            k(f"ds_write_b64 v20, {vr(52+2*t,2)} offset:{(t+1)%3*1024}")
        l = k.u("nag")
        k(f"s_cmp_ge_u32 s18, 4\ns_cbranch_scc1 {k.L(l)}")
        for t in ts:
            k(f"buffer_store_dwordx2 {vr(52+2*t,2)}, v21, s[4:7], s99 offen offset:{(t+1)%3*1024} sc1", vm="skip")
        k.label(l)
    augw([0, 1])
    k("s_waitcnt lgkmcnt(0)\ns_barrier")
    k.stamp("hba")
    for c in range(4):
        for i in range(2):
            for h in range(2):
                k(f"{TRD} {vr(64+8*c+4*i+2*h,2)}, v18 offset:{c*8192+i*1024+h*512}", lg=("q", c))
    bump()
    k(f"""
    v_mov_b32 v32, v6
    v_mov_b32 v33, v6
    v_mov_b32 v34, v6
    v_mov_b32 v35, v6
    s_lshl_b32 s36, s16, 10
    s_add_u32 s36, s36, {L_ONES}
    v_add_u32 v12, s36, v1
    ds_write_b128 v12, v[32:35]
    s_lshl_b32 s36, s16, 12
    s_add_u32 s36, s36, {L_R0}
    v_add_u32 v12, s36, v1
    """)
    for c in range(4):
        k.wait(lg=("q", c))
        for d in range(8):
            z = "0" if c == 0 and d < 2 else f"v{10+(d&1)}"
            k(f"v_dot2_f32_bf16 v{10+(d&1)}, v{64+8*c+d}, v6, {z}")
    k("v_add_f32 v10, v10, v11")
    augw([2])
    k(f"s_cmp_lg_u32 s46, 0\ns_cbranch_scc1 {k.L('achk')}")
    k.label("achkd")
    n2, n3 = min(63, k._cnt(0, ("a", 2))), min(63, k._cnt(0, ("a", 3)))

    def achk():
        k.label("achk")
        k(f"""
        s_waitcnt vmcnt({n2})
        v_cmp_ne_u32 vcc, v16, v27
        s_cbranch_vccnz {k.L('achkd')}
        s_waitcnt vmcnt({n3})
        s_mov_b32 s35, 0
        """)
        k.label("achk2")
        k(f"""
        v_cmp_ne_u32 vcc, v16, v28
        s_cbranch_vccnz {k.L('achkd')}
        buffer_load_dword v28, v13, s[8:11], 0 offen sc1
        s_add_u32 s35, s35, 1
        s_cmp_gt_u32 s35, {LIMIT}
        s_cbranch_scc1 {k.L('end')}
        s_waitcnt vmcnt(0)
        s_branch {k.L('achk2')}
        """, vm="skip")
    k.deferred.append(achk)
    k("s_waitcnt lgkmcnt(0)\ns_barrier")
    k.stamp("kvh")
    for j in range(4):
        k(f"ds_read_b128 {vr(32+4*j,4)}, v12 offset:{j*1024}", lg=("h", j))
    kv_offsets(k, KVG)
    fkv_addr(k)
    for j in range(4):
        k.wait(lg=("h", j))
        if j < 2:
            k(f"buffer_store_dwordx4 {vr(32+4*j,4)}, v1, s[8:11], s{40+j} offen sc1", vm="kvs")
        else:
            k(f"buffer_store_dwordx4 {vr(32+4*j,4)}, v30, s[8:11], s42 offen offset:{(j-2)*512} sc1", vm="kvs")
    for c in range(4):
        l = k.u("ncq")
        k(f"s_cmp_lg_u32 s55, {c}\ns_cbranch_scc1 {k.L(l)}")
        for i in range(2):
            k(f"buffer_store_dwordx4 {vr(64+8*c+4*i,4)}, v2, s[4:7], s{100+i} offen sc1", vm="skip")
        k.label(l)
    k("s_lshl_b32 s50, s50, 1")
    for i in range(4):
        b = CV + 8 * i
        k.wait(vm=("cv", i))
        for d in range(4):
            k(f"v_lshl_or_b32 v{b+d}, v{b+2*d+1}, 16, v{b+2*d}")
        k(f"buffer_store_dwordx4 {vr(b,4)}, v24, s[4:7], s49 offen sc1")
        k("s_add_u32 s49, s49, s50")
    k(f"s_cmp_ge_u32 s2, 112\ns_cbranch_scc1 {k.L('cv_na')}")
    for i in range(4):
        for d in range(4):
            z = "0" if i == 0 and d < 2 else f"v{8+(d&1)}"
            k(f"v_dot2_f32_bf16 v{8+(d&1)}, v{CV+8*i+d}, v6, {z}")
    k(f"""
    v_add_f32 v8, v8, v9
    v_lshlrev_b32 v25, 3, v25
    v_mov_b32 v9, v8
    v_permlane32_swap_b32 v8, v9
    v_add_f32 v8, v8, v9
    v_mov_b32 v9, v8
    v_permlane16_swap_b32 v8, v9
    v_add_f32 v8, v8, v9
    """)
    aug_pack(k, 8, 10, 26)
    k(f"buffer_store_dwordx2 v[10:11], v25, s[4:7], s51 offen sc1", vm="skip")
    k.label("cv_na")
    k.signal("s43", 8, glob=True, wtag="kvs")
    k.stamp("kvsig")


def fkv_addr(k):
    k(f"""
    s_lshl_b32 s43, s19, 2
    s_add_u32 s43, s43, s16
    s_lshl_b32 s43, s43, 7
    s_lshr_b32 s36, s18, 2
    s_lshl_b32 s36, s36, 2
    s_add_u32 s43, s43, s36
    s_add_u32 s43, s43, {FKV:#x}
    """)


def fq_addr(k):
    k(f"""
    s_lshl_b32 s43, s12, 4
    s_add_u32 s43, s43, s19
    s_lshl_b32 s43, s43, 7
    s_and_b32 s36, s18, 7
    s_lshl_b32 s36, s36, 2
    s_add_u32 s43, s43, s36
    s_add_u32 s43, s43, {FQ:#x}
    """)


def kv_epilogue(k, R0, bkv):
    RS, AK, AV, RT = 28, 64, 80, 112
    fill = []
    for h in range(2):
        a = AK + 8 * h
        fill += [(f"v_mul_f32 v{a+r}, v{RS}, v{a+r}", 4, R0) for r in range(8)]
        fill += [(f"v_cvt_pk_bf16_f32 v{a+r}, v{a+2*r}, v{a+2*r+1}", 4, R0) for r in range(4)]
        fill += [(f"ds_write_b128 v31, {vr(a,4)} offset:{h*1024}", 4, R0, dict(lg="hw"))]
        fill += [(f"buffer_store_dwordx4 {vr(a,4)}, v1, {AS}, s40 offen offset:{h*1024}", 4, R0)]
    fill += [(lambda: k.wait(lg="rt"), 0, R0)]
    for h in range(2):
        a = AV + 8 * h
        fill += [(f"v_mul_f32 v{a+r}, v{RT+8*h+r}, v{a+r}", 4, R0) for r in range(8)]
        fill += [(f"v_cvt_pk_bf16_f32 v{a+r}, v{a+2*r}, v{a+2*r+1}", 4, R0) for r in range(4)]
        fill += [(f"ds_write_b128 v31, {vr(a,4)} offset:{2048+h*1024}", 4, R0, dict(lg="hw"))]
        fill += [(f"buffer_store_dwordx4 {vr(a,4)}, v30, {AS}, s42 offen offset:{h*512}", 4, R0)]
    fill += [("s_nop 0", 100, R0), ("s_nop 0", 100, R0), (bkv, 4, R0)]
    return fill


def phase_qkv0_c(k):
    SR, AUG, RS, WS, AK, AV, AQ, RT, A = 8, 24, 28, 32, 64, 80, 96, 112, 128
    AH, NQ = 5, 8
    k.ctx(["C"])
    k.label("qkv0_c")
    k(f"""
    v_lshrrev_b32 v14, 4, v0
    v_xor_b32 v14, v14, v0
    v_and_b32 v14, 7, v14
    v_lshlrev_b32 v14, 4, v14
    v_lshrrev_b32 v15, 3, v0
    v_lshl_add_u32 v14, v15, 10, v14
    v_xor_b32 v15, 64, v14
    v_add_u32 v15, 7168, v15
    v_add_u32 v16, 14336, v14
    v_add_u32 v17, 14336, v15
    s_lshl_b32 s38, s18, 15
    s_lshl_b32 s39, s16, 12
    s_add_u32 s39, s39, {L_R0}
    s_mov_b32 m0, s39
    """)

    def xdma(c):
        for i in range(4):
            k(f"buffer_load_dwordx4 v{14+i}, {XS}, s38 offen offset:{i*1024} lds", vm=("x", c >> 1))
        k("s_add_u32 m0, m0, 16384\ns_add_u32 s38, s38, 128")
    for c in range(6):
        xdma(c)
    k(f"""
    v_bfe_u32 v8, v0, 1, 3
    v_xor_b32 v8, v8, v10
    v_lshlrev_b32 v8, 4, v8
    v_and_b32 v9, 31, v0
    v_lshl_add_u32 v8, v9, 7, v8
    v_add_u32 v18, s39, v8
    v_xor_b32 v19, 32, v18
    v_xor_b32 v20, 64, v18
    v_xor_b32 v21, 96, v18
    v_lshl_add_u32 v22, v10, 9, v22
    v_add_u32 v23, {L_QI}, v22
    s_lshl_b32 s46, s19, 6
    s_mul_i32 s47, s16, {4*49152}
    s_add_u32 s46, s46, s47
    """)
    loc_offsets(k)
    fq_addr(k)
    k(f"v_add_u32 v31, s39, v1")

    def xrd(c):
        def f():
            if c >= 2:
                for i in range(4):
                    k(f"v_add_u32 v{18+i}, {65536 if c == 2 else -65536 & 0xffffffff:#x}, v{18+i}")
            k.wait(vm=("x", c))
            for i in range(8):
                k(f"ds_read_b128 {vr(A+32*c+4*i,4)}, v{18+(i&3)} offset:{(2*c+(i>>2))%4*16384 if c < 3 else (i>>2)*16384}")
            k("s_barrier")
            k.stamp(f"cb{c}")
        return f

    def rdw(areg, off):
        def f(w, tag):
            k(f"{TRD} {vr(w,2)}, {areg} offset:{off}")
            k(f"{TRD} {vr(w+2,2)}, {areg} offset:{off+256}", lg=tag)
        return f
    done = []

    def rda(t):
        def f(w, tag):
            assert t or done
            k(f"ds_read_b128 {vr(w,4)}, v17 offset:{t*1024}", lg=tag)
        return f
    ops = []
    for s in range(33):
        b = vr(A + 4 * s, 4) if s < 32 else vr(AUG, 4)
        ck, cv = ("0", "0") if s == 0 else (vr(AK, 16), vr(AV, 16))
        ops.append(dict(rd=rdw("v22", s * 2048) if s < 32 else rda(1), mf=lambda w, b=b, c=ck: f"{MF} {vr(AK,16)}, {vr(w,4)}, {b}, {c}", bud=DOTB))
        ops.append(dict(rd=rdw("v22", s * 2048 + 1024) if s < 32 else rda(2), mf=lambda w, b=b, c=cv: f"{MF} {vr(AV,16)}, {b}, {vr(w,4)}, {c}", bud=DOTB))
    q = []
    for s in range(33):
        b = vr(A + 4 * s, 4) if s < 32 else vr(AUG, 4)
        c = "0" if s == 0 else vr(AQ, 16)
        q.append(dict(rd=rdw("v23", s * 1024) if s < 32 else rda(0), mf=lambda w, b=b, c=c: f"{MF} {vr(AQ,16)}, {vr(w,4)}, {b}, {c}"))
    ops = ops[:64] + q[:NQ] + ops[64:] + q[NQ:]
    for c in range(4):
        ops[max(0, 16 * c - AH)]["pre"] = xrd(c)

    def baug():
        k.wait(vm="q")
        k("s_barrier")
        k.stamp("cba")
    ops[64 - AH]["pre"] = baug

    def x67():
        k("s_mov_b32 m0, s39")
        xdma(6)
        xdma(7)

    def qdma():
        k(f"v_add_u32 v17, {L_AUG}, v2")
        for h in range(2):
            k(f"s_add_u32 m0, s39, {L_QI-L_R0+h*16384}")
            for i in range(4):
                k(f"buffer_load_dwordx4 v12, {WQS}, s46 offen offset:{i*1024} lds", vm="q")
                k(f"s_add_u32 s46, s46, {49152-1024 if i < 3 else 13*49152+3072}")
    ops[0]["post"] = x67
    ops[16]["post"] = qdma
    fill = []
    for c in range(4):
        for r in range(32):
            a, z = 8 + 2 * (r & 1), c == 0 and r < 2
            fill.append((f"v_dot2_f32_bf16 v{a}, v{A+32*c+r}, v6, {'0' if z else f'v{a}'}", 1, 16 * c))
            fill.append((f"v_dot2_f32_bf16 v{a+1}, v{A+32*c+r}, v{A+32*c+r}, {'0' if z else f'v{a+1}'}", 1, 16 * c))
    st = ["v_add_f32 v8, v8, v10", "v_add_f32 v9, v9, v11"] + stats_list(SR, AUG, RS, "qkv", summed=True)
    st += f"""
    s_lshl_b32 s36, s16, 7
    s_add_u32 s36, s36, {L_AUG+3072}
    v_and_b32 v8, 31, v0
    v_lshl_add_u32 v8, v8, 2, s36
    v_lshrrev_b32 v9, 5, v0
    v_lshl_add_u32 v9, v9, 4, s36
    ds_write_b32 v8, v{RS}
    v_mul_f32 v29, {f32(0.25*LOG2E)}, v{RS}
    """.split("\n")
    fill += [(x.strip(), 4, 63) for x in st if x.strip()]
    fill += [(f"ds_read_b128 {vr(RT+4*q,4)}, v9 offset:{q*32}", 4, 63, dict(lg="rt")) for q in range(4)]
    nst = len(fill)
    chk = []

    def bkv():
        k.wait(lg="hw")
        k("s_barrier")
        done.append(1)
    fill += [(lambda: chk.append(1), 0, 63)]

    def need_stats():
        assert chk, "stats not finished before aug"
    ops[64 + NQ]["pre"] = need_stats
    fill += kv_epilogue(k, 64 + NQ + 3, bkv)
    rest = gemm_stream(k, ops, WS, fill, 20, ahead=AH)
    assert not rest
    k(f"s_branch {k.L('q_fin')}")


def phase_qkv_h(k):
    k.ctx(["H"])
    k.label("qkv_h")
    k("s_barrier")
    k(f"""
    v_mov_b32 v8, v6
    v_mov_b32 v9, v6
    v_mov_b32 v10, v6
    v_mov_b32 v11, v6
    s_lshl_b32 s36, s16, 10
    s_add_u32 s36, s36, {L_ONES}
    v_add_u32 v12, s36, v1
    ds_write_b128 v12, v[8:11]
    s_lshl_b32 s36, s16, 12
    s_add_u32 s36, s36, {L_HAND}
    v_add_u32 v12, s36, v1
    """)
    kv_offsets(k, KVG)
    fkv_addr(k)
    k("s_barrier")
    k.stamp("kvh")
    for j in range(4):
        k(f"ds_read_b128 {vr(32+4*j,4)}, v12 offset:{j*1024}", lg=("h", j))
    for j in range(4):
        k.wait(lg=("h", j))
        if j < 2:
            k(f"buffer_store_dwordx4 {vr(32+4*j,4)}, v1, s[8:11], s{40+j} offen sc1")
        else:
            k(f"buffer_store_dwordx4 {vr(32+4*j,4)}, v30, s[8:11], s42 offen offset:{(j-2)*512} sc1")
    k.signal("s43", 8, glob=True)
    k.stamp("kvsig")


def phase_qkv_c(k):
    SR, AUG, RS, WS, AK, AV, AQ, RT, A = 8, 24, 28, 32, 64, 80, 96, 112, 128
    k.ctx(["C"])
    k.label("qkv_c")
    lda = load_x(k, XA, STA, FX, SR, A, "q_flag")
    PD = 12
    for s in range(PD):
        lda(s)
    k(f"s_barrier")
    loc_offsets(k)
    fq_addr(k)
    k.wait(vm="st")
    k.stamp("q_st")
    stats_math(k, SR, AUG, RS, "qkv")
    k(f"""
    s_lshl_b32 s36, s16, 7
    s_add_u32 s36, s36, {L_RST}
    v_and_b32 v8, 31, v0
    v_lshl_add_u32 v8, v8, 2, s36
    ds_write_b32 v8, v{RS}
    v_lshrrev_b32 v8, 5, v0
    v_lshl_add_u32 v8, v8, 4, s36
    v_mul_f32 v29, {f32(0.25*LOG2E)}, v{RS}
    s_lshl_b32 s36, s16, 12
    s_add_u32 s36, s36, {L_HAND}
    v_add_u32 v31, s36, v1
    """)
    for q in range(4):
        k(f"ds_read_b128 {vr(RT+4*q,4)}, v8 offset:{q*32}", lg="rt")
    ops = []
    for s in range(33):
        b = vr(A + 4 * s, 4) if s < 32 else vr(AUG, 4)
        ck, cv = ("0", "0") if s == 0 else (vr(AK, 16), vr(AV, 16))
        ops.append(dict(off=s * 3072 + 1024, vm=("a", s) if s < 32 else None,
                        mf=lambda w, b=b, c=ck: f"{MF} {vr(AK,16)}, {vr(w,4)}, {b}, {c}",
                        post=lambda s=s: lda(s + PD)))
        ops.append(dict(off=s * 3072 + 2048, mf=lambda w, b=b, c=cv: f"{MF} {vr(AV,16)}, {b}, {vr(w,4)}, {c}"))
    for s in range(33):
        b = vr(A + 4 * s, 4) if s < 32 else vr(AUG, 4)
        c = "0" if s == 0 else vr(AQ, 16)
        ops.append(dict(off=s * 3072, mf=lambda w, b=b, c=c: f"{MF} {vr(AQ,16)}, {vr(w,4)}, {b}, {c}"))

    def bkv():
        k.wait(lg="hw")
        k("s_barrier")
    rest = gemm_stream(k, ops, WS, kv_epilogue(k, 67, bkv), 20)
    assert not rest
    k.label("q_fin")
    k("s_nop 7\ns_nop 3")
    k.stamp("q_mf")
    for h in range(2):
        a = AQ + 8 * h
        for r in range(8):
            k(f"v_mul_f32 v{a+r}, v29, v{a+r}")
        for r in range(4):
            k(f"v_cvt_pk_bf16_f32 v{a+r}, v{a+2*r}, v{a+2*r+1}")
        k(f"buffer_store_dwordx4 {vr(a,4)}, v1, {AS}, s44 offen offset:{h*1024}")
    k.signal("s43", 8)
    k.stamp("q_sig")


def restart(k):
    T = 132
    k.label("restart")
    k(f"""
    s_waitcnt vmcnt(0) lgkmcnt(0)
    buffer_wbl2 sc1
    s_waitcnt vmcnt(0)
    s_barrier
    s_mov_b32 s96, 0
    s_mov_b32 s97, 0
    s_lshl_b32 s36, s2, 2
    s_add_u32 s36, s36, {FDN:#x}
    """)
    k.signal("s36", 8, glob=True)
    k(f"s_movk_i32 s36, {FDN:#x}")
    k.poll(1, "s36", 128, acquire=False, wide=True)
    k(f"""
    buffer_inv sc1
    s_movk_i32 s36, {FWS:#x}
    s_waitcnt vmcnt(0)
    buffer_load_dwordx4 {vr(T,4)}, v1, s[8:11], s36 offen sc1
    v_lshlrev_b32 v8, 2, v0
    s_or_b32 s39, s98, 0x80
    s_mov_b32 s13, 0
    s_waitcnt vmcnt(0)
    """)
    for i in range(4):
        k(f"""
        v_add_u32 v9, {i}, v8
        v_cmp_gt_u32 s[36:37], s2, v9
        v_cmp_eq_u32 vcc, s39, v{T+i}
        s_and_b64 s[36:37], s[36:37], vcc
        s_bcnt1_i32_b64 s36, s[36:37]
        s_add_u32 s13, s13, s36
        """)
    k("s_mov_b32 s12, s98\ns_mov_b32 s39, 0")
    for x in range(8):
        k("s_mov_b32 s38, 0")
        for i in range(4):
            k(f"v_cmp_eq_u32 vcc, {0x80+x:#x}, v{T+i}\ns_bcnt1_i32_b64 s36, vcc\ns_add_u32 s38, s38, s36")
        k("s_xor_b32 s38, s38, 32\ns_or_b32 s39, s39, s38")
    k(f"""
    s_add_u32 s8, s8, {LSTRIDE:#x}
    s_addc_u32 s9, s9, 0
    s_cmp_eq_u32 s39, 0
    s_cbranch_scc1 {k.L('role')}
    s_and_b32 s12, s2, 7
    s_lshr_b32 s13, s2, 3
    s_mov_b32 s15, 1
    s_branch {k.L('role')}
    """)


def phase_att(k):
    Q, KR, VR, P, S, O = 12, 20, 28, 44, 60, 92
    k.label("att")
    k.ctx(["C", "H"])
    k(f"""
    s_lshl_b32 s36, s12, 4
    s_add_u32 s36, s36, s19
    s_lshl_b32 s36, s36, 7
    s_add_u32 s36, s36, {FQ:#x}
    v_and_b32 v8, 7, v0
    v_lshlrev_b32 v8, 2, v8
    s_lshl_b32 s38, s12, 3
    s_lshl_b32 s39, s16, 1
    s_add_u32 s38, s38, s39
    s_add_u32 s33, s38, s17
    s_lshl_b32 s39, s13, 10
    s_add_u32 s39, s39, {RQ:#x}
    s_mul_i32 s37, s33, {RBS}
    s_add_u32 s37, s37, s39
    s_xor_b32 s38, s33, 1
    s_mul_i32 s38, s38, {RBS}
    s_add_u32 s38, s38, s39
    s_lshl_b32 s41, s12, 3
    s_add_u32 s41, s41, s3
    s_mul_i32 s41, s41, {RBS}
    s_add_u32 s41, s41, s39
    s_add_u32 s41, s41, 0x8000
    s_add_u32 s42, s41, 0x8000
    s_lshl_b32 s39, s17, 13
    s_lshl_b32 s40, s16, 10
    s_add_u32 s39, s39, s40
    s_add_u32 m0, s39, {L_P0}
    s_lshl_b32 s40, s13, 17
    """)
    k.poll(8, "s36", 9, boot=True)
    k.stamp("a_flag")
    k(f"""
    buffer_load_dwordx4 v1, {AS}, s41 offen sc1 lds
    s_add_u32 m0, m0, 4096
    buffer_load_dwordx4 {vr(Q,4)}, v1, {AS}, s37 offen sc1
    buffer_load_dwordx4 v1, {AS}, s42 offen sc1 lds
    buffer_load_dwordx4 {vr(Q+4,4)}, v1, {AS}, s38 offen sc1
    s_add_u32 s50, s37, {RO-RQ:#x}
    s_lshl_b32 s39, s17, 13
    s_add_u32 s39, s39, {L_P0}
    v_add_u32 v8, s39, v1
    v_and_b32 v9, 0x1ff, v2
    v_add_u32 v10, {L_ONES}, v9
    s_add_u32 s39, s39, 4096
    v_add_u32 v9, s39, v9
    v_and_b32 v124, 16, v0
    v_cmp_ne_u32 vcc, 0, v124
    v_cndmask_b32 v9, v9, v10
    v_mov_b32 v10, 0x4000
    v_cndmask_b32 v10, v10, 0, vcc
    s_lshl_b32 s43, s19, 2
    s_add_u32 s43, s43, s16
    s_lshl_b32 s43, s43, 7
    s_add_u32 s43, s43, {FKV:#x}
    v_and_b32 v124, 15, v0
    v_lshlrev_b32 v124, 2, v124
    """)
    k(f"""
    s_and_b32 s36, s16, 1
    s_lshl_b32 s36, s36, 10
    s_mul_i32 s44, s21, {WO_CT}
    s_add_u32 s44, s44, {WOF:#x}
    s_add_u32 s44, s44, s36
    s_add_u32 s45, s44, 2048
    s_movk_i32 s46, 4096
    s_mul_i32 s47, s21, {W2_CT}
    s_mul_i32 s48, s16, {28*2048}
    s_add_u32 s47, s47, s48
    s_add_u32 s47, s47, {W2F:#x}
    s_add_u32 s48, s47, s36
    s_xor_b32 s36, s36, 1024
    s_add_u32 s49, s47, s36
    s_cmp_eq_u32 s17, 0
    s_cselect_b32 s44, s44, s48
    s_cselect_b32 s45, s45, s49
    s_cselect_b32 s46, s46, 2048
    s_mul_i32 s36, s19, {W1_CT}
    s_add_u32 s36, s36, {W1F:#x}
    v_add_u32 v125, s36, v1
    s_lshl_b32 s99, s14, 3
    s_add_u32 s99, s99, s3
    s_cmp_eq_u32 s99, 7
    s_waitcnt vmcnt(0)
    s_barrier
    s_cbranch_scc1 {k.L('fwr')}
    """)
    k.label("fwrd")
    k.stamp("a_b0")

    def fwr():
        k.label("fwr")
        k(f"""
        s_lshl_b32 s36, s12, 5
        s_add_u32 s36, s36, s13
        s_lshl_b32 s36, s36, 2
        s_add_u32 s36, s36, {FWR:#x}
        v_mov_b32 v126, 1
        s_mov_b64 exec, 1
        buffer_store_dword v126, off, s[8:11], s36 sc1
        s_mov_b64 exec, -1
        s_branch {k.L('fwrd')}
        """, vm="skip")
        k.label("fwl")
        k(f"""
        s_movk_i32 s36, {FWR:#x}
        buffer_load_dwordx4 v[128:131], v1, s[8:11], s36 offen sc1
        s_branch {k.L('fwld')}
        """, vm="skip")
        k.label("fwc")
        k(f"""
        s_cmp_lg_u32 s97, 0
        s_waitcnt vmcnt(0)
        s_cbranch_scc1 {k.L('fwc2')}
        v_and_b32 v128, v128, v129
        v_and_b32 v130, v130, v131
        v_and_b32 v128, v128, v130
        v_cmp_ne_u32 vcc, 1, v128
        s_movk_i32 s36, {FWR:#x}
        s_cbranch_vccz {k.L('fwc2')}
        """)
        k.poll(1, "s36", 128, acquire=False, boot=True, wide=True)
        k.label("fwc2")
        k(f"""
        v_mov_b32 v128, {L_MODE}
        v_mov_b32 v129, s97
        ds_write_b32 v128, v129
        s_waitcnt lgkmcnt(0)
        s_branch {k.L('fwcd')}
        """)
        k.label("fwv")
        k(f"""
        v_mov_b32 v128, {L_MODE}
        ds_read_b32 v128, v128
        s_waitcnt lgkmcnt(0)
        v_cmp_ne_u32 vcc, 0, v128
        s_cbranch_vccz {k.L('fwvd')}
        """)
        restart(k)
    k.deferred.append(fwr)

    def rdk(t):
        k(f"ds_read_b128 {vr(KR+4*(t&1),4)}, v8 offset:{(t&3)*1024}")

    def rdv(t):
        for h in range(2):
            k(f"ds_read_b128 {vr(VR+8*(t&1)+4*h,4)}, v9 offset:{(t&3)*1024+h*512}")

    def smf(u):
        k(f"{MF} {vr(S+16*(u&1),16)}, {vr(KR+4*((u>>1)&1),4)}, {vr(Q+4*(u&1),4)}, 0")

    def pv(u, h, zero=False):
        o = vr(O + 16 * (u & 1), 16)
        k(f"{MF} {o}, {vr(VR+8*((u>>1)&1)+4*h,4)}, {vr(P+8*(u&1)+4*h,4)}, {'0' if zero else o}")

    def segment(nb, zero, extra):
        rdk(0)
        rdk(1)
        rdv(0)
        k("s_waitcnt lgkmcnt(3)")
        smf(0)
        for u in range(nb):
            x = extra(u)
            i = u >> 1
            if x.get("pre"):
                x["pre"]()
            if u & 1:
                k("s_waitcnt lgkmcnt(0)")
            if u + 1 < nb:
                smf(u + 1)
            if u & 1:
                if 2 * (i + 2) < nb:
                    if (i + 2) & 3 == 0:
                        k("v_add_u32 v8, 0x4000, v8")
                    rdk(i + 2)
                if 2 * (i + 1) < nb:
                    if (i + 1) & 3 == 0:
                        k("v_add_u32 v9, v10, v9")
                    rdv(i + 1)
            s, p = S + 16 * (u & 1), P + 8 * (u & 1)
            ex = [f"v_exp_f32 v{s+r}, v{s+r}" for r in range(16)]
            cv = [f"v_cvt_pk_bf16_f32 v{p+r}, v{s+2*r}, v{s+2*r+1}" for r in range(8)]
            k("\n".join(ex[:4]))
            if u:
                pv(u - 1, 0, zero and u <= 2)
            k("\n".join(ex[4:8] + cv[:2]))
            if u:
                pv(u - 1, 1)
            if x.get("mid"):
                x["mid"]()
            k("\n".join(ex[8:] + cv[2:]))
        pv(nb - 1, 0)
        pv(nb - 1, 1)

    k(f"""
    buffer_load_dword v126, v124, s[8:11], s43 offen sc1
    s_add_u32 s40, s40, {KVG:#x}
    s_add_u32 s41, s12, s17
    s_add_u32 s41, s41, 1
    s_and_b32 s41, s41, 7
    s_lshl_b32 s41, s41, 14
    s_add_u32 s41, s41, s40
    s_lshl_b32 s42, s16, 10
    s_add_u32 s41, s41, s42
    s_lshl_b32 s55, s17, 14
    s_add_u32 s42, s42, s55
    s_add_u32 s42, s42, 0x4000
    s_mov_b32 s55, 0
    """, vm="skip")

    def kv12():
        k("s_mov_b32 m0, s42")
        for j in range(4):
            k("buffer_load_dwordx4 v1, s[8:11], s41 offen sc1 lds", vm="skip")
            if j < 3:
                k("s_add_u32 m0, m0, 4096\ns_add_u32 s41, s41, 4096")

    def early():
        k(f"""
        s_waitcnt vmcnt(0)
        v_cmp_ne_u32 vcc, 1, v126
        s_cbranch_vccnz {k.L('a_late')}
        s_mov_b32 s55, 1
        """)
        kv12()
        k.label("a_late")
    segment(8, True, lambda u: {"pre": early} if u == EARLY else {})
    k.stamp("a_segA")
    k(f"s_cmp_eq_u32 s55, 0\ns_cbranch_scc1 {k.L('a_poll')}")
    k.label("a_polled")

    def late():
        k.label("a_poll")
        k.poll(124, "s43", 126, acquire=False, boot=True)
        kv12()
        k(f"s_branch {k.L('a_polled')}")
    k.deferred.append(late)
    for r in "CH":
        k.paths[r][0].append(("kv", 2))
    k(f"v_add_u32 v8, {(16384 - L_P0) & 0xffffffff:#x}, v8\nv_mad_i32_i24 v9, v10, -7, v9")
    k(f"""
    s_mul_i32 s51, s18, {112*1024}
    s_mul_i32 s52, s19, {7*1024}
    s_add_u32 s51, s51, s52
    s_add_u32 s51, s51, {RH:#x}
    s_add_u32 s52, s51, 3584
    s_add_u32 s53, s22, {XB:#x}
    s_add_u32 s54, s23, {STB:#x}
    v_mul_u32_u24 v11, 56, v0
    v_mov_b32 v124, v11
    s_cmp_eq_u32 s17, 0
    s_cselect_b32 s51, s53, s51
    s_cselect_b32 s52, s54, s52
    s_cselect_b64 exec, -1, 0
    v_lshlrev_b32 v11, 5, v0
    v_mov_b32 v124, v5
    s_mov_b64 exec, -1
    """)
    k(f"s_cbranch_scc0 {k.L('a_now')}\ns_waitcnt vmcnt(0)")
    k.label("a_now")
    k("s_barrier")
    k.stamp("a_b1")

    side = {}

    def pfl(j):
        k(f"buffer_load_dwordx4 {vr(128+4*j,4)}, v2, s[4:7], s{44+(j&1)} offen")
        k(f"s_add_u32 s{44+(j&1)}, s{44+(j&1)}, s46")

    def w1d(reg, j):
        if j == 0:
            k(f"s_lshl_b32 s36, s3, 11\ns_add_u32 m0, s36, {reg*16384}")
        k(f"buffer_load_dwordx4 v125, s[4:7], m0 offen offset:{j*1024} lds")

    def kvd(p, j):
        if j == 0:
            k(f"""
            s_add_u32 s41, s12, {p}
            s_and_b32 s41, s41, 7
            s_lshl_b32 s41, s41, 14
            s_add_u32 s41, s41, s40
            s_add_u32 m0, s42, {p*16384}
            """)
        k(f"buffer_load_dwordx4 v1, s[8:11], s41 offen offset:{j*1024} sc1 lds", vm=("kv", p))
    k("s_lshl_b32 s42, s3, 11\ns_add_u32 s40, s40, s42")
    qa = [lambda j=j: pfl(j) for j in range(32)]
    for p in range(3, 8):
        for j in range(2):
            side[8 * (p - 3) + KV0 + j] = lambda p=p, j=j: kvd(p, j)
    for r in range(6):
        for j in range(2):
            side[8 * r + 6 + j] = lambda r=r, j=j: w1d(r, j)
    for u in range(PF0, 56):
        if u not in side and qa:
            side[u] = qa.pop(0)
            if u in (10, 12):
                side[u] = lambda a=side[u], b=qa.pop(0): (a(), b())
    assert not qa

    def fwl():
        k(f"s_cmp_eq_u32 s99, 7\ns_cbranch_scc1 {k.L('fwl')}")
        k.label("fwld")
    side[FWL] = fwl

    def extra(u):
        d = {}
        if u & 7 == 5 and u < 48:
            def pre(p=(u >> 3) + 2):
                k.wait(vm=("kv", p))
                if p == 2:
                    k(f"s_cmp_eq_u32 s99, 7\ns_cbranch_scc1 {k.L('fwc')}")
                    k.label("fwcd")
                    k("s_cmp_eq_u32 s14, 0")
                k("s_barrier")
                if p == 2:
                    k(f"s_cbranch_scc1 {k.L('fwv')}")
                    k.label("fwvd")
                    k.stamp("a_ver")
            d["pre"] = pre
        if u in side:
            d["mid"] = side[u]
        if TOUCH and u in (40, 42, 44):
            a, so = {40: ("v1", "s50"), 42: ("v11", "s51"), 44: ("v124", "s52")}[u]
            d["pre"] = lambda: k(f"buffer_load_dword v126, {a}, {AS}, {so} offen sc1")
        return d
    segment(56, False, extra)
    k.stamp("a_segB")
    k(f"""
    s_mul_i32 s36, s3, 2560
    s_add_u32 s36, s36, {L_CMB}
    v_add_u32 v8, s36, v1
    v_lshlrev_b32 v9, 2, v0
    v_add_u32 v10, s36, v9
    s_xor_b32 s37, s3, 4
    s_mul_i32 s37, s37, 2560
    s_add_u32 s37, s37, {L_CMB}
    v_add_u32 v11, s37, v1
    v_add_u32 v9, s37, v9
    s_lshl_b32 s39, s33, 7
    s_lshl_b32 s41, s13, 2
    s_add_u32 s39, s39, s41
    s_add_u32 s39, s39, {FO:#x}
    s_mov_b32 s41, {f32(2.0**-60)}
    ds_write_b128 v8, {vr(O+16,4)}
    ds_write_b128 v8, {vr(O+20,4)} offset:1024
    ds_write_b32 v10, v{O+24} offset:2048
    s_waitcnt lgkmcnt(0)
    s_barrier
    ds_read_b32 v{O+24}, v9 offset:2048
    ds_read_b128 {vr(O+16,4)}, v11
    ds_read_b128 {vr(O+20,4)}, v11 offset:1024
    s_waitcnt lgkmcnt(2)
    v_add_f32 v{O+8}, v{O+8}, v{O+24}
    v_cmp_gt_f32 vcc, {f32(2.0**60)}, v{O+8}
    v_cmp_lt_f32 s[36:37], s41, v{O+8}
    v_rcp_f32 v11, v{O+8}
    s_and_b64 s[36:37], s[36:37], vcc
    s_cmp_eq_u64 s[36:37], exec
    s_waitcnt lgkmcnt(0)
    s_cbranch_scc0 {k.L('a_fb')}
    """)
    for r in range(8):
        k(f"v_add_f32 v{O+r}, v{O+r}, v{O+16+r}")
    k.label("a_out")
    for r in range(8):
        k(f"v_mul_f32 v{O+r}, v11, v{O+r}")
    for r in range(4):
        k(f"v_cvt_pk_bf16_f32 v{P+r}, v{O+2*r}, v{O+2*r+1}")
    k(f"buffer_store_dwordx4 {vr(P,4)}, v1, {AS}, s50 offen")
    k.signal("s39", 8)
    k.stamp("a_sig")

    def fb():
        C = S + 16
        k.label("a_fb")
        k(f"""
        s_lshl_b32 s40, s13, 17
        s_add_u32 s40, s40, {KVG:#x}
        s_mov_b32 s41, 0
        v_mov_b32 v11, 0xff7fffff
        """)
        k.label("a_fb1")
        k(f"""
        s_lshr_b32 s36, s41, 2
        s_lshl_b32 s36, s36, 12
        s_lshl_b32 s37, s41, 10
        s_add_u32 s36, s36, s37
        s_add_u32 s36, s36, s40
        buffer_load_dwordx4 {vr(KR,4)}, v1, s[8:11], s36 offen sc1
        s_waitcnt vmcnt(0)
        {MF} {vr(S,16)}, {vr(KR,4)}, {vr(Q,4)}, 0
        """, vm="skip")
        for r in range(8):
            k(f"v_max3_f32 v11, v11, v{S+2*r}, v{S+2*r+1}")
        k(f"""
        s_add_u32 s41, s41, 1
        s_cmp_lt_u32 s41, 64
        s_cbranch_scc1 {k.L('a_fb1')}
        v_mov_b32 v10, v11
        v_permlane32_swap_b32 v10, v11
        v_max_f32 v11, v10, v11
        v_and_b32 v9, 0x1ff, v2
        v_add_u32 v9, 4096, v9
        v_and_b32 v10, 16, v0
        v_cmp_ne_u32 vcc, 0, v10
        s_mov_b32 s41, 0
        """)
        for r in range(16):
            k(f"v_sub_f32 v{C+r}, 0, v11\nv_mov_b32 v{O+r}, 0")
        k.label("a_fb2")
        k(f"""
        s_lshr_b32 s36, s41, 2
        s_lshl_b32 s36, s36, 12
        s_lshl_b32 s37, s41, 10
        s_add_u32 s36, s36, s37
        s_add_u32 s36, s36, s40
        buffer_load_dwordx4 {vr(KR,4)}, v1, s[8:11], s36 offen sc1
        buffer_load_dwordx4 {vr(VR,4)}, v9, s[8:11], s36 offen sc1
        buffer_load_dwordx4 {vr(VR+4,4)}, v9, s[8:11], s36 offen offset:512 sc1
        s_waitcnt vmcnt(0)
        {MF} {vr(S,16)}, {vr(KR,4)}, {vr(Q,4)}, {vr(C,16)}
        """, vm="skip")
        for r in range(8):
            k(f"v_cndmask_b32 v{VR+r}, v{VR+r}, v6")
        for r in range(16):
            k(f"v_exp_f32 v{S+r}, v{S+r}")
        for r in range(8):
            k(f"v_cvt_pk_bf16_f32 v{P+r}, v{S+2*r}, v{S+2*r+1}")
        for h in range(2):
            k(f"{MF} {vr(O,16)}, {vr(VR+4*h,4)}, {vr(P+4*h,4)}, {vr(O,16)}")
        k(f"""
        s_add_u32 s41, s41, 1
        s_cmp_lt_u32 s41, 64
        s_cbranch_scc1 {k.L('a_fb2')}
        v_rcp_f32 v11, v{O+8}
        s_nop 1
        s_branch {k.L('a_out')}
        """)
    k.deferred.append(fb)


def phase_wo(k):
    ACC, RES, WS = 64, 80, 32
    k(f"""
    s_lshl_b32 s36, s3, 11
    s_add_u32 s37, s22, {XA:#x}
    s_cmp_eq_u32 s14, 0
    s_cbranch_scc1 {k.L('res0')}
    buffer_load_dwordx4 {vr(RES,4)}, v1, {AS}, s37 offen sc1
    buffer_load_dwordx4 {vr(RES+4,4)}, v1, {AS}, s37 offen offset:1024 sc1
    """)
    k.label("res0d")

    def res0():
        k.label("res0")
        k(f"""
        s_and_b32 s38, s22, 0x7fff
        s_sub_u32 s37, s22, s38
        s_lshr_b32 s38, s38, 5
        s_add_u32 s37, s37, s38
        v_and_b32 v8, 31, v0
        v_lshrrev_b32 v9, 5, v0
        v_lshlrev_b32 v8, 10, v8
        v_lshl_add_u32 v8, v9, 3, v8
        """)
        for q in range(4):
            k(f"buffer_load_dwordx2 {vr(RES+2*q,2)}, v8, {XS}, s37 offen offset:{q*16}")
        k(f"s_branch {k.L('res0d')}")
    k.deferred.append(res0)
    k(f"""
    s_add_u32 m0, s36, {L_OB}
    v_bfe_u32 v8, v0, 2, 1
    v_and_b32 v9, 3, v0
    v_lshlrev_b32 v8, 7, v8
    v_lshl_add_u32 v8, v9, 5, v8
    s_lshl_b32 s36, s20, 7
    s_lshl_b32 s37, s3, 2
    s_add_u32 s36, s36, s37
    s_add_u32 s36, s36, {FO:#x}
    s_mul_i32 s37, s20, {RBS}
    s_lshl_b32 s38, s3, 10
    s_add_u32 s37, s37, s38
    s_add_u32 s37, s37, {RO:#x}
    s_add_u32 s38, s37, {RBS-1024}
    s_lshr_b32 s39, s16, 1
    s_lshl_b32 s39, s39, 10
    s_add_u32 s39, s39, {L_OB}
    v_add_u32 v10, s39, v1
    s_barrier
    """)
    k.poll(8, "s36", 9)
    k.stamp("w_flag")
    for j in range(4):
        k(f"buffer_load_dwordx4 v1, {AS}, s37 offen sc1 lds", vm=("o", j))
        k(f"buffer_load_dwordx4 v1, {AS}, s38 offen offset:1024 sc1 lds", vm=("o", j))
        if j < 3:
            k("s_add_u32 m0, m0, 16384\ns_add_u32 s37, s37, 8192\ns_add_u32 s38, s38, 8192")
    k(f"s_cmp_lg_u32 s17, 0\ns_cbranch_scc1 {k.L('wo_h')}")
    k.ctx(["C"])
    unpack(k, ACC, RES)

    def bar(j):
        k.wait(vm=("o", j))
        k("s_barrier")
    AH = 5
    ops = []
    for s in range(32):
        ops.append(dict(off=s * 2048, mf=lambda w, s=s: f"{MF} {vr(ACC,16)}, {vr(128+4*s,4)}, {vr(w,4)}, {vr(ACC,16)}"))
    ops[0]["pre"] = lambda: bar(0)
    for j in (1, 2, 3):
        ops[8 * j - AH]["pre"] = lambda j=j: bar(j)
    ops[31]["post"] = lambda: k("s_barrier")
    gemm_stream(k, ops, WS, [], 0, ahead=AH, areg="v10")
    k.stamp("w_mf")
    tile_epilogue(k, ACC, XB, STB, F1, 8)
    k.stamp("w_sig")


def phase_up(k):
    SR, AUG, RS, WS, ACC, A = 8, 24, 28, 32, 64, 128
    lda = load_x(k, XB, STB, F1, SR, A, "u_flag")
    PD = 12
    for s in range(PD):
        lda(s)
    c0 = -2.0 * math.sqrt(2.0 / math.pi) * LOG2E
    c1 = c0 * 0.044715
    k(f"""
    s_mul_i32 s40, s18, {112*1024}
    s_mul_i32 s41, s19, {7*1024}
    s_add_u32 s40, s40, s41
    s_add_u32 s40, s40, {RH:#x}
    s_add_u32 s41, s40, 4096
    s_lshl_b32 s43, s18, 7
    s_lshl_b32 s36, s19, 2
    s_add_u32 s43, s43, s36
    s_add_u32 s43, s43, {FH:#x}
    """)
    k.wait(vm="st")
    k.stamp("u_st")
    stats_math(k, SR, AUG, RS, "w1")
    k(f"""
    v_mov_b32 v31, v{SR+6}
    v_mul_f32 v29, {f32(c0)}, v{RS}
    v_mul_f32 v30, v{RS}, v{RS}
    v_mul_f32 v30, v30, v{RS}
    v_mul_f32 v30, {f32(c1)}, v30
    """)
    ops = []

    def op(s, t, **kw):
        b = vr(A + 4 * s, 4) if s < 32 else vr(AUG, 4)
        c = "0" if s == 0 else vr(ACC + 16 * t, 16)
        ops.append(dict(off=s * 3584 + t * 1024, mf=lambda w: f"{MF} {vr(ACC+16*t,16)}, {vr(w,4)}, {b}, {c}", **kw))
    for s in range(33):
        op(s, 0, vm=("a", s) if s < 32 else None, post=lambda s=s: lda(s + PD))
        op(s, 1)
    for t in (2, 3):
        for s in range(33):
            op(s, t)
    ops[48]["pre"] = lambda: k("s_barrier")
    ops[-1]["post"] = lambda: k("s_barrier")
    fill = []
    for u in range(7):
        a, T = ACC + 8 * u, 8 + (u & 1) * 8
        rdy = 67 if u < 4 else (100 if u < 6 else 1000)
        R = range(8)
        fill += [(f"v_mul_f32 v{T+r}, v{a+r}, v{a+r}", 4, rdy) for r in R]
        fill += [(f"v_fma_f32 v{T+r}, v{T+r}, v30, v29", 4, rdy) for r in R]
        fill += [(f"v_mul_f32 v{T+r}, v{T+r}, v{a+r}", 4, rdy) for r in R]
        fill += [(f"v_exp_f32 v{T+r}, v{T+r}", 8, rdy) for r in R]
        fill += [(f"v_fma_f32 v{T+r}, v{T+r}, v31, v31", 4, rdy) for r in R]
        fill += [(f"v_rcp_f32 v{T+r}, v{T+r}", 8, rdy) for r in R]
        fill += [(f"v_mul_f32 v{a+r}, v{T+r}, v{a+r}", 4, rdy) for r in R]
        fill += [(f"v_cvt_pk_bf16_f32 v{a+r}, v{a+2*r}, v{a+2*r+1}", 4, rdy) for r in range(4)]
        fill += [(f"buffer_store_dwordx4 {vr(a,4)}, v1, {AS}, s{40+(u>>2)} offen offset:{(u&3)*1024}", 4, rdy)]
    rest = gemm_stream(k, ops, WS, fill, UPB)
    k.stamp("u_mf")
    flush_fill(k, rest)
    k.signal("s43", 8)
    k.stamp("u_sig")
    k.stamp_flush(8)
    k(f"""
    s_cmp_lg_u32 s14, 0
    s_cbranch_scc1 {k.L('end')}
    s_mov_b32 s14, 1
    s_mov_b32 s96, 0
    s_add_u32 s8, s8, {LSTRIDE:#x}
    s_addc_u32 s9, s9, 0
    s_add_u32 s56, s56, {ASTRIDE:#x}
    s_addc_u32 s57, s57, 0
    """)
    k("s_barrier")
    k.stamp("start")
    wq_dma(k, 0, 10)
    wq_dma(k, 1, 10)
    k(f"s_branch {k.L('qkv_c')}")


def phase_dn(k):
    ACC, W = 64, 128
    k.label("wo_h")
    k.ctx(["H"])
    for j in range(4):
        k.wait(vm=("o", j))
        k("s_barrier")
    k(f"""
    s_mul_i32 s36, s16, 5120
    s_add_u32 m0, s36, 98304
    s_mul_i32 s40, s16, 12288
    s_add_u32 s41, s40, {L_Y}
    s_add_u32 s40, s40, {L_X}
    s_add_u32 s36, s47, {16*2048}
    s_sub_u32 s36, s36, s40
    v_add_u32 v8, s36, v1
    s_add_u32 s36, s47, {22*2048}
    s_sub_u32 s36, s36, s41
    v_add_u32 v9, s36, v1
    s_barrier
    """)
    k.dma_lin(125, "s[4:7]", 5, vm="w1")
    k("s_add_u32 m0, s40, 4096")
    k.dma_lin(8, "s[4:7]", 8)
    k(f"""
    s_add_u32 s37, s22, {XB:#x}
    s_and_b32 s38, s22, 0x7fff
    s_lshr_b32 s38, s38, 5
    v_lshrrev_b32 v10, 5, v0
    v_lshlrev_b32 v10, 3, v10
    """)
    for g in range(4):
        k(f"buffer_load_dwordx2 {vr(24+2*g,2)}, v10, s[24:27], s38 offen offset:{g*16}", vm="b2")
    k.wait(vm="w1")
    k("s_barrier")
    k(f"buffer_load_dwordx4 {vr(16,4)}, v1, {AS}, s37 offen sc1", vm="res")
    k(f"buffer_load_dwordx4 {vr(20,4)}, v1, {AS}, s37 offen offset:1024 sc1", vm="res")
    k(f"""
    s_and_b32 s36, s16, 1
    s_lshl_b32 s36, s36, 10
    v_add_u32 v10, s36, v2
    v_xor_b32 v11, 0x400, v10
    s_lshl_b32 s36, s20, 7
    s_lshl_b32 s37, s16, 4
    s_add_u32 s36, s36, s37
    s_add_u32 s36, s36, {FH:#x}
    s_lshr_b32 s37, s16, 1
    s_xor_b32 s38, s37, 1
    s_add_u32 s37, s37, s20
    s_add_u32 s38, s38, s20
    s_mul_i32 s37, s37, {112*1024}
    s_mul_i32 s38, s38, {112*1024}
    s_mul_i32 s39, s16, {28*1024}
    s_add_u32 s39, s39, {RH:#x}
    s_add_u32 s37, s37, s39
    s_add_u32 s38, s38, s39
    v_add_u32 v124, s41, v10
    v_add_u32 v125, s41, v11
    v_bfe_u32 v12, v0, 2, 1
    v_and_b32 v13, 3, v0
    v_lshlrev_b32 v12, 7, v12
    v_lshl_add_u32 v12, v13, 2, v12
    """)
    k.wait(vm="res")
    unpack(k, ACC, 16)
    unpack(k, ACC, 24, 14, add=True)
    k("s_mov_b32 m0, s40")
    k("s_barrier")
    k.dma_lin(8, "s[4:7]", 4)
    k("s_mov_b32 m0, s41")
    k.dma_lin(9, "s[4:7]", 12)
    k.poll(12, "s36", 13)
    k.stamp("d_flag")
    k("v_mov_b32 v8, v124\nv_mov_b32 v9, v125")
    free = list(range(12, 64, 4))
    steps = [(1, i) for i in range(28)] + [(0, i) for i in list(range(16, 28)) + list(range(16))]
    hreg, wreg = {}, {}
    nh, nw = [0], [0]
    wsteps = [n for n, (m, i) in enumerate(steps) if i >= 16]

    def ldh():
        n = nh[0]
        m, i = steps[n]
        r = free.pop(0)
        hreg[n] = r
        if i & 3 == 0:
            k(f"s_add_u32 s39, s{37+m}, {(i>>2)*4096}")
        k(f"buffer_load_dwordx4 {vr(r,4)}, v1, {AS}, s39 offen offset:{(i&3)*1024} sc1", vm=("h", n))
        nh[0] += 1

    def ldw():
        n = wsteps[nw[0]]
        i = steps[n][1]
        off = (i - 22) * 2048 if i >= 22 else (i - 16) * 2048 + L_X - L_Y
        wreg[n] = (free.pop(0), free.pop(0))
        for a in range(2):
            k(f"ds_read_b128 {vr(wreg[n][a],4)}, v{8+a} offset:{off}", lg=("w", n))
        nw[0] += 1

    def refill(n, cap):
        while nw[0] < len(wsteps) and wsteps[nw[0]] <= n + 2 and len(free) >= 2:
            ldw()
        resv = 2 if nw[0] < len(wsteps) and wsteps[nw[0]] <= n + 3 else 0
        c = 0
        while nh[0] < len(steps) and len(free) > resv and c < cap:
            ldh()
            c += 1

    def mf(n, a):
        m, i = steps[n]
        w = wreg[n][a] if i >= 16 else W + 8 * i + 4 * a
        t = ACC + 16 * (2 * m + a)
        first = (n == 0) or (n == 28 and a == 1)
        k(f"{MF} {vr(t,16)}, {vr(w,4)}, {vr(hreg[n],4)}, {'0' if first else vr(t,16)}")
    k("v_add_u32 v10, s40, v1")
    wr = [(a, q) for a in (2, 3) for q in range(4)]
    refill(-1, 99)
    NS = 4
    for n in range(56 - NS):
        m, i = steps[n]
        k.wait(vm=("h", n), lg=("w", n) if i >= 16 else None)
        mf(n, 0)
        refill(n, 1)
        mf(n, 1)
        free.append(hreg[n])
        if i >= 16:
            free += list(wreg[n])
        elif m == 0:
            free += [W + 8 * i, W + 8 * i + 4]
        refill(n, 2)
        if n >= 36 and wr:
            a, q = wr.pop(0)
            k(f"ds_write_b128 v10, {vr(ACC+16*a+4*q,4)} offset:{(a-1)*4096+q*1024}")
    assert not wr and nh[0] == 56
    for a in (1, 2, 3):
        k(f"s_xor_b32 s36, s16, {a}\ns_mul_i32 s36, s36, 12288\ns_add_u32 s36, s36, {L_X+(a-1)*4096}\nv_add_u32 v{96+a}, s36, v1")
    for n in range(56 - NS, 56):
        k.wait(vm=("h", n))
        mf(n, 1)
    mf(56 - NS, 0)
    mf(57 - NS, 0)
    for q in range(4):
        k(f"ds_write_b128 v10, {vr(ACC+16+4*q,4)} offset:{q*1024}")
        if q + 2 < NS:
            mf(58 - NS + q, 0)
    k("s_waitcnt lgkmcnt(0)\ns_barrier")
    k.stamp("d_mf")
    for a in (1, 2, 3):
        for q in range(4):
            k(f"ds_read_b128 {vr(16*a+4*q,4)}, v{96+a} offset:{q*1024}", lg=("p", a))
    for a in (1, 2, 3):
        k.wait(lg=("p", a))
        for r in range(16):
            k(f"v_add_f32 v{ACC+r}, v{ACC+r}, v{16*a+r}")
    k(f"s_cmp_lg_u32 s14, 0\ns_cbranch_scc1 {k.L('final')}")
    tile_epilogue(k, ACC, XA + ASTRIDE, STA + ASTRIDE, FX + LSTRIDE, 8)
    k.stamp("d_sig")
    k.stamp_flush(8)
    k(f"""
    s_mov_b32 s14, 1
    s_mov_b32 s96, 0
    s_add_u32 s8, s8, {LSTRIDE:#x}
    s_addc_u32 s9, s9, 0
    s_add_u32 s56, s56, {ASTRIDE:#x}
    s_addc_u32 s57, s57, 0
    """)
    k.stamp("start")
    k(f"s_branch {k.L('qkv_h')}")
    k.label("final")
    O = 16
    for r in range(8):
        k(f"v_cvt_pk_bf16_f32 v{O+r}, v{ACC+2*r}, v{ACC+2*r+1}")
    k(f"""
    s_and_b32 s36, s22, 0x7fff
    s_sub_u32 s37, s22, s36
    s_lshr_b32 s36, s36, 5
    s_add_u32 s36, s36, s37
    v_and_b32 v8, 31, v0
    v_lshrrev_b32 v9, 5, v0
    v_lshlrev_b32 v8, 10, v8
    v_lshl_add_u32 v8, v9, 4, v8
    v_permlane32_swap_b32 v{O}, v{O+2}
    v_permlane32_swap_b32 v{O+1}, v{O+3}
    v_permlane32_swap_b32 v{O+4}, v{O+6}
    v_permlane32_swap_b32 v{O+5}, v{O+7}
    buffer_store_dwordx4 {vr(O,4)}, v8, s[28:31], s36 offen
    buffer_store_dwordx4 {vr(O+4,4)}, v8, s[28:31], s36 offen offset:32
    """)
    if PROF:
        k("s_waitcnt vmcnt(0)")
    k.stamp("d_sig")
    k.stamp_flush(8)


UPB = 20
FWL = int(os.environ.get("FWL", "2"))


def gen_mega():
    k = MK("mega_kernel", 256, 512, 163840, vgpr=256, sgpr=102)
    prologue(k)
    phase_qkv0_h(k)
    k(f"s_branch {k.L('att')}")
    phase_qkv0_c(k)
    phase_qkv_h(k)
    k(f"s_branch {k.L('att')}")
    phase_qkv_c(k)
    phase_att(k)
    phase_wo(k)
    phase_up(k)
    phase_dn(k)
    k.label("end")
    k("s_endpgm")
    i = 0
    while i < len(k.deferred):
        k.deferred[i]()
        i += 1
    return k


def main(path):
    ks = [gen_mega()]
    hdr = ["; 2 x (MHA block + channel MLP) for gfx950; generated by gen/gen4.py",
           "; kernarg: x,wqkv,wo,(unused),w1,b1,w2,b2,out,debug,ws"]
    emit_file(path, hdr, ["mega_kernel"], ks)
    if PROF:
        import json
        json.dump(STAMPS, open(path + ".stamps", "w"))
    return ks


if __name__ == "__main__":
    main(sys.argv[1] if len(sys.argv) > 1 else "v2.s")
```

```python
from lay4 import *

PROF = int(os.environ.get("PROF", "0"))
FORCE_SAFE = int(os.environ.get("SAFE", "0"))
FORCE_BAD = int(os.environ.get("BAD", "0"))
LIMIT = 20000
L_R0, L_QI, L_AUG = 65536, 98304, 131072
XS, WQS = "s[64:67]", "s[68:71]"
L_HAND, L_RST, L_MODE = 114688, 112640, 113664
L_P0, L_ONES, L_CMB, L_OB, L_X, L_Y = 131072, 159744, 131072, 98304, 114688, 65536
MF = "v_mfma_f32_32x32x16_bf16"
STAMPS = []
PF0 = 6
QSLP = int(os.environ.get("QSLP", "20"))
EARLY = int(os.environ.get("EARLY", "3"))
KV0 = 0
TOUCH = int(os.environ.get("TOUCH", "1"))


class MK(Kernel):
    def __init__(self, *a, **kw):
        super().__init__(*a, **kw)
        self.deferred = []
        self.uid = 0

    def u(self, p):
        self.uid += 1
        return f"{p}{self.uid}"

    def stamp(self, name):
        if not PROF:
            return
        if name not in STAMPS:
            STAMPS.append(name)
        i = STAMPS.index(name)
        self(f"s_memrealtime s[62:63]\ns_waitcnt lgkmcnt(0)\nv_writelane_b32 v7, s62, {i}")

    def stamp_flush(self, tmp):
        if not PROF:
            return
        self(f"""
        s_lshl_b32 s60, s12, 5
        s_add_u32 s60, s60, s13
        s_lshl_b32 s60, s60, 3
        s_add_u32 s60, s60, s3
        s_lshl_b32 s60, s60, 8
        s_add_u32 s60, s60, {PROFB:#x}
        v_lshlrev_b32 v{tmp}, 2, v0
        buffer_store_dword v7, v{tmp}, s[8:11], s60 offen
        """)

    def poll(self, vaddr, soff, tmp, acquire=True, boot=False, wide=False):
        l = self.u("poll")
        self("s_mov_b32 s35, 0")
        self.label(l)
        if wide:
            self(f"buffer_load_dwordx4 {vr(tmp,4)}, v{vaddr}, s[8:11], {soff} offen sc1")
        else:
            self(f"buffer_load_dword v{tmp}, v{vaddr}, s[8:11], {soff} offen sc1")
        self(f"""
        s_add_u32 s35, s35, 1
        s_cmp_gt_u32 s35, {LIMIT}
        s_cbranch_scc1 {self.L('end')}
        """)
        if boot:
            self(f"s_and_b32 s34, s35, s96\ns_cmp_eq_u32 s34, 15\ns_cbranch_scc1 {self.L(l+'s')}")
            self.deferred.append(lambda: self.slow(l))
        self("s_waitcnt vmcnt(0)")
        if wide:
            self(f"v_and_b32 v{tmp}, v{tmp}, v{tmp+1}\nv_and_b32 v{tmp+2}, v{tmp+2}, v{tmp+3}\nv_and_b32 v{tmp}, v{tmp}, v{tmp+2}")
        self(f"""
        v_cmp_ne_u32 vcc, 1, v{tmp}
        s_cbranch_vccnz {self.L(l)}
        """)
        self.label(l + "x")
        if acquire:
            self(f"s_cmp_lg_u32 s15, 0\ns_cbranch_scc1 {self.L(l+'a')}")
            self.label(l + "b")

            def d():
                self.label(l + "a")
                self(f"buffer_inv sc1\ns_waitcnt vmcnt(0)\ns_branch {self.L(l+'b')}")
            self.deferred.append(d)

    def slow(self, l):
        T = 132
        self.label(l + "s")
        self(f"""
        s_mov_b64 exec, 1
        v_mov_b32 v{T}, 1
        s_lshl_b32 s34, s12, 5
        s_add_u32 s34, s34, s13
        s_lshl_b32 s34, s34, 2
        s_add_u32 s34, s34, {FR2:#x}
        buffer_atomic_add v{T}, off, s[8:11], 0 sc1
        s_cmp_lg_u32 s3, 7
        s_cbranch_scc1 {self.L(l+'t')}
        buffer_store_dword v{T}, off, s[8:11], s34 sc1
        s_or_b32 s34, s98, 0x80
        v_mov_b32 v{T+1}, s34
        s_lshl_b32 s34, s2, 2
        s_add_u32 s34, s34, {FWS:#x}
        s_waitcnt vmcnt(0)
        buffer_store_dword v{T+1}, off, s[8:11], s34 sc1
        """, vm="skip")
        self.label(l + "t")
        self(f"""
        s_mov_b64 exec, -1
        s_movk_i32 s34, {FWS:#x}
        buffer_load_dwordx4 {vr(T,4)}, v1, s[8:11], s34 offen sc1
        s_waitcnt vmcnt(0)
        buffer_load_dwordx4 {vr(T+4,4)}, v1, s[8:11], s34 offen offset:{FR2-FWS} sc1
        v_and_b32 v{T}, v{T}, v{T+1}
        v_and_b32 v{T+2}, v{T+2}, v{T+3}
        v_and_b32 v{T}, v{T}, v{T+2}
        v_cmp_gt_u32 vcc, 0x80, v{T}
        s_waitcnt vmcnt(0)
        s_cbranch_vccnz {self.L(l)}
        v_and_b32 v{T+4}, v{T+4}, v{T+5}
        v_and_b32 v{T+6}, v{T+6}, v{T+7}
        v_and_b32 v{T+4}, v{T+4}, v{T+6}
        v_cmp_ne_u32 vcc, 1, v{T+4}
        s_cbranch_vccz {self.L(l)}
        s_mov_b32 s97, 1
        s_branch {self.L(l+'x')}
        """, vm="skip")

    def signal(self, soff, tmp, glob=False, wtag=0):
        l = self.u("sig")
        self(f"v_mov_b32 v{tmp}, 1")
        self("s_mov_b64 exec, 1")
        if glob:
            self.wait(vm=wtag)
            self(f"buffer_store_dword v{tmp}, off, s[8:11], {soff} sc1")
        else:
            self(f"s_cmp_lg_u32 s15, 0\ns_waitcnt vmcnt(0)\ns_cbranch_scc1 {self.L(l+'a')}")
            self(f"buffer_store_dword v{tmp}, off, s[8:11], {soff}")
            self.label(l + "b")

            def d():
                self.label(l + "a")
                self(f"buffer_wbl2 sc1\ns_waitcnt vmcnt(0)")
                self(f"buffer_store_dword v{tmp}, off, s[8:11], {soff} sc1", vm="skip")
                self(f"s_branch {self.L(l+'b')}")
            self.deferred.append(d)
        self("s_mov_b64 exec, -1")

    def dma_lin(self, vaddr, srd, n, vm=None):
        for j in range(n):
            if j and j % 4 == 0:
                self("s_add_u32 m0, m0, 4096")
            self(f"buffer_load_dwordx4 v{vaddr}, {srd}, m0 offen offset:{(j%4)*1024} lds", vm=vm)


def gemm_stream(k, ops, WS, fill, budget, ahead=6, areg=None):
    n = len(ops)
    issued = [0]

    def rd_upto(m):
        while issued[0] <= min(m, n - 1):
            j = issued[0]
            if ops[j].get("rd"):
                ops[j]["rd"](WS + 4 * (j % 8), ("w", j))
                issued[0] += 1
                continue
            off, a = ops[j]["off"], "v2"
            if areg:
                a = areg
            elif off >= 65536:
                off, a = off - 65536, "v3"
            k(f"ds_read_b128 {vr(WS+4*(j%8),4)}, {a} offset:{off}", lg=("w", j))
            issued[0] += 1
    fi = 0
    for j, o in enumerate(ops):
        if o.get("pre"):
            o["pre"]()
        rd_upto(j + ahead)
        k.wait(vm=o.get("vm"), lg=("w", j))
        k(o["mf"](WS + 4 * (j % 8)))
        if o.get("post"):
            o["post"]()
        b = o.get("bud", budget)
        while fi < len(fill) and fill[fi][2] <= j and b > 0:
            f = fill[fi]
            if callable(f[0]):
                f[0]()
            else:
                k(f[0], **(f[3] if len(f) > 3 else {}))
            b -= f[1]
            fi += 1
    return fill[fi:]


def flush_fill(k, fill):
    for f in fill:
        if callable(f[0]):
            f[0]()
        else:
            k(f[0], **(f[3] if len(f) > 3 else {}))


def load_x(k, xoff, stoff, flags, SR, A, name):
    k(f"""
    s_lshl_b32 s36, s18, 7
    s_add_u32 s36, s36, {flags:#x}
    v_and_b32 v8, 15, v0
    v_lshlrev_b32 v8, 2, v8
    s_lshl_b32 s37, s18, 12
    s_add_u32 s37, s37, {stoff:#x}
    s_lshl_b32 s38, s18, 15
    s_add_u32 s38, s38, {xoff:#x}
    """)
    k.poll(8, "s36", 9)
    k.stamp(name)
    for q in range(4):
        k(f"buffer_load_dwordx4 {vr(SR+4*q,4)}, v4, {AS}, s37 offen offset:{q*512} sc1", vm="st")

    def lda(s):
        if s >= 32:
            return
        k(f"buffer_load_dwordx4 {vr(A+4*s,4)}, v1, {AS}, s38 offen offset:{(s&3)*1024} sc1", vm=("a", s))
        if s & 3 == 3:
            k("s_add_u32 s38, s38, 4096")
    return lda


def tile_epilogue(k, ACC, xbase, stbase, flbase, T):
    k(f"s_add_u32 s36, s22, {xbase:#x}")
    k(f"s_add_u32 s37, s23, {stbase:#x}")
    k(f"s_add_u32 s38, s32, {flbase:#x}")
    for h in range(2):
        for r in range(4):
            k(f"v_cvt_pk_bf16_f32 v{ACC+8*h+r}, v{ACC+8*h+2*r}, v{ACC+8*h+2*r+1}")
        k(f"buffer_store_dwordx4 {vr(ACC+8*h,4)}, v1, {AS}, s36 offen offset:{h*1024}")
    for i, r in enumerate([0, 1, 2, 3, 8, 9, 10, 11]):
        k(f"v_dot2_f32_bf16 v{T}, v{ACC+r}, v6, {'0' if i==0 else f'v{T}'}")
        k(f"v_dot2_f32_bf16 v{T+1}, v{ACC+r}, v{ACC+r}, {'0' if i==0 else f'v{T+1}'}")
    k(f"""
    v_permlane32_swap_b32 v{T}, v{T+1}
    v_add_f32 v{T}, v{T}, v{T+1}
    buffer_store_dword v{T}, v5, {AS}, s37 offen
    """)
    k.signal("s38", T + 2)


def unpack(k, ACC, src, T=None, add=False):
    for r in range(8):
        if not add:
            k(f"v_lshlrev_b32 v{ACC+2*r}, 16, v{src+r}")
            k(f"v_and_b32 v{ACC+2*r+1}, 0xffff0000, v{src+r}")
        else:
            k(f"v_lshlrev_b32 v{T}, 16, v{src+r}")
            k(f"v_and_b32 v{T+1}, 0xffff0000, v{src+r}")
            k(f"v_add_f32 v{ACC+2*r}, v{ACC+2*r}, v{T}")
            k(f"v_add_f32 v{ACC+2*r+1}, v{ACC+2*r+1}, v{T+1}")


def wq_dma(k, part, tmp):
    k(f"s_mul_i32 s36, s19, {WQ_CT}")
    k(f"s_add_u32 s36, s36, {WQF:#x}")
    k(f"v_add_u32 v{tmp}, s36, v1")
    if part == 0:
        k("s_lshl_b32 m0, s16, 14")
        k.dma_lin(tmp, "s[4:7]", 16)
    else:
        k("s_mul_i32 s36, s16, 9216")
        k("s_add_u32 m0, s36, 65536")
        k.dma_lin(tmp, "s[4:7]", 9)


def kv_offsets(k, base):
    k(f"""
    s_lshl_b32 s40, s19, 18
    s_lshr_b32 s41, s18, 2
    s_lshl_b32 s41, s41, 13
    s_add_u32 s40, s40, s41
    s_lshl_b32 s41, s16, 10
    s_add_u32 s40, s40, s41
    s_add_u32 s40, s40, {base:#x}
    s_add_u32 s41, s40, 0x20000
    s_add_u32 s42, s40, 4096
    v_and_b32 v30, 0x1ff, v2
    v_bfe_u32 v31, v0, 4, 1
    v_lshl_add_u32 v30, v31, 17, v30
    """)


def loc_offsets(k):
    k(f"""
    s_mul_i32 s44, s18, {RBS}
    s_lshl_b32 s45, s19, 11
    s_add_u32 s44, s44, s45
    s_add_u32 s44, s44, {RQ:#x}
    s_add_u32 s40, s44, 0x8000
    s_add_u32 s42, s44, 0x10000
    v_and_b32 v30, 0x1ff, v2
    v_bfe_u32 v31, v0, 4, 1
    v_lshl_add_u32 v30, v31, 10, v30
    """)


def touch_qkv(k, J):
    loc_offsets(k)
    k(f"""
    v_lshlrev_b32 v30, 5, v0
    buffer_load_dword v{J}, v30, {AS}, s40 offen sc1
    buffer_load_dword v{J}, v30, {AS}, s42 offen sc1
    buffer_load_dword v{J}, v30, {AS}, s44 offen sc1
    """)


OOB = "0x80000000"
CONV_AT = int(os.environ.get("CONV", "2"))
DOTB = int(os.environ.get("DOTB", "4"))
TRD = "ds_read_b64_tr_b16"
ROT = int(os.environ.get("ROT", "1"))
CODEPF = int(os.environ.get("CODEPF", "1"))
WBL = int(os.environ.get("WBL", "0"))
CVE = int(os.environ.get("CVE", "1"))
TQ = int(os.environ.get("TQ", "1"))
TLBW = int(os.environ.get("TLBW", "1"))
TG = int(os.environ.get("TG", "64"))


def prologue(k):
    k(f"""
    s_cmp_ge_u32 s2, 256
    s_cbranch_scc1 {k.L('end')}
    s_load_dwordx16 s[80:95], s[0:1], 0
    s_load_dwordx2 s[8:9], s[0:1], 80
    s_load_dwordx2 s[28:29], s[0:1], 64
    s_getreg_b32 s98, hwreg(HW_REG_XCC_ID)
    s_lshr_b32 s13, s2, 3
    v_lshrrev_b32 v1, 6, v0
    v_and_b32 v0, 63, v0
    v_readfirstlane_b32 s3, v1
    s_and_b32 s98, s98, 7
    s_mov_b32 s12, s98
    s_mov_b32 s10, {3*LSTRIDE:#x}
    s_mov_b32 s11, 0x00020000
    s_mov_b32 s6, {WWSZ:#x}
    s_mov_b32 s7, 0x00020000
    s_mov_b32 s58, {ASZ:#x}
    s_mov_b32 s59, 0x00020000
    s_mov_b32 s30, {2048*1024}
    s_mov_b32 s31, 0x00020000
    s_mov_b32 s26, 1024
    s_mov_b32 s27, 0x00020000
    s_mov_b32 s66, {2048*1024}
    s_mov_b32 s67, 0x00020000
    s_mov_b32 s70, {512*3072}
    s_mov_b32 s71, 0x00020000
    s_mov_b32 s75, 0x00020000
    s_mov_b32 s79, 0x00020000
    s_mov_b32 s14, 0
    s_mov_b32 s15, {FORCE_SAFE}
    s_mov_b32 s96, 15
    s_mov_b32 s97, 0
    s_and_b32 s16, s3, 3
    s_lshr_b32 s17, s3, 2
    v_mov_b32 v7, 0
    v_lshlrev_b32 v1, 4, v0
    v_lshrrev_b32 v10, 5, v0
    v_and_b32 v11, 31, v0
    v_and_b32 v2, 15, v0
    v_lshlrev_b32 v2, 4, v2
    v_lshl_add_u32 v2, v10, 8, v2
    v_bfe_u32 v3, v0, 4, 1
    v_lshl_add_u32 v2, v3, 9, v2
    v_add_u32 v3, 0x10000, v2
    v_lshlrev_b32 v5, 4, v11
    v_lshl_add_u32 v4, v10, 11, v5
    v_lshl_add_u32 v5, v10, 2, v5
    v_mov_b32 v6, {ONES}
    """)
    if FORCE_BAD:
        k("s_cmp_eq_u32 s13, 5\ns_cselect_b32 s13, 9, s13")
    if FORCE_BAD == 2:
        k("s_min_u32 s98, s98, 6")
    k.label("role")
    k(f"""
    s_lshl_b32 s36, s12, 3
    s_and_b32 s37, s13, 1
    s_lshl_b32 s37, s37, 2
    s_add_u32 s18, s36, s37
    s_add_u32 s18, s18, s16
    s_lshr_b32 s19, s13, 1
    s_and_b32 s37, s13, 3
    s_lshl_b32 s37, s37, 1
    s_add_u32 s20, s36, s37
    s_lshr_b32 s21, s13, 2
    s_lshr_b32 s36, s16, 1
    s_add_u32 s36, s36, s20
    s_and_b32 s37, s16, 1
    s_lshl_b32 s38, s21, 1
    s_add_u32 s38, s38, s37
    s_lshl_b32 s22, s36, 15
    s_lshl_b32 s39, s38, 11
    s_add_u32 s22, s22, s39
    s_lshl_b32 s23, s36, 12
    s_lshl_b32 s39, s21, 9
    s_add_u32 s23, s23, s39
    s_lshl_b32 s39, s37, 3
    s_add_u32 s23, s23, s39
    s_lshl_b32 s32, s36, 7
    s_lshl_b32 s39, s38, 2
    s_add_u32 s32, s32, s39
    s_lshl_b32 s33, s13, 1
    s_add_u32 s33, s33, s19
    s_and_b32 s33, s33, {3*ROT}
    v_lshrrev_b32 v12, 2, v0
    v_mul_u32_u24 v12, 3072, v12
    v_and_b32 v13, 3, v0
    v_lshl_add_u32 v12, v13, 4, v12
    v_bfe_u32 v22, v0, 2, 2
    v_lshlrev_b32 v22, 6, v22
    v_lshl_add_u32 v22, v13, 3, v22
    v_bfe_u32 v13, v0, 4, 1
    v_lshl_add_u32 v22, v13, 5, v22
    v_lshrrev_b32 v10, 5, v0
    s_mul_i32 s40, s17, {512*3072-4}
    s_mul_i32 s41, s17, {2048*1024-4}
    s_mul_i32 s42, s17, {512*3584-4}
    s_mul_i32 s43, s17, {512*1024-4}
    s_lshl_b32 s44, s3, 21
    s_add_u32 s44, s44, 0x400
    s_add_u32 s45, s44, 0x1000000
    s_cmp_eq_u32 s96, 0
    s_waitcnt lgkmcnt(0)
    s_cbranch_scc1 {k.L('go')}
    """)
    if TLBW:
        k(f"""
        s_load_dword s61, s[82:83], s40
        s_load_dword s61, s[80:81], s41
        s_load_dword s61, s[8:9], s44
        s_load_dword s61, s[8:9], s45
        s_load_dword s61, s[88:89], s42
        s_load_dword s61, s[92:93], s42
        s_load_dword s61, s[84:85], s43
        s_load_dword s61, s[90:91], 0
        s_load_dword s61, s[94:95], 0
        s_load_dword s61, s[28:29], s41
        """)
    k(f"""
    s_mov_b32 s64, s80
    s_mov_b32 s65, s81
    s_mov_b32 s68, s82
    s_mov_b32 s69, s83
    s_add_u32 s4, s8, {WBASE:#x}
    s_addc_u32 s5, s9, 0
    s_add_u32 s56, s8, {ABASE:#x}
    s_addc_u32 s57, s9, 0
    s_mov_b32 s24, s94
    s_mov_b32 s25, s95
    s_mov_b32 s76, s90
    s_mov_b32 s77, s91
    """)
    if CODEPF:
        k(f"""
        s_cmp_lg_u32 s3, 5
        s_cbranch_scc1 {k.L('go')}
        s_getpc_b64 s[72:73]
        """)
        k.label("pcb")
        k(f"""
        s_mov_b32 s74, {k.L('cend')}-{k.L('pcb')}
        s_and_b32 s36, s13, 7
        s_lshl_b32 s36, s36, 13
        v_lshlrev_b32 v8, 7, v0
        v_add_u32 v8, s36, v8
        buffer_load_dword v15, v8, s[72:75], 0 offen
        """, vm="skip")
    k.label("go")
    k.stamp("start")
    k(f"s_cmp_eq_u32 s17, 0\ns_cbranch_scc1 {k.L('qkv0_c')}")


def aug_pack(k, C, T, bias=None):
    k(f"""
    v_cvt_pk_bf16_f32 v{T}, v{C}, v{C}
    v_and_b32 v{T+1}, 0xffff0000, v{T}
    v_sub_f32 v{T+1}, v{C}, v{T+1}
    v_cvt_pk_bf16_f32 v{T+1}, v{T+1}, 0
    """)
    if bias is not None:
        k(f"v_lshl_or_b32 v{T+1}, v{bias}, 16, v{T+1}")


def phase_qkv0_h(k):
    k.ctx(["H"])
    CV = 128

    def conv_setup():
        k(f"""
        s_mov_b32 s78, 0
        s_cmp_ge_u32 s2, 112
        s_cbranch_scc1 {k.L('cv_n1')}
        s_mov_b32 s72, s88
        s_mov_b32 s73, s89
        s_mov_b32 s74, {512*3584}
        s_movk_i32 s47, 3584
        s_movk_i32 s50, 3584
        s_and_b32 s36, s2, 3
        s_andn2_b32 s37, s2, 3
        s_add_u32 s37, s37, s16
        s_lshl_b32 s52, s37, 5
        s_mul_i32 s48, s36, {128*3584}
        s_andn2_b32 s39, s52, 127
        s_add_u32 s48, s48, s39
        s_mul_i32 s38, s37, 147
        s_lshr_b32 s38, s38, 10
        s_mul_i32 s38, s38, {W1_CT-7*512}
        s_lshl_b32 s37, s37, 9
        s_add_u32 s38, s38, s37
        s_add_u32 s38, s38, {W1F:#x}
        s_mul_i32 s49, s36, {8*3584}
        s_add_u32 s49, s49, s38
        s_lshr_b32 s51, s36, 1
        s_lshl_b32 s51, s51, 8
        s_add_u32 s51, s51, s38
        s_and_b32 s37, s36, 1
        s_lshl_b32 s37, s37, 3
        s_add_u32 s51, s51, s37
        s_add_u32 s51, s51, {32*3584}
        s_cmp_lt_u32 s36, 2
        s_cselect_b32 s78, 3584, 0
        s_branch {k.L('cv_go')}
        """)
        k.label("cv_n1")
        k(f"""
        s_mov_b32 s72, s92
        s_mov_b32 s73, s93
        s_mov_b32 s74, {1792*1024}
        s_sub_u32 s36, s2, 112
        s_mov_b32 s38, {W2_CT}
        s_mov_b32 s39, {W2F:#x}
        s_mov_b32 s52, 0
        s_mov_b32 s51, 0
        s_cmp_lt_u32 s2, 224
        s_cbranch_scc1 {k.L('cv_n2')}
        s_mov_b32 s72, s84
        s_mov_b32 s73, s85
        s_mov_b32 s74, {512*1024}
        s_sub_u32 s36, s2, 224
        s_mov_b32 s38, {WO_CT}
        s_mov_b32 s39, {WOF:#x}
        """)
        k.label("cv_n2")
        k(f"""
        s_movk_i32 s47, 1024
        s_movk_i32 s50, 2048
        s_and_b32 s37, s36, 7
        s_lshr_b32 s36, s36, 3
        s_lshl_b32 s48, s36, 17
        s_lshl_b32 s49, s37, 7
        s_add_u32 s48, s48, s49
        s_mul_i32 s49, s37, s38
        s_add_u32 s49, s49, s39
        s_lshl_b32 s36, s36, 14
        s_add_u32 s49, s49, s36
        s_lshl_b32 s36, s16, 9
        s_add_u32 s49, s49, s36
        """)
        k.label("cv_go")
        k("s_lshl_b32 s36, s47, 5\ns_mul_i32 s36, s36, s16\ns_add_u32 s48, s48, s36")

    k(f"""
    s_cmp_eq_u32 s3, 7
    s_cselect_b32 s46, s96, 0
    s_cmp_lg_u32 s46, 0
    s_cselect_b32 s36, 0, {OOB}
    v_mov_b32 v13, {OOB}
    v_mov_b32 v14, {OOB}
    v_writelane_b32 v13, s36, 0
    s_or_b32 s37, s36, s2
    s_lshl_b32 s40, s19, 6
    s_mul_i32 s41, s16, {2*49152}
    s_add_u32 s40, s40, s41
    s_add_u32 s40, s40, 1024
    s_lshl_b32 m0, s16, 12
    s_cmp_eq_u32 s37, 0
    s_cbranch_scc1 {k.L('lead')}
    """)
    k.label("led")

    def lead():
        k.label("lead")
        k(f"""
        v_writelane_b32 v14, 0, 0
        v_mov_b32 v32, 0
        v_mov_b32 v33, 0
        v_mov_b32 v34, 0
        v_mov_b32 v35, 0
        v_lshrrev_b32 v36, 1, v0
        v_and_b32 v37, 16, v1
        v_lshl_add_u32 v36, v36, 7, v37
        v_lshrrev_b32 v37, 2, v0
        v_and_b32 v38, 48, v1
        v_lshl_add_u32 v37, v37, 7, v38
        """)
        for i in range(4):
            k(f"s_movk_i32 s36, {FQ+i*4096:#x}")
            k(f"buffer_store_dwordx4 v[32:35], v36, s[8:11], s36 offen sc1", vm="skip")
        for i in range(4):
            k(f"s_movk_i32 s36, {FKV+i*2048:#x}")
            k(f"buffer_store_dwordx4 v[32:35], v37, s[8:11], s36 offen sc1", vm="skip")
        k(f"s_movk_i32 s36, {FWR:#x}")
        for i in range(4):
            k(f"buffer_store_dwordx4 v[32:35], v1, s[8:11], s36 offen offset:{i*1024} sc1", vm="skip")
        k(f"s_branch {k.L('led')}")
    k.deferred.append(lead)
    k(f"buffer_load_dword v16, v13, s[8:11], 0 offen sc1", vm="a0")

    def wdma(c):
        k(f"s_add_u32 s41, s33, {c}\ns_and_b32 s41, s41, 3\ns_mul_i32 s41, s41, {8*49152}\ns_add_u32 s41, s41, s40")
        for i in range(2):
            k(f"buffer_load_dwordx4 v12, {WQS}, s41 offen lds", vm=("w", c))
            k(f"buffer_load_dwordx4 v12, {WQS}, s41 offen offset:1024 lds", vm=("w", c))
            k(f"s_add_u32 m0, m0, {2048*(7 if i else 1)}")
            if i == 0:
                k("s_add_u32 s41, s41, 49152")
    wdma(0)
    conv_setup()
    k(f"""
    v_lshrrev_b32 v8, 4, v0
    v_mul_u32_u24 v8, 3072, v8
    v_and_b32 v9, 15, v0
    v_lshl_add_u32 v8, v9, 6, v8
    s_lshl_b32 s36, s13, 2
    s_add_u32 s36, s36, s16
    s_mul_i32 s37, s36, {4*3072}
    v_lshrrev_b32 v9, 1, v0
    v_mul_u32_u24 v9, s47, v9
    v_and_b32 v11, 1, v0
    v_lshl_add_u32 v9, v11, 6, v9
    """)
    if TG == 128:
        k("s_mov_b32 exec_lo, 0x55555555\ns_mov_b32 exec_hi, 0x55555555")
    k(f"""
    buffer_load_dword v15, v8, {WQS}, s37 offen
    buffer_load_dword v15, v9, s[72:75], s48 offen
    s_mov_b64 exec, -1
    """)
    for c in range(1, 4):
        wdma(c)
    k.stamp("wi")
    k(f"""
    s_lshr_b32 s36, s2, 6
    s_cmp_lt_u32 s2, 32
    s_cselect_b32 s36, 3, s36
    s_cmp_lg_u32 s3, 6
    s_cselect_b32 s36, 3, s36
    s_cmp_eq_u32 s96, 0
    s_cselect_b32 s36, 3, s36
    s_cmp_eq_u32 s36, 3
    s_cbranch_scc1 {k.L('noclr')}
    s_mul_i32 s36, s36, {LSTRIDE:#x}
    s_and_b32 s37, s2, 63
    s_lshl_b32 s37, s37, 10
    s_add_u32 s36, s36, s37
    v_mov_b32 v32, 0
    v_mov_b32 v33, 0
    v_mov_b32 v34, 0
    v_mov_b32 v35, 0
    buffer_store_dwordx4 v[32:35], v1, s[8:11], s36 offen sc1
    """, vm="skip")
    k.label("noclr")
    k(f"""
    v_lshrrev_b32 v8, 3, v0
    v_mul_u32_u24 v23, s47, v8
    v_and_b32 v8, 0x70, v1
    v_add_u32 v23, v23, v8
    v_and_b32 v25, 15, v0
    v_lshlrev_b32 v25, 1, v25
    v_mul_u32_u24 v24, s50, v10
    v_and_b32 v8, 0x1f0, v1
    v_add_u32 v24, v24, v8
    s_lshl_b32 s53, s47, 3
    s_sub_u32 s53, s53, 1024
    v_bfe_u32 v8, v0, 2, 3
    v_lshl_add_u32 v8, v10, 4, v8
    v_and_b32 v9, 3, v0
    v_lshlrev_b32 v9, 3, v9
    v_lshl_add_u32 v29, v8, 7, v9
    s_lshl_b32 s36, s16, 5
    v_add_u32 v29, s36, v29
    v_lshl_add_u32 v17, v10, 8, v22
    s_lshl_b32 s36, s16, 11
    s_add_u32 s37, s36, {L_QI}
    v_add_u32 v18, s37, v17
    s_lshl_b32 s36, s16, 12
    v_add_u32 v17, s36, v17
    v_and_b32 v21, 0x2ff, v2
    s_lshr_b32 s36, s16, 1
    s_lshl_b32 s36, s36, 8
    s_and_b32 s37, s16, 1
    s_lshl_b32 s37, s37, 3
    s_add_u32 s36, s36, s37
    v_add_u32 v21, s36, v21
    v_add_u32 v20, {L_AUG}, v21
    s_lshr_b32 s36, s18, 2
    s_and_b32 s37, s36, 3
    s_lshr_b32 s45, s36, 2
    s_sub_u32 s45, s45, s33
    s_and_b32 s45, s45, 3
    s_cmp_eq_u32 s37, s16
    s_cselect_b32 s55, s45, 99
    s_mul_i32 s99, s19, {WQ_CT}
    s_add_u32 s99, s99, {WQF:#x}
    s_mul_i32 s100, s36, 6144
    s_add_u32 s100, s100, s99
    s_add_u32 s101, s100, 3072
    s_add_u32 s99, s99, {32*3072}
    v_mov_b32 v19, 1
    """)

    def conv_loads():
        k(f"s_lshl_b32 m0, s16, 12")
        k(f"buffer_load_ushort v26, v25, s[76:79], s52 offen", vm="cv")
        for i in range(4):
            k(f"buffer_load_dwordx4 v23, s[72:75], s48 offen offset:{i*1024} lds", vm="cv")
            k(f"s_add_u32 s48, s48, s53")

    def bump():
        k("buffer_atomic_add v19, v14, s[8:11], 0 offen sc1")
    k.wait(vm="a0", lg=0)
    bump()
    for c in range(4):
        k.wait(vm=("w", c))
        k.stamp(f"wr{c}")
        k("s_barrier")
        k.stamp(f"hb{c}")
        for i in range(2):
            for t in range(2):
                r = 32 + 8 * i + 4 * t
                for h in range(2):
                    k(f"{TRD} {vr(r+2*h,2)}, v17 offset:{c*16384+i*2048+t*1024+h*512}", lg=("f", i))
        bump()
        if c in (2, 3):
            k(f"buffer_load_dword v{25+c}, v13, s[8:11], 0 offen sc1", vm=("a", c))
        if c == CONV_AT:
            conv_loads()
        if c == TQ:
            touch_qkv(k, 15)
        for i in range(2):
            k.wait(lg=("f", i))
            for d in range(4):
                for t in range(2):
                    z = "0" if (c, i, d) == (0, 0, 0) else f"v{8+t}"
                    k(f"v_dot2_f32_bf16 v{8+t}, v{32+8*i+4*t+d}, v6, {z}")
        if c == 3:
            k.wait(vm="cv")
        l = k.u("ncp")
        k(f"s_cmp_lg_u32 s55, {c}\ns_cbranch_scc1 {k.L(l)}")
        for i in range(2):
            for t in range(2):
                k(f"buffer_store_dwordx4 {vr(32+8*i+4*t,4)}, v2, s[4:7], s{100+i} offen offset:{1024+t*1024} sc1", vm="skip")
        k.label(l)

    def augw(ts):
        for t in ts:
            k(f"v_mov_b32 v{48+t}, v{8+t}")
        for t in ts:
            k(f"v_permlane32_swap_b32 v{48+t}, v{8+t}")
        for t in ts:
            k(f"v_add_f32 v{8+t}, v{8+t}, v{48+t}")
        for t in ts:
            aug_pack(k, 8 + t, 52 + 2 * t)
            k(f"ds_write_b64 v20, {vr(52+2*t,2)} offset:{(t+1)%3*1024}")
        l = k.u("nag")
        k(f"s_cmp_ge_u32 s18, 4\ns_cbranch_scc1 {k.L(l)}")
        for t in ts:
            k(f"buffer_store_dwordx2 {vr(52+2*t,2)}, v21, s[4:7], s99 offen offset:{(t+1)%3*1024} sc1", vm="skip")
        k.label(l)
    augw([0, 1])
    k("s_waitcnt lgkmcnt(0)\ns_barrier")
    k.stamp("hba")
    for c in range(4):
        for i in range(2):
            for h in range(2):
                k(f"{TRD} {vr(64+8*c+4*i+2*h,2)}, v18 offset:{c*8192+i*1024+h*512}", lg=("q", c))
    bump()

    def conv_st():
        k("s_lshl_b32 s50, s50, 1")
        for i in range(4):
            k.wait(lg=("cv", i))
            k(f"buffer_store_dwordx4 {vr(CV+8*i,4)}, v24, s[4:7], s49 offen sc1")
            k("s_add_u32 s49, s49, s50")
    k(f"""
    v_mov_b32 v32, v6
    v_mov_b32 v33, v6
    v_mov_b32 v34, v6
    v_mov_b32 v35, v6
    s_lshl_b32 s36, s16, 10
    s_add_u32 s36, s36, {L_ONES}
    v_add_u32 v12, s36, v1
    ds_write_b128 v12, v[32:35]
    s_lshl_b32 s36, s16, 12
    s_add_u32 s36, s36, {L_R0}
    v_add_u32 v12, s36, v1
    """)
    for c in range(4):
        k.wait(lg=("q", c))
        for d in range(8):
            z = "0" if c == 0 and d < 2 else f"v{10+(d&1)}"
            k(f"v_dot2_f32_bf16 v{10+(d&1)}, v{64+8*c+d}, v6, {z}")
        for h in range(2):
            k(f"{TRD} {vr(CV+8*c+2*h,2)}, v29 offset:{c*4096+h*1024}", lg=("cv", c))
    k("v_add_f32 v10, v10, v11")
    augw([2])
    if CVE:
        conv_st()
    k(f"s_cmp_lg_u32 s46, 0\ns_cbranch_scc1 {k.L('achk')}")
    k.label("achkd")
    n2, n3 = min(63, k._cnt(0, ("a", 2))), min(63, k._cnt(0, ("a", 3)))

    def achk():
        k.label("achk")
        k(f"""
        s_waitcnt vmcnt({n2})
        v_cmp_ne_u32 vcc, v16, v27
        s_cbranch_vccnz {k.L('achkd')}
        s_waitcnt vmcnt({n3})
        s_mov_b32 s35, 0
        """)
        k.label("achk2")
        k(f"""
        v_cmp_ne_u32 vcc, v16, v28
        s_cbranch_vccnz {k.L('achkd')}
        buffer_load_dword v28, v13, s[8:11], 0 offen sc1
        s_add_u32 s35, s35, 1
        s_cmp_gt_u32 s35, {LIMIT}
        s_cbranch_scc1 {k.L('end')}
        s_waitcnt vmcnt(0)
        s_branch {k.L('achk2')}
        """, vm="skip")
    k.deferred.append(achk)
    k("s_waitcnt lgkmcnt(0)\ns_barrier")
    k.stamp("kvh")
    for j in range(4):
        k(f"ds_read_b128 {vr(32+4*j,4)}, v12 offset:{j*1024}", lg=("h", j))
    kv_offsets(k, KVG)
    fkv_addr(k)
    for j in range(4):
        k.wait(lg=("h", j))
        if j < 2:
            k(f"buffer_store_dwordx4 {vr(32+4*j,4)}, v1, s[8:11], s{40+j} offen sc1", vm="kvs")
        else:
            k(f"buffer_store_dwordx4 {vr(32+4*j,4)}, v30, s[8:11], s42 offen offset:{(j-2)*512} sc1", vm="kvs")
    for c in range(4):
        l = k.u("ncq")
        k(f"s_cmp_lg_u32 s55, {c}\ns_cbranch_scc1 {k.L(l)}")
        for i in range(2):
            k(f"buffer_store_dwordx4 {vr(64+8*c+4*i,4)}, v2, s[4:7], s{100+i} offen sc1", vm="skip")
        k.label(l)
    if not CVE:
        conv_st()
    k(f"s_cmp_ge_u32 s2, 112\ns_cbranch_scc1 {k.L('cv_na')}")
    for i in range(4):
        for d in range(4):
            z = "0" if i == 0 and d < 2 else f"v{8+(d&1)}"
            k(f"v_dot2_f32_bf16 v{8+(d&1)}, v{CV+8*i+d}, v6, {z}")
    k(f"""
    v_add_f32 v8, v8, v9
    v_lshlrev_b32 v25, 3, v25
    v_mov_b32 v9, v8
    v_permlane32_swap_b32 v8, v9
    v_add_f32 v8, v8, v9
    v_mov_b32 v9, v8
    v_permlane16_swap_b32 v8, v9
    v_add_f32 v8, v8, v9
    """)
    aug_pack(k, 8, 10, 26)
    k(f"buffer_store_dwordx2 v[10:11], v25, s[4:7], s51 offen sc1", vm="skip")
    k.label("cv_na")
    k.signal("s43", 8, glob=True, wtag="kvs")
    k.stamp("kvsig")


def fkv_addr(k):
    k(f"""
    s_lshl_b32 s43, s19, 2
    s_add_u32 s43, s43, s16
    s_lshl_b32 s43, s43, 7
    s_lshr_b32 s36, s18, 2
    s_lshl_b32 s36, s36, 2
    s_add_u32 s43, s43, s36
    s_add_u32 s43, s43, {FKV:#x}
    """)


def fq_addr(k):
    k(f"""
    s_lshl_b32 s43, s12, 4
    s_add_u32 s43, s43, s19
    s_lshl_b32 s43, s43, 7
    s_and_b32 s36, s18, 7
    s_lshl_b32 s36, s36, 2
    s_add_u32 s43, s43, s36
    s_add_u32 s43, s43, {FQ:#x}
    """)


def kv_epilogue(k, R0, bkv):
    RS, AK, AV, RT = 28, 64, 80, 112
    fill = []
    for h in range(2):
        a = AK + 8 * h
        fill += [(f"v_mul_f32 v{a+r}, v{RS}, v{a+r}", 4, R0) for r in range(8)]
        fill += [(f"v_cvt_pk_bf16_f32 v{a+r}, v{a+2*r}, v{a+2*r+1}", 4, R0) for r in range(4)]
        fill += [(f"ds_write_b128 v31, {vr(a,4)} offset:{h*1024}", 4, R0, dict(lg="hw"))]
        fill += [(f"buffer_store_dwordx4 {vr(a,4)}, v1, {AS}, s40 offen offset:{h*1024}", 4, R0)]
    fill += [(lambda: k.wait(lg="rt"), 0, R0)]
    for h in range(2):
        a = AV + 8 * h
        fill += [(f"v_mul_f32 v{a+r}, v{RT+8*h+r}, v{a+r}", 4, R0) for r in range(8)]
        fill += [(f"v_cvt_pk_bf16_f32 v{a+r}, v{a+2*r}, v{a+2*r+1}", 4, R0) for r in range(4)]
        fill += [(f"ds_write_b128 v31, {vr(a,4)} offset:{2048+h*1024}", 4, R0, dict(lg="hw"))]
        fill += [(f"buffer_store_dwordx4 {vr(a,4)}, v30, {AS}, s42 offen offset:{h*512}", 4, R0)]
    fill += [("s_nop 0", 100, R0), ("s_nop 0", 100, R0), (bkv, 4, R0)]
    return fill


def phase_qkv0_c(k):
    SR, AUG, RS, WS, AK, AV, AQ, RT, A = 8, 24, 28, 32, 64, 80, 96, 112, 128
    AH, NQ = 5, 8
    k.ctx(["C"])
    k.label("qkv0_c")
    k(f"""
    v_lshrrev_b32 v14, 4, v0
    v_xor_b32 v14, v14, v0
    v_and_b32 v14, 7, v14
    v_lshlrev_b32 v14, 4, v14
    v_lshrrev_b32 v15, 3, v0
    v_lshl_add_u32 v14, v15, 10, v14
    v_xor_b32 v15, 64, v14
    v_add_u32 v15, 7168, v15
    v_add_u32 v16, 14336, v14
    v_add_u32 v17, 14336, v15
    s_lshl_b32 s38, s18, 15
    s_lshl_b32 s37, s33, 8
    s_add_u32 s38, s38, s37
    s_lshl_b32 s39, s16, 12
    s_add_u32 s39, s39, {L_R0}
    s_mov_b32 m0, s39
    """)

    def xdma(c):
        for i in range(4):
            k(f"buffer_load_dwordx4 v{14+i}, {XS}, s38 offen offset:{i*1024} lds", vm=("x", c >> 1))
        k("s_add_u32 m0, m0, 16384\ns_add_u32 s38, s38, 128")
        if c & 1:
            k("s_bitset0_b32 s38, 10")
    for c in range(6):
        xdma(c)
    k.stamp("xi")
    k(f"""
    v_bfe_u32 v8, v0, 1, 3
    v_xor_b32 v8, v8, v10
    v_lshlrev_b32 v8, 4, v8
    v_and_b32 v9, 31, v0
    v_lshl_add_u32 v8, v9, 7, v8
    v_add_u32 v18, s39, v8
    v_xor_b32 v19, 32, v18
    v_xor_b32 v20, 64, v18
    v_xor_b32 v21, 96, v18
    v_lshl_add_u32 v22, v10, 9, v22
    v_add_u32 v23, {L_QI}, v22
    s_lshl_b32 s48, s19, 6
    s_lshl_b32 s46, s33, 1
    s_add_u32 s46, s46, s16
    s_and_b32 s46, s46, 7
    s_xor_b32 s47, s46, 4
    s_mul_i32 s46, s46, {4*49152}
    s_mul_i32 s47, s47, {4*49152}
    s_add_u32 s46, s46, s48
    s_add_u32 s47, s47, s48
    """)
    loc_offsets(k)
    fq_addr(k)
    k(f"v_add_u32 v31, s39, v1")

    def xrd(c):
        def f():
            if c >= 2:
                for i in range(4):
                    k(f"v_add_u32 v{18+i}, {65536 if c == 2 else -65536 & 0xffffffff:#x}, v{18+i}")
            k.stamp(f"xw{c}")
            k.wait(vm=("x", c), lg=0 if c == 0 else None)
            k.stamp(f"xr{c}")
            for i in range(8):
                k(f"ds_read_b128 {vr(A+32*c+4*i,4)}, v{18+(i&3)} offset:{(2*c+(i>>2))%4*16384 if c < 3 else (i>>2)*16384}")
            k("s_barrier")
            k.stamp(f"cb{c}")
        return f

    def rdw(areg, off):
        def f(w, tag):
            k(f"{TRD} {vr(w,2)}, {areg} offset:{off}")
            k(f"{TRD} {vr(w+2,2)}, {areg} offset:{off+256}", lg=tag)
        return f
    done = []

    def rda(t):
        def f(w, tag):
            assert t or done
            k(f"ds_read_b128 {vr(w,4)}, v17 offset:{t*1024}", lg=tag)
        return f
    ops = []
    for s in range(33):
        b = vr(A + 4 * s, 4) if s < 32 else vr(AUG, 4)
        ck, cv = ("0", "0") if s == 0 else (vr(AK, 16), vr(AV, 16))
        ops.append(dict(rd=rdw("v22", s * 2048) if s < 32 else rda(1), mf=lambda w, b=b, c=ck: f"{MF} {vr(AK,16)}, {vr(w,4)}, {b}, {c}", bud=DOTB))
        ops.append(dict(rd=rdw("v22", s * 2048 + 1024) if s < 32 else rda(2), mf=lambda w, b=b, c=cv: f"{MF} {vr(AV,16)}, {b}, {vr(w,4)}, {c}", bud=DOTB))
    q = []
    for s in range(33):
        b = vr(A + 4 * s, 4) if s < 32 else vr(AUG, 4)
        c = "0" if s == 0 else vr(AQ, 16)
        q.append(dict(rd=rdw("v23", s * 1024) if s < 32 else rda(0), mf=lambda w, b=b, c=c: f"{MF} {vr(AQ,16)}, {vr(w,4)}, {b}, {c}"))
    ops = ops[:64] + q[:NQ] + ops[64:] + q[NQ:]
    for c in range(4):
        ops[max(0, 16 * c - AH)]["pre"] = xrd(c)

    def baug():
        k.wait(vm="q")
        k("s_barrier")
        k.stamp("cba")
    ops[64 - AH]["pre"] = baug

    def x67():
        k("s_mov_b32 m0, s39")
        xdma(6)
        xdma(7)
        k.stamp("x67i")

    def qdma():
        k(f"v_add_u32 v17, {L_AUG}, v2")
        k.stamp("qdi0")
        for h in range(2):
            k(f"s_add_u32 m0, s39, {L_QI-L_R0+h*16384}")
            for i in range(4):
                k(f"buffer_load_dwordx4 v12, {WQS}, s{46+h} offen offset:{i*1024} lds", vm="q")
                k(f"s_add_u32 s{46+h}, s{46+h}, {49152-1024}")
        k.stamp("qdi1")
    ops[0]["post"] = x67
    ops[16]["post"] = qdma
    fill = []
    for c in range(4):
        for r in range(32):
            a, z = 8 + 2 * (r & 1), c == 0 and r < 2
            fill.append((f"v_dot2_f32_bf16 v{a}, v{A+32*c+r}, v6, {'0' if z else f'v{a}'}", 1, 16 * c))
            fill.append((f"v_dot2_f32_bf16 v{a+1}, v{A+32*c+r}, v{A+32*c+r}, {'0' if z else f'v{a+1}'}", 1, 16 * c))
    st = ["v_add_f32 v8, v8, v10", "v_add_f32 v9, v9, v11"] + stats_list(SR, AUG, RS, "qkv", summed=True)
    st += f"""
    s_lshl_b32 s36, s16, 7
    s_add_u32 s36, s36, {L_AUG+3072}
    v_and_b32 v8, 31, v0
    v_lshl_add_u32 v8, v8, 2, s36
    v_lshrrev_b32 v9, 5, v0
    v_lshl_add_u32 v9, v9, 4, s36
    ds_write_b32 v8, v{RS}
    v_mul_f32 v29, {f32(0.25*LOG2E)}, v{RS}
    """.split("\n")
    fill += [(x.strip(), 4, 63) for x in st if x.strip()]
    fill += [(f"ds_read_b128 {vr(RT+4*q,4)}, v9 offset:{q*32}", 4, 63, dict(lg="rt")) for q in range(4)]
    nst = len(fill)
    chk = []

    def bkv():
        k.wait(lg="hw")
        k("s_barrier")
        done.append(1)
    fill += [(lambda: chk.append(1), 0, 63)]

    def need_stats():
        assert chk, "stats not finished before aug"
    ops[64 + NQ]["pre"] = need_stats
    fill += kv_epilogue(k, 64 + NQ + 3, bkv)
    rest = gemm_stream(k, ops, WS, fill, 20, ahead=AH)
    assert not rest
    k(f"s_branch {k.L('q_fin')}")


def phase_qkv_h(k):
    k.ctx(["H"])
    k.label("qkv_h")
    k("s_barrier")
    k(f"""
    v_mov_b32 v8, v6
    v_mov_b32 v9, v6
    v_mov_b32 v10, v6
    v_mov_b32 v11, v6
    s_lshl_b32 s36, s16, 10
    s_add_u32 s36, s36, {L_ONES}
    v_add_u32 v12, s36, v1
    ds_write_b128 v12, v[8:11]
    s_lshl_b32 s36, s16, 12
    s_add_u32 s36, s36, {L_HAND}
    v_add_u32 v12, s36, v1
    """)
    kv_offsets(k, KVG)
    fkv_addr(k)
    k("s_barrier")
    k.stamp("kvh")
    for j in range(4):
        k(f"ds_read_b128 {vr(32+4*j,4)}, v12 offset:{j*1024}", lg=("h", j))
    for j in range(4):
        k.wait(lg=("h", j))
        if j < 2:
            k(f"buffer_store_dwordx4 {vr(32+4*j,4)}, v1, s[8:11], s{40+j} offen sc1")
        else:
            k(f"buffer_store_dwordx4 {vr(32+4*j,4)}, v30, s[8:11], s42 offen offset:{(j-2)*512} sc1")
    k.signal("s43", 8, glob=True)
    k.stamp("kvsig")


def phase_qkv_c(k):
    SR, AUG, RS, WS, AK, AV, AQ, RT, A = 8, 24, 28, 32, 64, 80, 96, 112, 128
    k.ctx(["C"])
    k.label("qkv_c")
    lda = load_x(k, XA, STA, FX, SR, A, "q_flag")
    PD = 12
    for s in range(PD):
        lda(s)
    k(f"s_barrier")
    loc_offsets(k)
    fq_addr(k)
    k.wait(vm="st")
    k.stamp("q_st")
    stats_math(k, SR, AUG, RS, "qkv")
    k(f"""
    s_lshl_b32 s36, s16, 7
    s_add_u32 s36, s36, {L_RST}
    v_and_b32 v8, 31, v0
    v_lshl_add_u32 v8, v8, 2, s36
    ds_write_b32 v8, v{RS}
    v_lshrrev_b32 v8, 5, v0
    v_lshl_add_u32 v8, v8, 4, s36
    v_mul_f32 v29, {f32(0.25*LOG2E)}, v{RS}
    s_lshl_b32 s36, s16, 12
    s_add_u32 s36, s36, {L_HAND}
    v_add_u32 v31, s36, v1
    """)
    for q in range(4):
        k(f"ds_read_b128 {vr(RT+4*q,4)}, v8 offset:{q*32}", lg="rt")
    ops = []
    for s in range(33):
        b = vr(A + 4 * s, 4) if s < 32 else vr(AUG, 4)
        ck, cv = ("0", "0") if s == 0 else (vr(AK, 16), vr(AV, 16))
        ops.append(dict(off=s * 3072 + 1024, vm=("a", s) if s < 32 else None,
                        mf=lambda w, b=b, c=ck: f"{MF} {vr(AK,16)}, {vr(w,4)}, {b}, {c}",
                        post=lambda s=s: lda(s + PD)))
        ops.append(dict(off=s * 3072 + 2048, mf=lambda w, b=b, c=cv: f"{MF} {vr(AV,16)}, {b}, {vr(w,4)}, {c}"))
    for s in range(33):
        b = vr(A + 4 * s, 4) if s < 32 else vr(AUG, 4)
        c = "0" if s == 0 else vr(AQ, 16)
        ops.append(dict(off=s * 3072, mf=lambda w, b=b, c=c: f"{MF} {vr(AQ,16)}, {vr(w,4)}, {b}, {c}"))

    def bkv():
        k.wait(lg="hw")
        k("s_barrier")
    rest = gemm_stream(k, ops, WS, kv_epilogue(k, 67, bkv), 20)
    assert not rest
    k.label("q_fin")
    k("s_nop 7\ns_nop 3")
    k.stamp("q_mf")
    for h in range(2):
        a = AQ + 8 * h
        for r in range(8):
            k(f"v_mul_f32 v{a+r}, v29, v{a+r}")
        for r in range(4):
            k(f"v_cvt_pk_bf16_f32 v{a+r}, v{a+2*r}, v{a+2*r+1}")
        k(f"buffer_store_dwordx4 {vr(a,4)}, v1, {AS}, s44 offen offset:{h*1024}")
    k.signal("s43", 8)
    k.stamp("q_sig")


def restart(k):
    T = 132
    k.label("restart")
    k(f"""
    s_waitcnt vmcnt(0) lgkmcnt(0)
    buffer_wbl2 sc1
    s_waitcnt vmcnt(0)
    s_barrier
    s_mov_b32 s96, 0
    s_mov_b32 s97, 0
    s_lshl_b32 s36, s2, 2
    s_add_u32 s36, s36, {FDN:#x}
    """)
    k.signal("s36", 8, glob=True)
    k(f"s_movk_i32 s36, {FDN:#x}")
    k.poll(1, "s36", 128, acquire=False, wide=True)
    k(f"""
    buffer_inv sc1
    s_movk_i32 s36, {FWS:#x}
    s_waitcnt vmcnt(0)
    buffer_load_dwordx4 {vr(T,4)}, v1, s[8:11], s36 offen sc1
    v_lshlrev_b32 v8, 2, v0
    s_or_b32 s39, s98, 0x80
    s_mov_b32 s13, 0
    s_waitcnt vmcnt(0)
    """)
    for i in range(4):
        k(f"""
        v_add_u32 v9, {i}, v8
        v_cmp_gt_u32 s[36:37], s2, v9
        v_cmp_eq_u32 vcc, s39, v{T+i}
        s_and_b64 s[36:37], s[36:37], vcc
        s_bcnt1_i32_b64 s36, s[36:37]
        s_add_u32 s13, s13, s36
        """)
    k("s_mov_b32 s12, s98\ns_mov_b32 s39, 0")
    for x in range(8):
        k("s_mov_b32 s38, 0")
        for i in range(4):
            k(f"v_cmp_eq_u32 vcc, {0x80+x:#x}, v{T+i}\ns_bcnt1_i32_b64 s36, vcc\ns_add_u32 s38, s38, s36")
        k("s_xor_b32 s38, s38, 32\ns_or_b32 s39, s39, s38")
    k(f"""
    s_add_u32 s8, s8, {LSTRIDE:#x}
    s_addc_u32 s9, s9, 0
    s_cmp_eq_u32 s39, 0
    s_cbranch_scc1 {k.L('role')}
    s_and_b32 s12, s2, 7
    s_lshr_b32 s13, s2, 3
    s_mov_b32 s15, 1
    s_branch {k.L('role')}
    """)


def phase_att(k):
    Q, KR, VR, P, S, O = 12, 20, 28, 44, 60, 92
    k.label("att")
    k.ctx(["C", "H"])
    k(f"""
    s_lshl_b32 s36, s12, 4
    s_add_u32 s36, s36, s19
    s_lshl_b32 s36, s36, 7
    s_add_u32 s36, s36, {FQ:#x}
    v_and_b32 v8, 7, v0
    v_lshlrev_b32 v8, 2, v8
    s_lshl_b32 s38, s12, 3
    s_lshl_b32 s39, s16, 1
    s_add_u32 s38, s38, s39
    s_add_u32 s33, s38, s17
    s_lshl_b32 s39, s13, 10
    s_add_u32 s39, s39, {RQ:#x}
    s_mul_i32 s37, s33, {RBS}
    s_add_u32 s37, s37, s39
    s_xor_b32 s38, s33, 1
    s_mul_i32 s38, s38, {RBS}
    s_add_u32 s38, s38, s39
    s_lshl_b32 s41, s12, 3
    s_add_u32 s41, s41, s3
    s_mul_i32 s41, s41, {RBS}
    s_add_u32 s41, s41, s39
    s_add_u32 s41, s41, 0x8000
    s_add_u32 s42, s41, 0x8000
    s_lshl_b32 s39, s17, 13
    s_lshl_b32 s40, s16, 10
    s_add_u32 s39, s39, s40
    s_add_u32 m0, s39, {L_P0}
    s_lshl_b32 s40, s13, 17
    """)
    k.poll(8, "s36", 9, boot=True)
    k.stamp("a_flag")
    k(f"""
    buffer_load_dwordx4 v1, {AS}, s41 offen sc1 lds
    s_add_u32 m0, m0, 4096
    buffer_load_dwordx4 {vr(Q,4)}, v1, {AS}, s37 offen sc1
    buffer_load_dwordx4 v1, {AS}, s42 offen sc1 lds
    buffer_load_dwordx4 {vr(Q+4,4)}, v1, {AS}, s38 offen sc1
    s_add_u32 s50, s37, {RO-RQ:#x}
    s_lshl_b32 s39, s17, 13
    s_add_u32 s39, s39, {L_P0}
    v_add_u32 v8, s39, v1
    v_and_b32 v9, 0x1ff, v2
    v_add_u32 v10, {L_ONES}, v9
    s_add_u32 s39, s39, 4096
    v_add_u32 v9, s39, v9
    v_and_b32 v124, 16, v0
    v_cmp_ne_u32 vcc, 0, v124
    v_cndmask_b32 v9, v9, v10
    v_mov_b32 v10, 0x4000
    v_cndmask_b32 v10, v10, 0, vcc
    s_lshl_b32 s43, s19, 2
    s_add_u32 s43, s43, s16
    s_lshl_b32 s43, s43, 7
    s_add_u32 s43, s43, {FKV:#x}
    v_and_b32 v124, 15, v0
    v_lshlrev_b32 v124, 2, v124
    """)
    k(f"""
    s_and_b32 s36, s16, 1
    s_lshl_b32 s36, s36, 10
    s_mul_i32 s44, s21, {WO_CT}
    s_add_u32 s44, s44, {WOF:#x}
    s_add_u32 s44, s44, s36
    s_add_u32 s45, s44, 2048
    s_movk_i32 s46, 4096
    s_mul_i32 s47, s21, {W2_CT}
    s_mul_i32 s48, s16, {28*2048}
    s_add_u32 s47, s47, s48
    s_add_u32 s47, s47, {W2F:#x}
    s_add_u32 s48, s47, s36
    s_xor_b32 s36, s36, 1024
    s_add_u32 s49, s47, s36
    s_cmp_eq_u32 s17, 0
    s_cselect_b32 s44, s44, s48
    s_cselect_b32 s45, s45, s49
    s_cselect_b32 s46, s46, 2048
    s_mul_i32 s36, s19, {W1_CT}
    s_add_u32 s36, s36, {W1F:#x}
    v_add_u32 v125, s36, v1
    s_lshl_b32 s99, s14, 3
    s_add_u32 s99, s99, s3
    s_cmp_eq_u32 s99, 7
    s_waitcnt vmcnt(0)
    s_barrier
    s_cbranch_scc1 {k.L('fwr')}
    """)
    k.label("fwrd")
    k.stamp("a_b0")

    def fwr():
        k.label("fwr")
        k(f"""
        s_lshl_b32 s36, s12, 5
        s_add_u32 s36, s36, s13
        s_lshl_b32 s36, s36, 2
        s_add_u32 s36, s36, {FWR:#x}
        v_mov_b32 v126, 1
        s_mov_b64 exec, 1
        buffer_store_dword v126, off, s[8:11], s36 sc1
        s_mov_b64 exec, -1
        s_branch {k.L('fwrd')}
        """, vm="skip")
        k.label("fwl")
        k(f"""
        s_movk_i32 s36, {FWR:#x}
        buffer_load_dwordx4 v[128:131], v1, s[8:11], s36 offen sc1
        s_branch {k.L('fwld')}
        """, vm="skip")
        k.label("fwc")
        k(f"""
        s_cmp_lg_u32 s97, 0
        s_waitcnt vmcnt(0)
        s_cbranch_scc1 {k.L('fwc2')}
        v_and_b32 v128, v128, v129
        v_and_b32 v130, v130, v131
        v_and_b32 v128, v128, v130
        v_cmp_ne_u32 vcc, 1, v128
        s_movk_i32 s36, {FWR:#x}
        s_cbranch_vccz {k.L('fwc2')}
        """)
        k.poll(1, "s36", 128, acquire=False, boot=True, wide=True)
        k.label("fwc2")
        k(f"""
        v_mov_b32 v128, {L_MODE}
        v_mov_b32 v129, s97
        ds_write_b32 v128, v129
        s_waitcnt lgkmcnt(0)
        s_branch {k.L('fwcd')}
        """)
        k.label("fwv")
        k(f"""
        v_mov_b32 v128, {L_MODE}
        ds_read_b32 v128, v128
        s_waitcnt lgkmcnt(0)
        v_cmp_ne_u32 vcc, 0, v128
        s_cbranch_vccz {k.L('fwvd')}
        """)
        restart(k)
    k.deferred.append(fwr)

    def rdk(t):
        k(f"ds_read_b128 {vr(KR+4*(t&1),4)}, v8 offset:{(t&3)*1024}")

    def rdv(t):
        for h in range(2):
            k(f"ds_read_b128 {vr(VR+8*(t&1)+4*h,4)}, v9 offset:{(t&3)*1024+h*512}")

    def smf(u):
        k(f"{MF} {vr(S+16*(u&1),16)}, {vr(KR+4*((u>>1)&1),4)}, {vr(Q+4*(u&1),4)}, 0")

    def pv(u, h, zero=False):
        o = vr(O + 16 * (u & 1), 16)
        k(f"{MF} {o}, {vr(VR+8*((u>>1)&1)+4*h,4)}, {vr(P+8*(u&1)+4*h,4)}, {'0' if zero else o}")

    def segment(nb, zero, extra):
        rdk(0)
        rdk(1)
        rdv(0)
        k("s_waitcnt lgkmcnt(3)")
        smf(0)
        for u in range(nb):
            x = extra(u)
            i = u >> 1
            if x.get("pre"):
                x["pre"]()
            if u & 1:
                k("s_waitcnt lgkmcnt(0)")
            if u + 1 < nb:
                smf(u + 1)
            if u & 1:
                if 2 * (i + 2) < nb:
                    if (i + 2) & 3 == 0:
                        k("v_add_u32 v8, 0x4000, v8")
                    rdk(i + 2)
                if 2 * (i + 1) < nb:
                    if (i + 1) & 3 == 0:
                        k("v_add_u32 v9, v10, v9")
                    rdv(i + 1)
            s, p = S + 16 * (u & 1), P + 8 * (u & 1)
            ex = [f"v_exp_f32 v{s+r}, v{s+r}" for r in range(16)]
            cv = [f"v_cvt_pk_bf16_f32 v{p+r}, v{s+2*r}, v{s+2*r+1}" for r in range(8)]
            k("\n".join(ex[:4]))
            if u:
                pv(u - 1, 0, zero and u <= 2)
            k("\n".join(ex[4:8] + cv[:2]))
            if u:
                pv(u - 1, 1)
            if x.get("mid"):
                x["mid"]()
            k("\n".join(ex[8:] + cv[2:]))
        pv(nb - 1, 0)
        pv(nb - 1, 1)

    k(f"""
    buffer_load_dword v126, v124, s[8:11], s43 offen sc1
    s_add_u32 s40, s40, {KVG:#x}
    s_add_u32 s41, s12, s17
    s_add_u32 s41, s41, 1
    s_and_b32 s41, s41, 7
    s_lshl_b32 s41, s41, 14
    s_add_u32 s41, s41, s40
    s_lshl_b32 s42, s16, 10
    s_add_u32 s41, s41, s42
    s_lshl_b32 s55, s17, 14
    s_add_u32 s42, s42, s55
    s_add_u32 s42, s42, 0x4000
    s_mov_b32 s55, 0
    """, vm="skip")

    def kv12():
        k("s_mov_b32 m0, s42")
        for j in range(4):
            k("buffer_load_dwordx4 v1, s[8:11], s41 offen sc1 lds", vm="skip")
            if j < 3:
                k("s_add_u32 m0, m0, 4096\ns_add_u32 s41, s41, 4096")

    def early():
        k(f"""
        s_waitcnt vmcnt(0)
        v_cmp_ne_u32 vcc, 1, v126
        s_cbranch_vccnz {k.L('a_late')}
        s_mov_b32 s55, 1
        """)
        kv12()
        k.label("a_late")
    segment(8, True, lambda u: {"pre": early} if u == EARLY else {})
    k.stamp("a_segA")
    k(f"s_cmp_eq_u32 s55, 0\ns_cbranch_scc1 {k.L('a_poll')}")
    k.label("a_polled")

    def late():
        k.label("a_poll")
        k.poll(124, "s43", 126, acquire=False, boot=True)
        kv12()
        k(f"s_branch {k.L('a_polled')}")
    k.deferred.append(late)
    for r in "CH":
        k.paths[r][0].append(("kv", 2))
    k(f"v_add_u32 v8, {(16384 - L_P0) & 0xffffffff:#x}, v8\nv_mad_i32_i24 v9, v10, -7, v9")
    k(f"""
    s_mul_i32 s51, s18, {112*1024}
    s_mul_i32 s52, s19, {7*1024}
    s_add_u32 s51, s51, s52
    s_add_u32 s51, s51, {RH:#x}
    s_add_u32 s52, s51, 3584
    s_add_u32 s53, s22, {XB:#x}
    s_add_u32 s54, s23, {STB:#x}
    v_mul_u32_u24 v11, 56, v0
    v_mov_b32 v124, v11
    s_cmp_eq_u32 s17, 0
    s_cselect_b32 s51, s53, s51
    s_cselect_b32 s52, s54, s52
    s_cselect_b64 exec, -1, 0
    v_lshlrev_b32 v11, 5, v0
    v_mov_b32 v124, v5
    s_mov_b64 exec, -1
    """)
    k(f"s_cbranch_scc0 {k.L('a_now')}\ns_waitcnt vmcnt(0)")
    k.label("a_now")
    k("s_barrier")
    k.stamp("a_b1")

    side = {}

    def pfl(j):
        k(f"buffer_load_dwordx4 {vr(128+4*j,4)}, v2, s[4:7], s{44+(j&1)} offen")
        k(f"s_add_u32 s{44+(j&1)}, s{44+(j&1)}, s46")

    def w1d(reg, j):
        if j == 0:
            k(f"s_lshl_b32 s36, s3, 11\ns_add_u32 m0, s36, {reg*16384}")
        k(f"buffer_load_dwordx4 v125, s[4:7], m0 offen offset:{j*1024} lds")

    def kvd(p, j):
        if j == 0:
            k(f"""
            s_add_u32 s41, s12, {p}
            s_and_b32 s41, s41, 7
            s_lshl_b32 s41, s41, 14
            s_add_u32 s41, s41, s40
            s_add_u32 m0, s42, {p*16384}
            """)
        k(f"buffer_load_dwordx4 v1, s[8:11], s41 offen offset:{j*1024} sc1 lds", vm=("kv", p))
    k("s_lshl_b32 s42, s3, 11\ns_add_u32 s40, s40, s42")
    qa = [lambda j=j: pfl(j) for j in range(32)]
    for p in range(3, 8):
        for j in range(2):
            side[8 * (p - 3) + KV0 + j] = lambda p=p, j=j: kvd(p, j)
    for r in range(6):
        for j in range(2):
            side[8 * r + 6 + j] = lambda r=r, j=j: w1d(r, j)
    for u in range(PF0, 56):
        if u not in side and qa:
            side[u] = qa.pop(0)
            if u in (10, 12):
                side[u] = lambda a=side[u], b=qa.pop(0): (a(), b())
    assert not qa

    def fwl():
        k(f"s_cmp_eq_u32 s99, 7\ns_cbranch_scc1 {k.L('fwl')}")
        k.label("fwld")
    side[FWL] = fwl

    def extra(u):
        d = {}
        if u & 7 == 5 and u < 48:
            def pre(p=(u >> 3) + 2):
                k.wait(vm=("kv", p))
                if p == 2:
                    k(f"s_cmp_eq_u32 s99, 7\ns_cbranch_scc1 {k.L('fwc')}")
                    k.label("fwcd")
                    k("s_cmp_eq_u32 s14, 0")
                k("s_barrier")
                if p == 2:
                    k(f"s_cbranch_scc1 {k.L('fwv')}")
                    k.label("fwvd")
                    k.stamp("a_ver")
            d["pre"] = pre
        if u in side:
            d["mid"] = side[u]
        if TOUCH and u in (40, 42, 44):
            a, so = {40: ("v1", "s50"), 42: ("v11", "s51"), 44: ("v124", "s52")}[u]
            d["pre"] = lambda: k(f"buffer_load_dword v126, {a}, {AS}, {so} offen sc1")
        return d
    segment(56, False, extra)
    k.stamp("a_segB")
    k(f"""
    s_mul_i32 s36, s3, 2560
    s_add_u32 s36, s36, {L_CMB}
    v_add_u32 v8, s36, v1
    v_lshlrev_b32 v9, 2, v0
    v_add_u32 v10, s36, v9
    s_xor_b32 s37, s3, 4
    s_mul_i32 s37, s37, 2560
    s_add_u32 s37, s37, {L_CMB}
    v_add_u32 v11, s37, v1
    v_add_u32 v9, s37, v9
    s_lshl_b32 s39, s33, 7
    s_lshl_b32 s41, s13, 2
    s_add_u32 s39, s39, s41
    s_add_u32 s39, s39, {FO:#x}
    s_mov_b32 s41, {f32(2.0**-60)}
    ds_write_b128 v8, {vr(O+16,4)}
    ds_write_b128 v8, {vr(O+20,4)} offset:1024
    ds_write_b32 v10, v{O+24} offset:2048
    s_waitcnt lgkmcnt(0)
    s_barrier
    ds_read_b32 v{O+24}, v9 offset:2048
    ds_read_b128 {vr(O+16,4)}, v11
    ds_read_b128 {vr(O+20,4)}, v11 offset:1024
    s_waitcnt lgkmcnt(2)
    v_add_f32 v{O+8}, v{O+8}, v{O+24}
    v_cmp_gt_f32 vcc, {f32(2.0**60)}, v{O+8}
    v_cmp_lt_f32 s[36:37], s41, v{O+8}
    v_rcp_f32 v11, v{O+8}
    s_and_b64 s[36:37], s[36:37], vcc
    s_cmp_eq_u64 s[36:37], exec
    s_waitcnt lgkmcnt(0)
    s_cbranch_scc0 {k.L('a_fb')}
    """)
    for r in range(8):
        k(f"v_add_f32 v{O+r}, v{O+r}, v{O+16+r}")
    k.label("a_out")
    for r in range(8):
        k(f"v_mul_f32 v{O+r}, v11, v{O+r}")
    for r in range(4):
        k(f"v_cvt_pk_bf16_f32 v{P+r}, v{O+2*r}, v{O+2*r+1}")
    k(f"buffer_store_dwordx4 {vr(P,4)}, v1, {AS}, s50 offen")
    k.signal("s39", 8)
    k.stamp("a_sig")

    def fb():
        C = S + 16
        k.label("a_fb")
        k(f"""
        s_lshl_b32 s40, s13, 17
        s_add_u32 s40, s40, {KVG:#x}
        s_mov_b32 s41, 0
        v_mov_b32 v11, 0xff7fffff
        """)
        k.label("a_fb1")
        k(f"""
        s_lshr_b32 s36, s41, 2
        s_lshl_b32 s36, s36, 12
        s_lshl_b32 s37, s41, 10
        s_add_u32 s36, s36, s37
        s_add_u32 s36, s36, s40
        buffer_load_dwordx4 {vr(KR,4)}, v1, s[8:11], s36 offen sc1
        s_waitcnt vmcnt(0)
        {MF} {vr(S,16)}, {vr(KR,4)}, {vr(Q,4)}, 0
        """, vm="skip")
        for r in range(8):
            k(f"v_max3_f32 v11, v11, v{S+2*r}, v{S+2*r+1}")
        k(f"""
        s_add_u32 s41, s41, 1
        s_cmp_lt_u32 s41, 64
        s_cbranch_scc1 {k.L('a_fb1')}
        v_mov_b32 v10, v11
        v_permlane32_swap_b32 v10, v11
        v_max_f32 v11, v10, v11
        v_and_b32 v9, 0x1ff, v2
        v_add_u32 v9, 4096, v9
        v_and_b32 v10, 16, v0
        v_cmp_ne_u32 vcc, 0, v10
        s_mov_b32 s41, 0
        """)
        for r in range(16):
            k(f"v_sub_f32 v{C+r}, 0, v11\nv_mov_b32 v{O+r}, 0")
        k.label("a_fb2")
        k(f"""
        s_lshr_b32 s36, s41, 2
        s_lshl_b32 s36, s36, 12
        s_lshl_b32 s37, s41, 10
        s_add_u32 s36, s36, s37
        s_add_u32 s36, s36, s40
        buffer_load_dwordx4 {vr(KR,4)}, v1, s[8:11], s36 offen sc1
        buffer_load_dwordx4 {vr(VR,4)}, v9, s[8:11], s36 offen sc1
        buffer_load_dwordx4 {vr(VR+4,4)}, v9, s[8:11], s36 offen offset:512 sc1
        s_waitcnt vmcnt(0)
        {MF} {vr(S,16)}, {vr(KR,4)}, {vr(Q,4)}, {vr(C,16)}
        """, vm="skip")
        for r in range(8):
            k(f"v_cndmask_b32 v{VR+r}, v{VR+r}, v6")
        for r in range(16):
            k(f"v_exp_f32 v{S+r}, v{S+r}")
        for r in range(8):
            k(f"v_cvt_pk_bf16_f32 v{P+r}, v{S+2*r}, v{S+2*r+1}")
        for h in range(2):
            k(f"{MF} {vr(O,16)}, {vr(VR+4*h,4)}, {vr(P+4*h,4)}, {vr(O,16)}")
        k(f"""
        s_add_u32 s41, s41, 1
        s_cmp_lt_u32 s41, 64
        s_cbranch_scc1 {k.L('a_fb2')}
        v_rcp_f32 v11, v{O+8}
        s_nop 1
        s_branch {k.L('a_out')}
        """)
    k.deferred.append(fb)


def phase_wo(k):
    ACC, RES, WS = 64, 80, 32
    k(f"""
    s_lshl_b32 s36, s3, 11
    s_add_u32 s37, s22, {XA:#x}
    s_cmp_eq_u32 s14, 0
    s_cbranch_scc1 {k.L('res0')}
    buffer_load_dwordx4 {vr(RES,4)}, v1, {AS}, s37 offen sc1
    buffer_load_dwordx4 {vr(RES+4,4)}, v1, {AS}, s37 offen offset:1024 sc1
    """)
    k.label("res0d")

    def res0():
        k.label("res0")
        k(f"""
        s_and_b32 s38, s22, 0x7fff
        s_sub_u32 s37, s22, s38
        s_lshr_b32 s38, s38, 5
        s_add_u32 s37, s37, s38
        v_and_b32 v8, 31, v0
        v_lshrrev_b32 v9, 5, v0
        v_lshlrev_b32 v8, 10, v8
        v_lshl_add_u32 v8, v9, 3, v8
        """)
        for q in range(4):
            k(f"buffer_load_dwordx2 {vr(RES+2*q,2)}, v8, {XS}, s37 offen offset:{q*16}")
        k(f"s_branch {k.L('res0d')}")
    k.deferred.append(res0)
    k(f"""
    s_add_u32 m0, s36, {L_OB}
    v_bfe_u32 v8, v0, 2, 1
    v_and_b32 v9, 3, v0
    v_lshlrev_b32 v8, 7, v8
    v_lshl_add_u32 v8, v9, 5, v8
    s_lshl_b32 s36, s20, 7
    s_lshl_b32 s37, s3, 2
    s_add_u32 s36, s36, s37
    s_add_u32 s36, s36, {FO:#x}
    s_mul_i32 s37, s20, {RBS}
    s_lshl_b32 s38, s3, 10
    s_add_u32 s37, s37, s38
    s_add_u32 s37, s37, {RO:#x}
    s_add_u32 s38, s37, {RBS-1024}
    s_lshr_b32 s39, s16, 1
    s_lshl_b32 s39, s39, 10
    s_add_u32 s39, s39, {L_OB}
    v_add_u32 v10, s39, v1
    s_barrier
    """)
    k.poll(8, "s36", 9)
    k.stamp("w_flag")
    for j in range(4):
        k(f"buffer_load_dwordx4 v1, {AS}, s37 offen sc1 lds", vm=("o", j))
        k(f"buffer_load_dwordx4 v1, {AS}, s38 offen offset:1024 sc1 lds", vm=("o", j))
        if j < 3:
            k("s_add_u32 m0, m0, 16384\ns_add_u32 s37, s37, 8192\ns_add_u32 s38, s38, 8192")
    k(f"s_cmp_lg_u32 s17, 0\ns_cbranch_scc1 {k.L('wo_h')}")
    k.ctx(["C"])
    unpack(k, ACC, RES)

    def bar(j):
        k.wait(vm=("o", j))
        k("s_barrier")
    AH = 5
    ops = []
    for s in range(32):
        ops.append(dict(off=s * 2048, mf=lambda w, s=s: f"{MF} {vr(ACC,16)}, {vr(128+4*s,4)}, {vr(w,4)}, {vr(ACC,16)}"))
    ops[0]["pre"] = lambda: bar(0)
    for j in (1, 2, 3):
        ops[8 * j - AH]["pre"] = lambda j=j: bar(j)
    ops[31]["post"] = lambda: k("s_barrier")
    gemm_stream(k, ops, WS, [], 0, ahead=AH, areg="v10")
    k.stamp("w_mf")
    tile_epilogue(k, ACC, XB, STB, F1, 8)
    k.stamp("w_sig")


def phase_up(k):
    SR, AUG, RS, WS, ACC, A = 8, 24, 28, 32, 64, 128
    lda = load_x(k, XB, STB, F1, SR, A, "u_flag")
    PD = 12
    for s in range(PD):
        lda(s)
    c0 = -2.0 * math.sqrt(2.0 / math.pi) * LOG2E
    c1 = c0 * 0.044715
    k(f"""
    s_mul_i32 s40, s18, {112*1024}
    s_mul_i32 s41, s19, {7*1024}
    s_add_u32 s40, s40, s41
    s_add_u32 s40, s40, {RH:#x}
    s_add_u32 s41, s40, 4096
    s_lshl_b32 s43, s18, 7
    s_lshl_b32 s36, s19, 2
    s_add_u32 s43, s43, s36
    s_add_u32 s43, s43, {FH:#x}
    """)
    k.wait(vm="st")
    k.stamp("u_st")
    stats_math(k, SR, AUG, RS, "w1")
    k(f"""
    v_mov_b32 v31, v{SR+6}
    v_mul_f32 v29, {f32(c0)}, v{RS}
    v_mul_f32 v30, v{RS}, v{RS}
    v_mul_f32 v30, v30, v{RS}
    v_mul_f32 v30, {f32(c1)}, v30
    """)
    ops = []

    def op(s, t, **kw):
        b = vr(A + 4 * s, 4) if s < 32 else vr(AUG, 4)
        c = "0" if s == 0 else vr(ACC + 16 * t, 16)
        ops.append(dict(off=s * 3584 + t * 1024, mf=lambda w: f"{MF} {vr(ACC+16*t,16)}, {vr(w,4)}, {b}, {c}", **kw))
    for s in range(33):
        op(s, 0, vm=("a", s) if s < 32 else None, post=lambda s=s: lda(s + PD))
        op(s, 1)
    for t in (2, 3):
        for s in range(33):
            op(s, t)
    ops[48]["pre"] = lambda: k("s_barrier")
    ops[-1]["post"] = lambda: k("s_barrier")
    fill = []
    for u in range(7):
        a, T = ACC + 8 * u, 8 + (u & 1) * 8
        rdy = 67 if u < 4 else (100 if u < 6 else 1000)
        R = range(8)
        fill += [(f"v_mul_f32 v{T+r}, v{a+r}, v{a+r}", 4, rdy) for r in R]
        fill += [(f"v_fma_f32 v{T+r}, v{T+r}, v30, v29", 4, rdy) for r in R]
        fill += [(f"v_mul_f32 v{T+r}, v{T+r}, v{a+r}", 4, rdy) for r in R]
        fill += [(f"v_exp_f32 v{T+r}, v{T+r}", 8, rdy) for r in R]
        fill += [(f"v_fma_f32 v{T+r}, v{T+r}, v31, v31", 4, rdy) for r in R]
        fill += [(f"v_rcp_f32 v{T+r}, v{T+r}", 8, rdy) for r in R]
        fill += [(f"v_mul_f32 v{a+r}, v{T+r}, v{a+r}", 4, rdy) for r in R]
        fill += [(f"v_cvt_pk_bf16_f32 v{a+r}, v{a+2*r}, v{a+2*r+1}", 4, rdy) for r in range(4)]
        fill += [(f"buffer_store_dwordx4 {vr(a,4)}, v1, {AS}, s{40+(u>>2)} offen offset:{(u&3)*1024}", 4, rdy)]
    rest = gemm_stream(k, ops, WS, fill, UPB)
    k.stamp("u_mf")
    flush_fill(k, rest)
    k.signal("s43", 8)
    k.stamp("u_sig")
    k.stamp_flush(8)
    k(f"""
    s_cmp_lg_u32 s14, 0
    s_cbranch_scc1 {k.L('cfin')}
    s_mov_b32 s14, 1
    s_mov_b32 s96, 0
    s_add_u32 s8, s8, {LSTRIDE:#x}
    s_addc_u32 s9, s9, 0
    s_add_u32 s56, s56, {ASTRIDE:#x}
    s_addc_u32 s57, s57, 0
    """)
    k("s_barrier")
    k.stamp("start")
    wq_dma(k, 0, 10)
    wq_dma(k, 1, 10)
    k(f"s_branch {k.L('qkv_c')}")


def phase_dn(k):
    ACC, W = 64, 128
    k.label("wo_h")
    k.ctx(["H"])
    for j in range(4):
        k.wait(vm=("o", j))
        k("s_barrier")
    k(f"""
    s_mul_i32 s36, s16, 5120
    s_add_u32 m0, s36, 98304
    s_mul_i32 s40, s16, 12288
    s_add_u32 s41, s40, {L_Y}
    s_add_u32 s40, s40, {L_X}
    s_add_u32 s36, s47, {16*2048}
    s_sub_u32 s36, s36, s40
    v_add_u32 v8, s36, v1
    s_add_u32 s36, s47, {22*2048}
    s_sub_u32 s36, s36, s41
    v_add_u32 v9, s36, v1
    s_barrier
    """)
    k.dma_lin(125, "s[4:7]", 5, vm="w1")
    k("s_add_u32 m0, s40, 4096")
    k.dma_lin(8, "s[4:7]", 8)
    k(f"""
    s_add_u32 s37, s22, {XB:#x}
    s_and_b32 s38, s22, 0x7fff
    s_lshr_b32 s38, s38, 5
    v_lshrrev_b32 v10, 5, v0
    v_lshlrev_b32 v10, 3, v10
    """)
    for g in range(4):
        k(f"buffer_load_dwordx2 {vr(24+2*g,2)}, v10, s[24:27], s38 offen offset:{g*16}", vm="b2")
    k.wait(vm="w1")
    k("s_barrier")
    k(f"buffer_load_dwordx4 {vr(16,4)}, v1, {AS}, s37 offen sc1", vm="res")
    k(f"buffer_load_dwordx4 {vr(20,4)}, v1, {AS}, s37 offen offset:1024 sc1", vm="res")
    k(f"""
    s_and_b32 s36, s16, 1
    s_lshl_b32 s36, s36, 10
    v_add_u32 v10, s36, v2
    v_xor_b32 v11, 0x400, v10
    s_lshl_b32 s36, s20, 7
    s_lshl_b32 s37, s16, 4
    s_add_u32 s36, s36, s37
    s_add_u32 s36, s36, {FH:#x}
    s_lshr_b32 s37, s16, 1
    s_xor_b32 s38, s37, 1
    s_add_u32 s37, s37, s20
    s_add_u32 s38, s38, s20
    s_mul_i32 s37, s37, {112*1024}
    s_mul_i32 s38, s38, {112*1024}
    s_mul_i32 s39, s16, {28*1024}
    s_add_u32 s39, s39, {RH:#x}
    s_add_u32 s37, s37, s39
    s_add_u32 s38, s38, s39
    v_add_u32 v124, s41, v10
    v_add_u32 v125, s41, v11
    v_bfe_u32 v12, v0, 2, 1
    v_and_b32 v13, 3, v0
    v_lshlrev_b32 v12, 7, v12
    v_lshl_add_u32 v12, v13, 2, v12
    """)
    k.wait(vm="res")
    unpack(k, ACC, 16)
    unpack(k, ACC, 24, 14, add=True)
    k("s_mov_b32 m0, s40")
    k("s_barrier")
    k.dma_lin(8, "s[4:7]", 4)
    k("s_mov_b32 m0, s41")
    k.dma_lin(9, "s[4:7]", 12)
    k.poll(12, "s36", 13)
    k.stamp("d_flag")
    k("v_mov_b32 v8, v124\nv_mov_b32 v9, v125")
    free = list(range(12, 64, 4))
    steps = [(1, i) for i in range(28)] + [(0, i) for i in list(range(16, 28)) + list(range(16))]
    hreg, wreg = {}, {}
    nh, nw = [0], [0]
    wsteps = [n for n, (m, i) in enumerate(steps) if i >= 16]

    def ldh():
        n = nh[0]
        m, i = steps[n]
        r = free.pop(0)
        hreg[n] = r
        if i & 3 == 0:
            k(f"s_add_u32 s39, s{37+m}, {(i>>2)*4096}")
        k(f"buffer_load_dwordx4 {vr(r,4)}, v1, {AS}, s39 offen offset:{(i&3)*1024} sc1", vm=("h", n))
        nh[0] += 1

    def ldw():
        n = wsteps[nw[0]]
        i = steps[n][1]
        off = (i - 22) * 2048 if i >= 22 else (i - 16) * 2048 + L_X - L_Y
        wreg[n] = (free.pop(0), free.pop(0))
        for a in range(2):
            k(f"ds_read_b128 {vr(wreg[n][a],4)}, v{8+a} offset:{off}", lg=("w", n))
        nw[0] += 1

    def refill(n, cap):
        while nw[0] < len(wsteps) and wsteps[nw[0]] <= n + 2 and len(free) >= 2:
            ldw()
        resv = 2 if nw[0] < len(wsteps) and wsteps[nw[0]] <= n + 3 else 0
        c = 0
        while nh[0] < len(steps) and len(free) > resv and c < cap:
            ldh()
            c += 1

    def mf(n, a):
        m, i = steps[n]
        w = wreg[n][a] if i >= 16 else W + 8 * i + 4 * a
        t = ACC + 16 * (2 * m + a)
        first = (n == 0) or (n == 28 and a == 1)
        k(f"{MF} {vr(t,16)}, {vr(w,4)}, {vr(hreg[n],4)}, {'0' if first else vr(t,16)}")
    k("v_add_u32 v10, s40, v1")
    wr = [(a, q) for a in (2, 3) for q in range(4)]
    refill(-1, 99)
    NS = 4
    for n in range(56 - NS):
        m, i = steps[n]
        k.wait(vm=("h", n), lg=("w", n) if i >= 16 else None)
        mf(n, 0)
        refill(n, 1)
        mf(n, 1)
        free.append(hreg[n])
        if i >= 16:
            free += list(wreg[n])
        elif m == 0:
            free += [W + 8 * i, W + 8 * i + 4]
        refill(n, 2)
        if n >= 36 and wr:
            a, q = wr.pop(0)
            k(f"ds_write_b128 v10, {vr(ACC+16*a+4*q,4)} offset:{(a-1)*4096+q*1024}")
    assert not wr and nh[0] == 56
    for a in (1, 2, 3):
        k(f"s_xor_b32 s36, s16, {a}\ns_mul_i32 s36, s36, 12288\ns_add_u32 s36, s36, {L_X+(a-1)*4096}\nv_add_u32 v{96+a}, s36, v1")
    for n in range(56 - NS, 56):
        k.wait(vm=("h", n))
        mf(n, 1)
    mf(56 - NS, 0)
    mf(57 - NS, 0)
    for q in range(4):
        k(f"ds_write_b128 v10, {vr(ACC+16+4*q,4)} offset:{q*1024}")
        if q + 2 < NS:
            mf(58 - NS + q, 0)
    k("s_waitcnt lgkmcnt(0)\ns_barrier")
    k.stamp("d_mf")
    for a in (1, 2, 3):
        for q in range(4):
            k(f"ds_read_b128 {vr(16*a+4*q,4)}, v{96+a} offset:{q*1024}", lg=("p", a))
    for a in (1, 2, 3):
        k.wait(lg=("p", a))
        for r in range(16):
            k(f"v_add_f32 v{ACC+r}, v{ACC+r}, v{16*a+r}")
    k(f"s_cmp_lg_u32 s14, 0\ns_cbranch_scc1 {k.L('final')}")
    tile_epilogue(k, ACC, XA + ASTRIDE, STA + ASTRIDE, FX + LSTRIDE, 8)
    k.stamp("d_sig")
    k.stamp_flush(8)
    k(f"""
    s_mov_b32 s14, 1
    s_mov_b32 s96, 0
    s_add_u32 s8, s8, {LSTRIDE:#x}
    s_addc_u32 s9, s9, 0
    s_add_u32 s56, s56, {ASTRIDE:#x}
    s_addc_u32 s57, s57, 0
    """)
    k.stamp("start")
    k(f"s_branch {k.L('qkv_h')}")
    k.label("final")
    O = 16
    for r in range(8):
        k(f"v_cvt_pk_bf16_f32 v{O+r}, v{ACC+2*r}, v{ACC+2*r+1}")
    k(f"""
    s_and_b32 s36, s22, 0x7fff
    s_sub_u32 s37, s22, s36
    s_lshr_b32 s36, s36, 5
    s_add_u32 s36, s36, s37
    v_and_b32 v8, 31, v0
    v_lshrrev_b32 v9, 5, v0
    v_lshlrev_b32 v8, 10, v8
    v_lshl_add_u32 v8, v9, 4, v8
    v_permlane32_swap_b32 v{O}, v{O+2}
    v_permlane32_swap_b32 v{O+1}, v{O+3}
    v_permlane32_swap_b32 v{O+4}, v{O+6}
    v_permlane32_swap_b32 v{O+5}, v{O+7}
    buffer_store_dwordx4 {vr(O,4)}, v8, s[28:31], s36 offen
    buffer_store_dwordx4 {vr(O+4,4)}, v8, s[28:31], s36 offen offset:32
    """)
    if PROF:
        k("s_waitcnt vmcnt(0)")
    k.stamp("d_sig")
    k.stamp_flush(8)


UPB = 20
FWL = int(os.environ.get("FWL", "2"))


def gen_mega():
    k = MK("mega_kernel", 256, 512, 163840, vgpr=256, sgpr=102)
    prologue(k)
    phase_qkv0_h(k)
    k(f"s_branch {k.L('att')}")
    phase_qkv0_c(k)
    phase_qkv_h(k)
    k(f"s_branch {k.L('att')}")
    phase_qkv_c(k)
    phase_att(k)
    phase_wo(k)
    phase_up(k)
    phase_dn(k)
    k.label("end")
    k("s_endpgm")
    k.label("cfin")
    if WBL == 1:
        k(f"s_cmp_lg_u32 s3, 0\ns_cbranch_scc1 {k.L('end')}\nbuffer_wbl2 sc1")
    if WBL == 2:
        k(f"s_or_b32 s36, s3, s13\ns_cmp_lg_u32 s36, 0\ns_cbranch_scc1 {k.L('end')}\ns_sleep 8\nbuffer_wbl2 sc1")
    k("s_endpgm")
    i = 0
    while i < len(k.deferred):
        k.deferred[i]()
        i += 1
    k.label("cend")
    return k


def main(path):
    ks = [gen_mega()]
    hdr = ["; 2 x (MHA block + channel MLP) for gfx950; generated by gen/gen4.py",
           "; kernarg: x,wqkv,wo,(unused),w1,b1,w2,b2,out,debug,ws"]
    emit_file(path, hdr, ["mega_kernel"], ks)
    if PROF:
        import json
        json.dump(STAMPS, open(path + ".stamps", "w"))
    return ks


if __name__ == "__main__":
    main(sys.argv[1] if len(sys.argv) > 1 else "v2.s")
```

```python
from lay4 import *

PROF = int(os.environ.get("PROF", "0"))
DIAG = os.environ.get("DIAG", "")
FORCE_SAFE = int(os.environ.get("SAFE", "0"))
FORCE_BAD = int(os.environ.get("BAD", "0"))
LIMIT = 20000
L_R0, L_QI, L_AUG = 65536, 98304, 131072
XS, WQS = "s[64:67]", "s[68:71]"
L_HAND, L_RST, L_MODE = 114688, 112640, 113664
L_P0, L_ONES, L_CMB, L_OB, L_X, L_Y = 131072, 159744, 131072, 98304, 114688, 65536
MF = "v_mfma_f32_32x32x16_bf16"
STAMPS = []
PF0 = 6
QSLP = int(os.environ.get("QSLP", "20"))
EARLY = int(os.environ.get("EARLY", "3"))
KV0 = 0
TOUCH = int(os.environ.get("TOUCH", "1"))


class MK(Kernel):
    def __init__(self, *a, **kw):
        super().__init__(*a, **kw)
        self.deferred = []
        self.uid = 0

    def u(self, p):
        self.uid += 1
        return f"{p}{self.uid}"

    def stamp(self, name):
        if DIAG:
            dn, dl = DIAG.split(":")
            l = self.u("dg")
            if name == dn or (dn == "clk" and name == "d_sig"):
                self(f"s_cmp_lg_u32 s14, {dl}\ns_cbranch_scc1 {self.L(l+'b')}")
                self(f"{'s_memtime' if dn == 'clk' else 's_memrealtime'} s[62:63]\ns_waitcnt lgkmcnt(0)\nv_writelane_b32 v7, s62, 1")
                self.label(l + 'b')
            return
        if not PROF:
            return
        if name not in STAMPS:
            STAMPS.append(name)
        i = STAMPS.index(name)
        self(f"s_memrealtime s[62:63]\ns_waitcnt lgkmcnt(0)\nv_writelane_b32 v7, s62, {i}")

    def stamp_flush(self, tmp):
        if not PROF:
            return
        self(f"""
        s_lshl_b32 s60, s12, 5
        s_add_u32 s60, s60, s13
        s_lshl_b32 s60, s60, 3
        s_add_u32 s60, s60, s3
        s_lshl_b32 s60, s60, 8
        s_add_u32 s60, s60, {PROFB:#x}
        v_lshlrev_b32 v{tmp}, 2, v0
        buffer_store_dword v7, v{tmp}, s[8:11], s60 offen
        """)

    def poll(self, vaddr, soff, tmp, acquire=True, boot=False, wide=False):
        l = self.u("poll")
        self("s_mov_b32 s35, 0")
        self.label(l)
        if wide:
            self(f"buffer_load_dwordx4 {vr(tmp,4)}, v{vaddr}, s[8:11], {soff} offen sc1")
        else:
            self(f"buffer_load_dword v{tmp}, v{vaddr}, s[8:11], {soff} offen sc1")
        self(f"""
        s_add_u32 s35, s35, 1
        s_cmp_gt_u32 s35, {LIMIT}
        s_cbranch_scc1 {self.L('end')}
        """)
        if boot:
            self(f"s_and_b32 s34, s35, s96\ns_cmp_eq_u32 s34, 15\ns_cbranch_scc1 {self.L(l+'s')}")
            self.deferred.append(lambda: self.slow(l))
        self("s_waitcnt vmcnt(0)")
        if wide:
            self(f"v_and_b32 v{tmp}, v{tmp}, v{tmp+1}\nv_and_b32 v{tmp+2}, v{tmp+2}, v{tmp+3}\nv_and_b32 v{tmp}, v{tmp}, v{tmp+2}")
        self(f"""
        v_cmp_ne_u32 vcc, 1, v{tmp}
        s_cbranch_vccnz {self.L(l)}
        """)
        self.label(l + "x")
        if acquire:
            self(f"s_cmp_lg_u32 s15, 0\ns_cbranch_scc1 {self.L(l+'a')}")
            self.label(l + "b")

            def d():
                self.label(l + "a")
                self(f"buffer_inv sc1\ns_waitcnt vmcnt(0)\ns_branch {self.L(l+'b')}")
            self.deferred.append(d)

    def slow(self, l):
        T = 132
        self.label(l + "s")
        self(f"""
        s_mov_b64 exec, 1
        v_mov_b32 v{T}, 1
        s_lshl_b32 s34, s12, 5
        s_add_u32 s34, s34, s13
        s_lshl_b32 s34, s34, 2
        s_add_u32 s34, s34, {FR2:#x}
        buffer_atomic_add v{T}, off, s[8:11], 0 sc1
        s_cmp_lg_u32 s3, 7
        s_cbranch_scc1 {self.L(l+'t')}
        buffer_store_dword v{T}, off, s[8:11], s34 sc1
        s_or_b32 s34, s98, 0x80
        v_mov_b32 v{T+1}, s34
        s_lshl_b32 s34, s2, 2
        s_add_u32 s34, s34, {FWS:#x}
        s_waitcnt vmcnt(0)
        buffer_store_dword v{T+1}, off, s[8:11], s34 sc1
        """, vm="skip")
        self.label(l + "t")
        self(f"""
        s_mov_b64 exec, -1
        s_movk_i32 s34, {FWS:#x}
        buffer_load_dwordx4 {vr(T,4)}, v1, s[8:11], s34 offen sc1
        s_waitcnt vmcnt(0)
        buffer_load_dwordx4 {vr(T+4,4)}, v1, s[8:11], s34 offen offset:{FR2-FWS} sc1
        v_and_b32 v{T}, v{T}, v{T+1}
        v_and_b32 v{T+2}, v{T+2}, v{T+3}
        v_and_b32 v{T}, v{T}, v{T+2}
        v_cmp_gt_u32 vcc, 0x80, v{T}
        s_waitcnt vmcnt(0)
        s_cbranch_vccnz {self.L(l)}
        v_and_b32 v{T+4}, v{T+4}, v{T+5}
        v_and_b32 v{T+6}, v{T+6}, v{T+7}
        v_and_b32 v{T+4}, v{T+4}, v{T+6}
        v_cmp_ne_u32 vcc, 1, v{T+4}
        s_cbranch_vccz {self.L(l)}
        s_mov_b32 s97, 1
        s_branch {self.L(l+'x')}
        """, vm="skip")

    def signal(self, soff, tmp, glob=False, wtag=0):
        l = self.u("sig")
        self(f"v_mov_b32 v{tmp}, 1")
        self("s_mov_b64 exec, 1")
        if glob:
            self.wait(vm=wtag)
            self(f"buffer_store_dword v{tmp}, off, s[8:11], {soff} sc1")
        else:
            self(f"s_cmp_lg_u32 s15, 0\ns_waitcnt vmcnt(0)\ns_cbranch_scc1 {self.L(l+'a')}")
            self(f"buffer_store_dword v{tmp}, off, s[8:11], {soff}")
            self.label(l + "b")

            def d():
                self.label(l + "a")
                self(f"buffer_wbl2 sc1\ns_waitcnt vmcnt(0)")
                self(f"buffer_store_dword v{tmp}, off, s[8:11], {soff} sc1", vm="skip")
                self(f"s_branch {self.L(l+'b')}")
            self.deferred.append(d)
        self("s_mov_b64 exec, -1")

    def dma_lin(self, vaddr, srd, n, vm=None):
        for j in range(n):
            if j and j % 4 == 0:
                self("s_add_u32 m0, m0, 4096")
            self(f"buffer_load_dwordx4 v{vaddr}, {srd}, m0 offen offset:{(j%4)*1024} lds", vm=vm)


def gemm_stream(k, ops, WS, fill, budget, ahead=6, areg=None):
    n = len(ops)
    issued = [0]

    def rd_upto(m):
        while issued[0] <= min(m, n - 1):
            j = issued[0]
            if ops[j].get("rd"):
                ops[j]["rd"](WS + 4 * (j % 8), ("w", j))
                issued[0] += 1
                continue
            off, a = ops[j]["off"], "v2"
            if areg:
                a = areg
            elif off >= 65536:
                off, a = off - 65536, "v3"
            k(f"ds_read_b128 {vr(WS+4*(j%8),4)}, {a} offset:{off}", lg=("w", j))
            issued[0] += 1
    fi = 0
    for j, o in enumerate(ops):
        if o.get("pre"):
            o["pre"]()
        rd_upto(j + ahead)
        k.wait(vm=o.get("vm"), lg=("w", j))
        k(o["mf"](WS + 4 * (j % 8)))
        if o.get("post"):
            o["post"]()
        b = o.get("bud", budget)
        while fi < len(fill) and fill[fi][2] <= j and b > 0:
            f = fill[fi]
            if callable(f[0]):
                f[0]()
            else:
                k(f[0], **(f[3] if len(f) > 3 else {}))
            b -= f[1]
            fi += 1
    return fill[fi:]


def flush_fill(k, fill):
    for f in fill:
        if callable(f[0]):
            f[0]()
        else:
            k(f[0], **(f[3] if len(f) > 3 else {}))


def load_x(k, xoff, stoff, flags, SR, A, name):
    k(f"""
    s_lshl_b32 s36, s18, 7
    s_add_u32 s36, s36, {flags:#x}
    v_and_b32 v8, 15, v0
    v_lshlrev_b32 v8, 2, v8
    s_lshl_b32 s37, s18, 12
    s_add_u32 s37, s37, {stoff:#x}
    s_lshl_b32 s38, s18, 15
    s_add_u32 s38, s38, {xoff:#x}
    """)
    k.poll(8, "s36", 9)
    k.stamp(name)
    for q in range(4):
        k(f"buffer_load_dwordx4 {vr(SR+4*q,4)}, v4, {AS}, s37 offen offset:{q*512} sc1", vm="st")

    def lda(s):
        if s >= 32:
            return
        k(f"buffer_load_dwordx4 {vr(A+4*s,4)}, v1, {AS}, s38 offen offset:{(s&3)*1024} sc1", vm=("a", s))
        if s & 3 == 3:
            k("s_add_u32 s38, s38, 4096")
    return lda


def tile_epilogue(k, ACC, xbase, stbase, flbase, T):
    k(f"s_add_u32 s36, s22, {xbase:#x}")
    k(f"s_add_u32 s37, s23, {stbase:#x}")
    k(f"s_add_u32 s38, s32, {flbase:#x}")
    for h in range(2):
        for r in range(4):
            k(f"v_cvt_pk_bf16_f32 v{ACC+8*h+r}, v{ACC+8*h+2*r}, v{ACC+8*h+2*r+1}")
        k(f"buffer_store_dwordx4 {vr(ACC+8*h,4)}, v1, {AS}, s36 offen offset:{h*1024}")
    for i, r in enumerate([0, 1, 2, 3, 8, 9, 10, 11]):
        k(f"v_dot2_f32_bf16 v{T}, v{ACC+r}, v6, {'0' if i==0 else f'v{T}'}")
        k(f"v_dot2_f32_bf16 v{T+1}, v{ACC+r}, v{ACC+r}, {'0' if i==0 else f'v{T+1}'}")
    k(f"""
    v_permlane32_swap_b32 v{T}, v{T+1}
    v_add_f32 v{T}, v{T}, v{T+1}
    buffer_store_dword v{T}, v5, {AS}, s37 offen
    """)
    k.signal("s38", T + 2)


def unpack(k, ACC, src, T=None, add=False):
    for r in range(8):
        if not add:
            k(f"v_lshlrev_b32 v{ACC+2*r}, 16, v{src+r}")
            k(f"v_and_b32 v{ACC+2*r+1}, 0xffff0000, v{src+r}")
        else:
            k(f"v_lshlrev_b32 v{T}, 16, v{src+r}")
            k(f"v_and_b32 v{T+1}, 0xffff0000, v{src+r}")
            k(f"v_add_f32 v{ACC+2*r}, v{ACC+2*r}, v{T}")
            k(f"v_add_f32 v{ACC+2*r+1}, v{ACC+2*r+1}, v{T+1}")


def wq_dma(k, part, tmp):
    k(f"s_mul_i32 s36, s19, {WQ_CT}")
    k(f"s_add_u32 s36, s36, {WQF:#x}")
    k(f"v_add_u32 v{tmp}, s36, v1")
    if part == 0:
        k("s_lshl_b32 m0, s16, 14")
        k.dma_lin(tmp, "s[4:7]", 16)
    else:
        k("s_mul_i32 s36, s16, 9216")
        k("s_add_u32 m0, s36, 65536")
        k.dma_lin(tmp, "s[4:7]", 9)


def kv_offsets(k, base):
    k(f"""
    s_lshl_b32 s40, s19, 18
    s_lshr_b32 s41, s18, 2
    s_lshl_b32 s41, s41, 13
    s_add_u32 s40, s40, s41
    s_lshl_b32 s41, s16, 10
    s_add_u32 s40, s40, s41
    s_add_u32 s40, s40, {base:#x}
    s_add_u32 s41, s40, 0x20000
    s_add_u32 s42, s40, 4096
    v_and_b32 v30, 0x1ff, v2
    v_bfe_u32 v31, v0, 4, 1
    v_lshl_add_u32 v30, v31, 17, v30
    """)


def loc_offsets(k):
    k(f"""
    s_mul_i32 s44, s18, {RBS}
    s_lshl_b32 s45, s19, 11
    s_add_u32 s44, s44, s45
    s_add_u32 s44, s44, {RQ:#x}
    s_add_u32 s40, s44, 0x8000
    s_add_u32 s42, s44, 0x10000
    v_and_b32 v30, 0x1ff, v2
    v_bfe_u32 v31, v0, 4, 1
    v_lshl_add_u32 v30, v31, 10, v30
    """)


def touch_qkv(k, J):
    loc_offsets(k)
    k(f"""
    v_lshlrev_b32 v30, 5, v0
    buffer_load_dword v{J}, v30, {AS}, s40 offen sc1
    buffer_load_dword v{J}, v30, {AS}, s42 offen sc1
    buffer_load_dword v{J}, v30, {AS}, s44 offen sc1
    """)


OOB = "0x80000000"
CONV_AT = int(os.environ.get("CONV", "2"))
DOTB = int(os.environ.get("DOTB", "4"))
TRD = "ds_read_b64_tr_b16"
ROT = int(os.environ.get("ROT", "1"))
CODEPF = int(os.environ.get("CODEPF", "1"))
WBL = int(os.environ.get("WBL", "0"))
CVE = int(os.environ.get("CVE", "1"))
TQ = int(os.environ.get("TQ", "1"))
TLBW = int(os.environ.get("TLBW", "1"))
TG = int(os.environ.get("TG", "64"))


def prologue(k):
    k(f"""
    s_cmp_ge_u32 s2, 256
    s_cbranch_scc1 {k.L('end')}
    {('s_memtime' if DIAG.startswith('clk') else 's_memrealtime') + ' s[62:63]' if (DIAG or PROF) else ''}
    s_load_dwordx16 s[80:95], s[0:1], 0
    s_load_dwordx2 s[8:9], s[0:1], 80
    s_load_dwordx2 s[28:29], s[0:1], 64
    s_getreg_b32 s98, hwreg(HW_REG_XCC_ID)
    s_lshr_b32 s13, s2, 3
    v_lshrrev_b32 v1, 6, v0
    v_and_b32 v0, 63, v0
    v_readfirstlane_b32 s3, v1
    s_and_b32 s98, s98, 7
    s_mov_b32 s12, s98
    s_mov_b32 s10, {3*LSTRIDE:#x}
    s_mov_b32 s11, 0x00020000
    s_mov_b32 s6, {WWSZ:#x}
    s_mov_b32 s7, 0x00020000
    s_mov_b32 s58, {ASZ:#x}
    s_mov_b32 s59, 0x00020000
    s_mov_b32 s30, {2048*1024}
    s_mov_b32 s31, 0x00020000
    s_mov_b32 s26, 1024
    s_mov_b32 s27, 0x00020000
    s_mov_b32 s66, {2048*1024}
    s_mov_b32 s67, 0x00020000
    s_mov_b32 s70, {512*3072}
    s_mov_b32 s71, 0x00020000
    s_mov_b32 s75, 0x00020000
    s_mov_b32 s79, 0x00020000
    s_mov_b32 s14, 0
    s_mov_b32 s15, {FORCE_SAFE}
    s_mov_b32 s96, 15
    s_mov_b32 s97, 0
    s_and_b32 s16, s3, 3
    s_lshr_b32 s17, s3, 2
    v_mov_b32 v7, 0
    v_lshlrev_b32 v1, 4, v0
    v_lshrrev_b32 v10, 5, v0
    v_and_b32 v11, 31, v0
    v_and_b32 v2, 15, v0
    v_lshlrev_b32 v2, 4, v2
    v_lshl_add_u32 v2, v10, 8, v2
    v_bfe_u32 v3, v0, 4, 1
    v_lshl_add_u32 v2, v3, 9, v2
    v_add_u32 v3, 0x10000, v2
    v_lshlrev_b32 v5, 4, v11
    v_lshl_add_u32 v4, v10, 11, v5
    v_lshl_add_u32 v5, v10, 2, v5
    v_mov_b32 v6, {ONES}
    """)
    if FORCE_BAD:
        k("s_cmp_eq_u32 s13, 5\ns_cselect_b32 s13, 9, s13")
    if FORCE_BAD == 2:
        k("s_min_u32 s98, s98, 6")
    k.label("role")
    k(f"""
    s_lshl_b32 s36, s12, 3
    s_and_b32 s37, s13, 1
    s_lshl_b32 s37, s37, 2
    s_add_u32 s18, s36, s37
    s_add_u32 s18, s18, s16
    s_lshr_b32 s19, s13, 1
    s_and_b32 s37, s13, 3
    s_lshl_b32 s37, s37, 1
    s_add_u32 s20, s36, s37
    s_lshr_b32 s21, s13, 2
    s_lshr_b32 s36, s16, 1
    s_add_u32 s36, s36, s20
    s_and_b32 s37, s16, 1
    s_lshl_b32 s38, s21, 1
    s_add_u32 s38, s38, s37
    s_lshl_b32 s22, s36, 15
    s_lshl_b32 s39, s38, 11
    s_add_u32 s22, s22, s39
    s_lshl_b32 s23, s36, 12
    s_lshl_b32 s39, s21, 9
    s_add_u32 s23, s23, s39
    s_lshl_b32 s39, s37, 3
    s_add_u32 s23, s23, s39
    s_lshl_b32 s32, s36, 7
    s_lshl_b32 s39, s38, 2
    s_add_u32 s32, s32, s39
    s_lshl_b32 s33, s13, 1
    s_add_u32 s33, s33, s19
    s_and_b32 s33, s33, {3*ROT}
    v_lshrrev_b32 v12, 2, v0
    v_mul_u32_u24 v12, 3072, v12
    v_and_b32 v13, 3, v0
    v_lshl_add_u32 v12, v13, 4, v12
    v_bfe_u32 v22, v0, 2, 2
    v_lshlrev_b32 v22, 6, v22
    v_lshl_add_u32 v22, v13, 3, v22
    v_bfe_u32 v13, v0, 4, 1
    v_lshl_add_u32 v22, v13, 5, v22
    v_lshrrev_b32 v10, 5, v0
    s_mul_i32 s40, s17, {512*3072-4}
    s_mul_i32 s41, s17, {2048*1024-4}
    s_mul_i32 s42, s17, {512*3584-4}
    s_mul_i32 s43, s17, {512*1024-4}
    s_lshl_b32 s44, s3, 21
    s_add_u32 s44, s44, 0x400
    s_add_u32 s45, s44, 0x1000000
    s_cmp_eq_u32 s96, 0
    s_waitcnt lgkmcnt(0)
    s_cbranch_scc1 {k.L('go')}
    """)
    if DIAG or PROF:
        k("v_writelane_b32 v7, s62, 0")
        STAMPS.append("start")
    if TLBW:
        k(f"""
        s_load_dword s61, s[82:83], s40
        s_load_dword s61, s[80:81], s41
        s_load_dword s61, s[8:9], s44
        s_load_dword s61, s[8:9], s45
        s_load_dword s61, s[88:89], s42
        s_load_dword s61, s[92:93], s42
        s_load_dword s61, s[84:85], s43
        s_load_dword s61, s[90:91], 0
        s_load_dword s61, s[94:95], 0
        s_load_dword s61, s[28:29], s41
        """)
    k(f"""
    s_mov_b32 s64, s80
    s_mov_b32 s65, s81
    s_mov_b32 s68, s82
    s_mov_b32 s69, s83
    s_add_u32 s4, s8, {WBASE:#x}
    s_addc_u32 s5, s9, 0
    s_add_u32 s56, s8, {ABASE:#x}
    s_addc_u32 s57, s9, 0
    s_mov_b32 s24, s94
    s_mov_b32 s25, s95
    s_mov_b32 s76, s90
    s_mov_b32 s77, s91
    """)
    if CODEPF:
        k(f"""
        s_cmp_lg_u32 s3, 5
        s_cbranch_scc1 {k.L('go')}
        s_getpc_b64 s[72:73]
        """)
        k.label("pcb")
        k(f"""
        s_mov_b32 s74, {k.L('cend')}-{k.L('pcb')}
        s_and_b32 s36, s13, 7
        s_lshl_b32 s36, s36, 13
        v_lshlrev_b32 v8, 7, v0
        v_add_u32 v8, s36, v8
        buffer_load_dword v15, v8, s[72:75], 0 offen
        """, vm="skip")
    k.label("go")
    k(f"s_cmp_eq_u32 s17, 0\ns_cbranch_scc1 {k.L('qkv0_c')}")


def aug_pack(k, C, T, bias=None):
    k(f"""
    v_cvt_pk_bf16_f32 v{T}, v{C}, v{C}
    v_and_b32 v{T+1}, 0xffff0000, v{T}
    v_sub_f32 v{T+1}, v{C}, v{T+1}
    v_cvt_pk_bf16_f32 v{T+1}, v{T+1}, 0
    """)
    if bias is not None:
        k(f"v_lshl_or_b32 v{T+1}, v{bias}, 16, v{T+1}")


def phase_qkv0_h(k):
    k.ctx(["H"])
    CV = 128

    def conv_setup():
        k(f"""
        s_mov_b32 s78, 0
        s_cmp_ge_u32 s2, 112
        s_cbranch_scc1 {k.L('cv_n1')}
        s_mov_b32 s72, s88
        s_mov_b32 s73, s89
        s_mov_b32 s74, {512*3584}
        s_movk_i32 s47, 3584
        s_movk_i32 s50, 3584
        s_and_b32 s36, s2, 3
        s_andn2_b32 s37, s2, 3
        s_add_u32 s37, s37, s16
        s_lshl_b32 s52, s37, 5
        s_mul_i32 s48, s36, {128*3584}
        s_andn2_b32 s39, s52, 127
        s_add_u32 s48, s48, s39
        s_mul_i32 s38, s37, 147
        s_lshr_b32 s38, s38, 10
        s_mul_i32 s38, s38, {W1_CT-7*512}
        s_lshl_b32 s37, s37, 9
        s_add_u32 s38, s38, s37
        s_add_u32 s38, s38, {W1F:#x}
        s_mul_i32 s49, s36, {8*3584}
        s_add_u32 s49, s49, s38
        s_lshr_b32 s51, s36, 1
        s_lshl_b32 s51, s51, 8
        s_add_u32 s51, s51, s38
        s_and_b32 s37, s36, 1
        s_lshl_b32 s37, s37, 3
        s_add_u32 s51, s51, s37
        s_add_u32 s51, s51, {32*3584}
        s_cmp_lt_u32 s36, 2
        s_cselect_b32 s78, 3584, 0
        s_branch {k.L('cv_go')}
        """)
        k.label("cv_n1")
        k(f"""
        s_mov_b32 s72, s92
        s_mov_b32 s73, s93
        s_mov_b32 s74, {1792*1024}
        s_sub_u32 s36, s2, 112
        s_mov_b32 s38, {W2_CT}
        s_mov_b32 s39, {W2F:#x}
        s_mov_b32 s52, 0
        s_mov_b32 s51, 0
        s_cmp_lt_u32 s2, 224
        s_cbranch_scc1 {k.L('cv_n2')}
        s_mov_b32 s72, s84
        s_mov_b32 s73, s85
        s_mov_b32 s74, {512*1024}
        s_sub_u32 s36, s2, 224
        s_mov_b32 s38, {WO_CT}
        s_mov_b32 s39, {WOF:#x}
        """)
        k.label("cv_n2")
        k(f"""
        s_movk_i32 s47, 1024
        s_movk_i32 s50, 2048
        s_and_b32 s37, s36, 7
        s_lshr_b32 s36, s36, 3
        s_lshl_b32 s48, s36, 17
        s_lshl_b32 s49, s37, 7
        s_add_u32 s48, s48, s49
        s_mul_i32 s49, s37, s38
        s_add_u32 s49, s49, s39
        s_lshl_b32 s36, s36, 14
        s_add_u32 s49, s49, s36
        s_lshl_b32 s36, s16, 9
        s_add_u32 s49, s49, s36
        """)
        k.label("cv_go")
        k("s_lshl_b32 s36, s47, 5\ns_mul_i32 s36, s36, s16\ns_add_u32 s48, s48, s36")

    k(f"""
    s_cmp_eq_u32 s3, 7
    s_cselect_b32 s46, s96, 0
    s_cmp_lg_u32 s46, 0
    s_cselect_b32 s36, 0, {OOB}
    v_mov_b32 v13, {OOB}
    v_mov_b32 v14, {OOB}
    v_writelane_b32 v13, s36, 0
    s_or_b32 s37, s36, s2
    s_lshl_b32 s40, s19, 6
    s_mul_i32 s41, s16, {2*49152}
    s_add_u32 s40, s40, s41
    s_add_u32 s40, s40, 1024
    s_lshl_b32 m0, s16, 12
    s_cmp_eq_u32 s37, 0
    s_cbranch_scc1 {k.L('lead')}
    """)
    k.label("led")

    def lead():
        k.label("lead")
        k(f"""
        v_writelane_b32 v14, 0, 0
        v_mov_b32 v32, 0
        v_mov_b32 v33, 0
        v_mov_b32 v34, 0
        v_mov_b32 v35, 0
        v_lshrrev_b32 v36, 1, v0
        v_and_b32 v37, 16, v1
        v_lshl_add_u32 v36, v36, 7, v37
        v_lshrrev_b32 v37, 2, v0
        v_and_b32 v38, 48, v1
        v_lshl_add_u32 v37, v37, 7, v38
        """)
        for i in range(4):
            k(f"s_movk_i32 s36, {FQ+i*4096:#x}")
            k(f"buffer_store_dwordx4 v[32:35], v36, s[8:11], s36 offen sc1", vm="skip")
        for i in range(4):
            k(f"s_movk_i32 s36, {FKV+i*2048:#x}")
            k(f"buffer_store_dwordx4 v[32:35], v37, s[8:11], s36 offen sc1", vm="skip")
        k(f"s_movk_i32 s36, {FWR:#x}")
        for i in range(4):
            k(f"buffer_store_dwordx4 v[32:35], v1, s[8:11], s36 offen offset:{i*1024} sc1", vm="skip")
        k(f"s_branch {k.L('led')}")
    k.deferred.append(lead)
    k(f"buffer_load_dword v16, v13, s[8:11], 0 offen sc1", vm="a0")

    def wdma(c):
        k(f"s_add_u32 s41, s33, {c}\ns_and_b32 s41, s41, 3\ns_mul_i32 s41, s41, {8*49152}\ns_add_u32 s41, s41, s40")
        for i in range(2):
            k(f"buffer_load_dwordx4 v12, {WQS}, s41 offen lds", vm=("w", c))
            k(f"buffer_load_dwordx4 v12, {WQS}, s41 offen offset:1024 lds", vm=("w", c))
            k(f"s_add_u32 m0, m0, {2048*(7 if i else 1)}")
            if i == 0:
                k("s_add_u32 s41, s41, 49152")
    wdma(0)
    conv_setup()
    k(f"""
    v_lshrrev_b32 v8, 4, v0
    v_mul_u32_u24 v8, 3072, v8
    v_and_b32 v9, 15, v0
    v_lshl_add_u32 v8, v9, 6, v8
    s_lshl_b32 s36, s13, 2
    s_add_u32 s36, s36, s16
    s_mul_i32 s37, s36, {4*3072}
    v_lshrrev_b32 v9, 1, v0
    v_mul_u32_u24 v9, s47, v9
    v_and_b32 v11, 1, v0
    v_lshl_add_u32 v9, v11, 6, v9
    """)
    if TG == 128:
        k("s_mov_b32 exec_lo, 0x55555555\ns_mov_b32 exec_hi, 0x55555555")
    k(f"""
    buffer_load_dword v15, v8, {WQS}, s37 offen
    buffer_load_dword v15, v9, s[72:75], s48 offen
    s_mov_b64 exec, -1
    """)
    for c in range(1, 4):
        wdma(c)
    k.stamp("wi")
    k(f"""
    s_lshr_b32 s36, s2, 6
    s_cmp_lt_u32 s2, 32
    s_cselect_b32 s36, 3, s36
    s_cmp_lg_u32 s3, 6
    s_cselect_b32 s36, 3, s36
    s_cmp_eq_u32 s96, 0
    s_cselect_b32 s36, 3, s36
    s_cmp_eq_u32 s36, 3
    s_cbranch_scc1 {k.L('noclr')}
    s_mul_i32 s36, s36, {LSTRIDE:#x}
    s_and_b32 s37, s2, 63
    s_lshl_b32 s37, s37, 10
    s_add_u32 s36, s36, s37
    v_mov_b32 v32, 0
    v_mov_b32 v33, 0
    v_mov_b32 v34, 0
    v_mov_b32 v35, 0
    buffer_store_dwordx4 v[32:35], v1, s[8:11], s36 offen sc1
    """, vm="skip")
    k.label("noclr")
    k(f"""
    v_lshrrev_b32 v8, 3, v0
    v_mul_u32_u24 v23, s47, v8
    v_and_b32 v8, 0x70, v1
    v_add_u32 v23, v23, v8
    v_and_b32 v25, 15, v0
    v_lshlrev_b32 v25, 1, v25
    v_mul_u32_u24 v24, s50, v10
    v_and_b32 v8, 0x1f0, v1
    v_add_u32 v24, v24, v8
    s_lshl_b32 s53, s47, 3
    s_sub_u32 s53, s53, 1024
    v_bfe_u32 v8, v0, 2, 3
    v_lshl_add_u32 v8, v10, 4, v8
    v_and_b32 v9, 3, v0
    v_lshlrev_b32 v9, 3, v9
    v_lshl_add_u32 v29, v8, 7, v9
    s_lshl_b32 s36, s16, 5
    v_add_u32 v29, s36, v29
    v_lshl_add_u32 v17, v10, 8, v22
    s_lshl_b32 s36, s16, 11
    s_add_u32 s37, s36, {L_QI}
    v_add_u32 v18, s37, v17
    s_lshl_b32 s36, s16, 12
    v_add_u32 v17, s36, v17
    v_and_b32 v21, 0x2ff, v2
    s_lshr_b32 s36, s16, 1
    s_lshl_b32 s36, s36, 8
    s_and_b32 s37, s16, 1
    s_lshl_b32 s37, s37, 3
    s_add_u32 s36, s36, s37
    v_add_u32 v21, s36, v21
    v_add_u32 v20, {L_AUG}, v21
    s_lshr_b32 s36, s18, 2
    s_and_b32 s37, s36, 3
    s_lshr_b32 s45, s36, 2
    s_sub_u32 s45, s45, s33
    s_and_b32 s45, s45, 3
    s_cmp_eq_u32 s37, s16
    s_cselect_b32 s55, s45, 99
    s_mul_i32 s99, s19, {WQ_CT}
    s_add_u32 s99, s99, {WQF:#x}
    s_mul_i32 s100, s36, 6144
    s_add_u32 s100, s100, s99
    s_add_u32 s101, s100, 3072
    s_add_u32 s99, s99, {32*3072}
    v_mov_b32 v19, 1
    """)

    def conv_loads():
        k(f"s_lshl_b32 m0, s16, 12")
        k(f"buffer_load_ushort v26, v25, s[76:79], s52 offen", vm="cv")
        for i in range(4):
            k(f"buffer_load_dwordx4 v23, s[72:75], s48 offen offset:{i*1024} lds", vm="cv")
            k(f"s_add_u32 s48, s48, s53")

    def bump():
        k("buffer_atomic_add v19, v14, s[8:11], 0 offen sc1")
    k.wait(vm="a0", lg=0)
    bump()
    for c in range(4):
        k.wait(vm=("w", c))
        k.stamp(f"wr{c}")
        k("s_barrier")
        k.stamp(f"hb{c}")
        for i in range(2):
            for t in range(2):
                r = 32 + 8 * i + 4 * t
                for h in range(2):
                    k(f"{TRD} {vr(r+2*h,2)}, v17 offset:{c*16384+i*2048+t*1024+h*512}", lg=("f", i))
        bump()
        if c in (2, 3):
            k(f"buffer_load_dword v{25+c}, v13, s[8:11], 0 offen sc1", vm=("a", c))
        if c == CONV_AT:
            conv_loads()
        if c == TQ:
            touch_qkv(k, 15)
        for i in range(2):
            k.wait(lg=("f", i))
            for d in range(4):
                for t in range(2):
                    z = "0" if (c, i, d) == (0, 0, 0) else f"v{8+t}"
                    k(f"v_dot2_f32_bf16 v{8+t}, v{32+8*i+4*t+d}, v6, {z}")
        if c == 3:
            k.wait(vm="cv")
        l = k.u("ncp")
        k(f"s_cmp_lg_u32 s55, {c}\ns_cbranch_scc1 {k.L(l)}")
        for i in range(2):
            for t in range(2):
                k(f"buffer_store_dwordx4 {vr(32+8*i+4*t,4)}, v2, s[4:7], s{100+i} offen offset:{1024+t*1024} sc1", vm="skip")
        k.label(l)

    def augw(ts):
        for t in ts:
            k(f"v_mov_b32 v{48+t}, v{8+t}")
        for t in ts:
            k(f"v_permlane32_swap_b32 v{48+t}, v{8+t}")
        for t in ts:
            k(f"v_add_f32 v{8+t}, v{8+t}, v{48+t}")
        for t in ts:
            aug_pack(k, 8 + t, 52 + 2 * t)
            k(f"ds_write_b64 v20, {vr(52+2*t,2)} offset:{(t+1)%3*1024}")
        l = k.u("nag")
        k(f"s_cmp_ge_u32 s18, 4\ns_cbranch_scc1 {k.L(l)}")
        for t in ts:
            k(f"buffer_store_dwordx2 {vr(52+2*t,2)}, v21, s[4:7], s99 offen offset:{(t+1)%3*1024} sc1", vm="skip")
        k.label(l)
    augw([0, 1])
    k("s_waitcnt lgkmcnt(0)\ns_barrier")
    k.stamp("hba")
    for c in range(4):
        for i in range(2):
            for h in range(2):
                k(f"{TRD} {vr(64+8*c+4*i+2*h,2)}, v18 offset:{c*8192+i*1024+h*512}", lg=("q", c))
    bump()

    def conv_st():
        k("s_lshl_b32 s50, s50, 1")
        for i in range(4):
            k.wait(lg=("cv", i))
            k(f"buffer_store_dwordx4 {vr(CV+8*i,4)}, v24, s[4:7], s49 offen sc1")
            k("s_add_u32 s49, s49, s50")
    k(f"""
    v_mov_b32 v32, v6
    v_mov_b32 v33, v6
    v_mov_b32 v34, v6
    v_mov_b32 v35, v6
    s_lshl_b32 s36, s16, 10
    s_add_u32 s36, s36, {L_ONES}
    v_add_u32 v12, s36, v1
    ds_write_b128 v12, v[32:35]
    s_lshl_b32 s36, s16, 12
    s_add_u32 s36, s36, {L_R0}
    v_add_u32 v12, s36, v1
    """)
    for c in range(4):
        k.wait(lg=("q", c))
        for d in range(8):
            z = "0" if c == 0 and d < 2 else f"v{10+(d&1)}"
            k(f"v_dot2_f32_bf16 v{10+(d&1)}, v{64+8*c+d}, v6, {z}")
        for h in range(2):
            k(f"{TRD} {vr(CV+8*c+2*h,2)}, v29 offset:{c*4096+h*1024}", lg=("cv", c))
    k("v_add_f32 v10, v10, v11")
    augw([2])
    if CVE:
        conv_st()
    k(f"s_cmp_lg_u32 s46, 0\ns_cbranch_scc1 {k.L('achk')}")
    k.label("achkd")
    n2, n3 = min(63, k._cnt(0, ("a", 2))), min(63, k._cnt(0, ("a", 3)))

    def achk():
        k.label("achk")
        k(f"""
        s_waitcnt vmcnt({n2})
        v_cmp_ne_u32 vcc, v16, v27
        s_cbranch_vccnz {k.L('achkd')}
        s_waitcnt vmcnt({n3})
        s_mov_b32 s35, 0
        """)
        k.label("achk2")
        k(f"""
        v_cmp_ne_u32 vcc, v16, v28
        s_cbranch_vccnz {k.L('achkd')}
        buffer_load_dword v28, v13, s[8:11], 0 offen sc1
        s_add_u32 s35, s35, 1
        s_cmp_gt_u32 s35, {LIMIT}
        s_cbranch_scc1 {k.L('end')}
        s_waitcnt vmcnt(0)
        s_branch {k.L('achk2')}
        """, vm="skip")
    k.deferred.append(achk)
    k("s_waitcnt lgkmcnt(0)\ns_barrier")
    k.stamp("kvh")
    for j in range(4):
        k(f"ds_read_b128 {vr(32+4*j,4)}, v12 offset:{j*1024}", lg=("h", j))
    kv_offsets(k, KVG)
    fkv_addr(k)
    for j in range(4):
        k.wait(lg=("h", j))
        if j < 2:
            k(f"buffer_store_dwordx4 {vr(32+4*j,4)}, v1, s[8:11], s{40+j} offen sc1", vm="kvs")
        else:
            k(f"buffer_store_dwordx4 {vr(32+4*j,4)}, v30, s[8:11], s42 offen offset:{(j-2)*512} sc1", vm="kvs")
    for c in range(4):
        l = k.u("ncq")
        k(f"s_cmp_lg_u32 s55, {c}\ns_cbranch_scc1 {k.L(l)}")
        for i in range(2):
            k(f"buffer_store_dwordx4 {vr(64+8*c+4*i,4)}, v2, s[4:7], s{100+i} offen sc1", vm="skip")
        k.label(l)
    if not CVE:
        conv_st()
    k(f"s_cmp_ge_u32 s2, 112\ns_cbranch_scc1 {k.L('cv_na')}")
    for i in range(4):
        for d in range(4):
            z = "0" if i == 0 and d < 2 else f"v{8+(d&1)}"
            k(f"v_dot2_f32_bf16 v{8+(d&1)}, v{CV+8*i+d}, v6, {z}")
    k(f"""
    v_add_f32 v8, v8, v9
    v_lshlrev_b32 v25, 3, v25
    v_mov_b32 v9, v8
    v_permlane32_swap_b32 v8, v9
    v_add_f32 v8, v8, v9
    v_mov_b32 v9, v8
    v_permlane16_swap_b32 v8, v9
    v_add_f32 v8, v8, v9
    """)
    aug_pack(k, 8, 10, 26)
    k(f"buffer_store_dwordx2 v[10:11], v25, s[4:7], s51 offen sc1", vm="skip")
    k.label("cv_na")
    k.signal("s43", 8, glob=True, wtag="kvs")
    k.stamp("kvsig")


def fkv_addr(k):
    k(f"""
    s_lshl_b32 s43, s19, 2
    s_add_u32 s43, s43, s16
    s_lshl_b32 s43, s43, 7
    s_lshr_b32 s36, s18, 2
    s_lshl_b32 s36, s36, 2
    s_add_u32 s43, s43, s36
    s_add_u32 s43, s43, {FKV:#x}
    """)


def fq_addr(k):
    k(f"""
    s_lshl_b32 s43, s12, 4
    s_add_u32 s43, s43, s19
    s_lshl_b32 s43, s43, 7
    s_and_b32 s36, s18, 7
    s_lshl_b32 s36, s36, 2
    s_add_u32 s43, s43, s36
    s_add_u32 s43, s43, {FQ:#x}
    """)


def kv_epilogue(k, R0, bkv):
    RS, AK, AV, RT = 28, 64, 80, 112
    fill = []
    for h in range(2):
        a = AK + 8 * h
        fill += [(f"v_mul_f32 v{a+r}, v{RS}, v{a+r}", 4, R0) for r in range(8)]
        fill += [(f"v_cvt_pk_bf16_f32 v{a+r}, v{a+2*r}, v{a+2*r+1}", 4, R0) for r in range(4)]
        fill += [(f"ds_write_b128 v31, {vr(a,4)} offset:{h*1024}", 4, R0, dict(lg="hw"))]
        fill += [(f"buffer_store_dwordx4 {vr(a,4)}, v1, {AS}, s40 offen offset:{h*1024}", 4, R0)]
    fill += [(lambda: k.wait(lg="rt"), 0, R0)]
    for h in range(2):
        a = AV + 8 * h
        fill += [(f"v_mul_f32 v{a+r}, v{RT+8*h+r}, v{a+r}", 4, R0) for r in range(8)]
        fill += [(f"v_cvt_pk_bf16_f32 v{a+r}, v{a+2*r}, v{a+2*r+1}", 4, R0) for r in range(4)]
        fill += [(f"ds_write_b128 v31, {vr(a,4)} offset:{2048+h*1024}", 4, R0, dict(lg="hw"))]
        fill += [(f"buffer_store_dwordx4 {vr(a,4)}, v30, {AS}, s42 offen offset:{h*512}", 4, R0)]
    fill += [("s_nop 0", 100, R0), ("s_nop 0", 100, R0), (bkv, 4, R0)]
    return fill


def phase_qkv0_c(k):
    SR, AUG, RS, WS, AK, AV, AQ, RT, A = 8, 24, 28, 32, 64, 80, 96, 112, 128
    AH, NQ = 5, 8
    k.ctx(["C"])
    k.label("qkv0_c")
    k(f"""
    v_lshrrev_b32 v14, 4, v0
    v_xor_b32 v14, v14, v0
    v_and_b32 v14, 7, v14
    v_lshlrev_b32 v14, 4, v14
    v_lshrrev_b32 v15, 3, v0
    v_lshl_add_u32 v14, v15, 10, v14
    v_xor_b32 v15, 64, v14
    v_add_u32 v15, 7168, v15
    v_add_u32 v16, 14336, v14
    v_add_u32 v17, 14336, v15
    s_lshl_b32 s38, s18, 15
    s_lshl_b32 s37, s33, 8
    s_add_u32 s38, s38, s37
    s_lshl_b32 s39, s16, 12
    s_add_u32 s39, s39, {L_R0}
    s_mov_b32 m0, s39
    """)

    def xdma(c):
        for i in range(4):
            k(f"buffer_load_dwordx4 v{14+i}, {XS}, s38 offen offset:{i*1024} lds", vm=("x", c >> 1))
        k("s_add_u32 m0, m0, 16384\ns_add_u32 s38, s38, 128")
        if c & 1:
            k("s_bitset0_b32 s38, 10")
    for c in range(6):
        xdma(c)
    k.stamp("xi")
    k(f"""
    v_bfe_u32 v8, v0, 1, 3
    v_xor_b32 v8, v8, v10
    v_lshlrev_b32 v8, 4, v8
    v_and_b32 v9, 31, v0
    v_lshl_add_u32 v8, v9, 7, v8
    v_add_u32 v18, s39, v8
    v_xor_b32 v19, 32, v18
    v_xor_b32 v20, 64, v18
    v_xor_b32 v21, 96, v18
    v_lshl_add_u32 v22, v10, 9, v22
    v_add_u32 v23, {L_QI}, v22
    s_lshl_b32 s48, s19, 6
    s_lshl_b32 s46, s33, 1
    s_add_u32 s46, s46, s16
    s_and_b32 s46, s46, 7
    s_xor_b32 s47, s46, 4
    s_mul_i32 s46, s46, {4*49152}
    s_mul_i32 s47, s47, {4*49152}
    s_add_u32 s46, s46, s48
    s_add_u32 s47, s47, s48
    """)
    loc_offsets(k)
    fq_addr(k)
    k(f"v_add_u32 v31, s39, v1")

    def xrd(c):
        def f():
            if c >= 2:
                for i in range(4):
                    k(f"v_add_u32 v{18+i}, {65536 if c == 2 else -65536 & 0xffffffff:#x}, v{18+i}")
            k.stamp(f"xw{c}")
            k.wait(vm=("x", c), lg=0 if c == 0 else None)
            k.stamp(f"xr{c}")
            for i in range(8):
                k(f"ds_read_b128 {vr(A+32*c+4*i,4)}, v{18+(i&3)} offset:{(2*c+(i>>2))%4*16384 if c < 3 else (i>>2)*16384}")
            k("s_barrier")
            k.stamp(f"cb{c}")
        return f

    def rdw(areg, off):
        def f(w, tag):
            k(f"{TRD} {vr(w,2)}, {areg} offset:{off}")
            k(f"{TRD} {vr(w+2,2)}, {areg} offset:{off+256}", lg=tag)
        return f
    done = []

    def rda(t):
        def f(w, tag):
            assert t or done
            k(f"ds_read_b128 {vr(w,4)}, v17 offset:{t*1024}", lg=tag)
        return f
    ops = []
    for s in range(33):
        b = vr(A + 4 * s, 4) if s < 32 else vr(AUG, 4)
        ck, cv = ("0", "0") if s == 0 else (vr(AK, 16), vr(AV, 16))
        ops.append(dict(rd=rdw("v22", s * 2048) if s < 32 else rda(1), mf=lambda w, b=b, c=ck: f"{MF} {vr(AK,16)}, {vr(w,4)}, {b}, {c}", bud=DOTB))
        ops.append(dict(rd=rdw("v22", s * 2048 + 1024) if s < 32 else rda(2), mf=lambda w, b=b, c=cv: f"{MF} {vr(AV,16)}, {b}, {vr(w,4)}, {c}", bud=DOTB))
    q = []
    for s in range(33):
        b = vr(A + 4 * s, 4) if s < 32 else vr(AUG, 4)
        c = "0" if s == 0 else vr(AQ, 16)
        q.append(dict(rd=rdw("v23", s * 1024) if s < 32 else rda(0), mf=lambda w, b=b, c=c: f"{MF} {vr(AQ,16)}, {vr(w,4)}, {b}, {c}"))
    ops = ops[:64] + q[:NQ] + ops[64:] + q[NQ:]
    for c in range(4):
        ops[max(0, 16 * c - AH)]["pre"] = xrd(c)

    def baug():
        k.wait(vm="q")
        k("s_barrier")
        k.stamp("cba")
    ops[64 - AH]["pre"] = baug

    def x67():
        k("s_mov_b32 m0, s39")
        xdma(6)
        xdma(7)
        k.stamp("x67i")

    def qdma():
        k(f"v_add_u32 v17, {L_AUG}, v2")
        k.stamp("qdi0")
        for h in range(2):
            k(f"s_add_u32 m0, s39, {L_QI-L_R0+h*16384}")
            for i in range(4):
                k(f"buffer_load_dwordx4 v12, {WQS}, s{46+h} offen offset:{i*1024} lds", vm="q")
                k(f"s_add_u32 s{46+h}, s{46+h}, {49152-1024}")
        k.stamp("qdi1")
    ops[0]["post"] = x67
    ops[16]["post"] = qdma
    fill = []
    for c in range(4):
        for r in range(32):
            a, z = 8 + 2 * (r & 1), c == 0 and r < 2
            fill.append((f"v_dot2_f32_bf16 v{a}, v{A+32*c+r}, v6, {'0' if z else f'v{a}'}", 1, 16 * c))
            fill.append((f"v_dot2_f32_bf16 v{a+1}, v{A+32*c+r}, v{A+32*c+r}, {'0' if z else f'v{a+1}'}", 1, 16 * c))
    st = ["v_add_f32 v8, v8, v10", "v_add_f32 v9, v9, v11"] + stats_list(SR, AUG, RS, "qkv", summed=True)
    st += f"""
    s_lshl_b32 s36, s16, 7
    s_add_u32 s36, s36, {L_AUG+3072}
    v_and_b32 v8, 31, v0
    v_lshl_add_u32 v8, v8, 2, s36
    v_lshrrev_b32 v9, 5, v0
    v_lshl_add_u32 v9, v9, 4, s36
    ds_write_b32 v8, v{RS}
    v_mul_f32 v29, {f32(0.25*LOG2E)}, v{RS}
    """.split("\n")
    fill += [(x.strip(), 4, 63) for x in st if x.strip()]
    fill += [(f"ds_read_b128 {vr(RT+4*q,4)}, v9 offset:{q*32}", 4, 63, dict(lg="rt")) for q in range(4)]
    nst = len(fill)
    chk = []

    def bkv():
        k.wait(lg="hw")
        k("s_barrier")
        done.append(1)
    fill += [(lambda: chk.append(1), 0, 63)]

    def need_stats():
        assert chk, "stats not finished before aug"
    ops[64 + NQ]["pre"] = need_stats
    fill += kv_epilogue(k, 64 + NQ + 3, bkv)
    rest = gemm_stream(k, ops, WS, fill, 20, ahead=AH)
    assert not rest
    k(f"s_branch {k.L('q_fin')}")


def phase_qkv_h(k):
    k.ctx(["H"])
    k.label("qkv_h")
    k("s_barrier")
    k(f"""
    v_mov_b32 v8, v6
    v_mov_b32 v9, v6
    v_mov_b32 v10, v6
    v_mov_b32 v11, v6
    s_lshl_b32 s36, s16, 10
    s_add_u32 s36, s36, {L_ONES}
    v_add_u32 v12, s36, v1
    ds_write_b128 v12, v[8:11]
    s_lshl_b32 s36, s16, 12
    s_add_u32 s36, s36, {L_HAND}
    v_add_u32 v12, s36, v1
    """)
    kv_offsets(k, KVG)
    fkv_addr(k)
    k("s_barrier")
    k.stamp("kvh")
    for j in range(4):
        k(f"ds_read_b128 {vr(32+4*j,4)}, v12 offset:{j*1024}", lg=("h", j))
    for j in range(4):
        k.wait(lg=("h", j))
        if j < 2:
            k(f"buffer_store_dwordx4 {vr(32+4*j,4)}, v1, s[8:11], s{40+j} offen sc1")
        else:
            k(f"buffer_store_dwordx4 {vr(32+4*j,4)}, v30, s[8:11], s42 offen offset:{(j-2)*512} sc1")
    k.signal("s43", 8, glob=True)
    k.stamp("kvsig")


def phase_qkv_c(k):
    SR, AUG, RS, WS, AK, AV, AQ, RT, A = 8, 24, 28, 32, 64, 80, 96, 112, 128
    k.ctx(["C"])
    k.label("qkv_c")
    lda = load_x(k, XA, STA, FX, SR, A, "q_flag")
    PD = 12
    for s in range(PD):
        lda(s)
    k(f"s_barrier")
    loc_offsets(k)
    fq_addr(k)
    k.wait(vm="st")
    k.stamp("q_st")
    stats_math(k, SR, AUG, RS, "qkv")
    k(f"""
    s_lshl_b32 s36, s16, 7
    s_add_u32 s36, s36, {L_RST}
    v_and_b32 v8, 31, v0
    v_lshl_add_u32 v8, v8, 2, s36
    ds_write_b32 v8, v{RS}
    v_lshrrev_b32 v8, 5, v0
    v_lshl_add_u32 v8, v8, 4, s36
    v_mul_f32 v29, {f32(0.25*LOG2E)}, v{RS}
    s_lshl_b32 s36, s16, 12
    s_add_u32 s36, s36, {L_HAND}
    v_add_u32 v31, s36, v1
    """)
    for q in range(4):
        k(f"ds_read_b128 {vr(RT+4*q,4)}, v8 offset:{q*32}", lg="rt")
    ops = []
    for s in range(33):
        b = vr(A + 4 * s, 4) if s < 32 else vr(AUG, 4)
        ck, cv = ("0", "0") if s == 0 else (vr(AK, 16), vr(AV, 16))
        ops.append(dict(off=s * 3072 + 1024, vm=("a", s) if s < 32 else None,
                        mf=lambda w, b=b, c=ck: f"{MF} {vr(AK,16)}, {vr(w,4)}, {b}, {c}",
                        post=lambda s=s: lda(s + PD)))
        ops.append(dict(off=s * 3072 + 2048, mf=lambda w, b=b, c=cv: f"{MF} {vr(AV,16)}, {b}, {vr(w,4)}, {c}"))
    for s in range(33):
        b = vr(A + 4 * s, 4) if s < 32 else vr(AUG, 4)
        c = "0" if s == 0 else vr(AQ, 16)
        ops.append(dict(off=s * 3072, mf=lambda w, b=b, c=c: f"{MF} {vr(AQ,16)}, {vr(w,4)}, {b}, {c}"))

    def bkv():
        k.wait(lg="hw")
        k("s_barrier")
    rest = gemm_stream(k, ops, WS, kv_epilogue(k, 67, bkv), 20)
    assert not rest
    k.label("q_fin")
    k("s_nop 7\ns_nop 3")
    k.stamp("q_mf")
    for h in range(2):
        a = AQ + 8 * h
        for r in range(8):
            k(f"v_mul_f32 v{a+r}, v29, v{a+r}")
        for r in range(4):
            k(f"v_cvt_pk_bf16_f32 v{a+r}, v{a+2*r}, v{a+2*r+1}")
        k(f"buffer_store_dwordx4 {vr(a,4)}, v1, {AS}, s44 offen offset:{h*1024}")
    k.signal("s43", 8)
    k.stamp("q_sig")


def restart(k):
    T = 132
    k.label("restart")
    k(f"""
    s_waitcnt vmcnt(0) lgkmcnt(0)
    buffer_wbl2 sc1
    s_waitcnt vmcnt(0)
    s_barrier
    s_mov_b32 s96, 0
    s_mov_b32 s97, 0
    s_lshl_b32 s36, s2, 2
    s_add_u32 s36, s36, {FDN:#x}
    """)
    k.signal("s36", 8, glob=True)
    k(f"s_movk_i32 s36, {FDN:#x}")
    k.poll(1, "s36", 128, acquire=False, wide=True)
    k(f"""
    buffer_inv sc1
    s_movk_i32 s36, {FWS:#x}
    s_waitcnt vmcnt(0)
    buffer_load_dwordx4 {vr(T,4)}, v1, s[8:11], s36 offen sc1
    v_lshlrev_b32 v8, 2, v0
    s_or_b32 s39, s98, 0x80
    s_mov_b32 s13, 0
    s_waitcnt vmcnt(0)
    """)
    for i in range(4):
        k(f"""
        v_add_u32 v9, {i}, v8
        v_cmp_gt_u32 s[36:37], s2, v9
        v_cmp_eq_u32 vcc, s39, v{T+i}
        s_and_b64 s[36:37], s[36:37], vcc
        s_bcnt1_i32_b64 s36, s[36:37]
        s_add_u32 s13, s13, s36
        """)
    k("s_mov_b32 s12, s98\ns_mov_b32 s39, 0")
    for x in range(8):
        k("s_mov_b32 s38, 0")
        for i in range(4):
            k(f"v_cmp_eq_u32 vcc, {0x80+x:#x}, v{T+i}\ns_bcnt1_i32_b64 s36, vcc\ns_add_u32 s38, s38, s36")
        k("s_xor_b32 s38, s38, 32\ns_or_b32 s39, s39, s38")
    k(f"""
    s_add_u32 s8, s8, {LSTRIDE:#x}
    s_addc_u32 s9, s9, 0
    s_cmp_eq_u32 s39, 0
    s_cbranch_scc1 {k.L('role')}
    s_and_b32 s12, s2, 7
    s_lshr_b32 s13, s2, 3
    s_mov_b32 s15, 1
    s_branch {k.L('role')}
    """)


def phase_att(k):
    Q, KR, VR, P, S, O = 12, 20, 28, 44, 60, 92
    k.label("att")
    k.ctx(["C", "H"])
    k(f"""
    s_lshl_b32 s36, s12, 4
    s_add_u32 s36, s36, s19
    s_lshl_b32 s36, s36, 7
    s_add_u32 s36, s36, {FQ:#x}
    v_and_b32 v8, 7, v0
    v_lshlrev_b32 v8, 2, v8
    s_lshl_b32 s38, s12, 3
    s_lshl_b32 s39, s16, 1
    s_add_u32 s38, s38, s39
    s_add_u32 s33, s38, s17
    s_lshl_b32 s39, s13, 10
    s_add_u32 s39, s39, {RQ:#x}
    s_mul_i32 s37, s33, {RBS}
    s_add_u32 s37, s37, s39
    s_xor_b32 s38, s33, 1
    s_mul_i32 s38, s38, {RBS}
    s_add_u32 s38, s38, s39
    s_lshl_b32 s41, s12, 3
    s_add_u32 s41, s41, s3
    s_mul_i32 s41, s41, {RBS}
    s_add_u32 s41, s41, s39
    s_add_u32 s41, s41, 0x8000
    s_add_u32 s42, s41, 0x8000
    s_lshl_b32 s39, s17, 13
    s_lshl_b32 s40, s16, 10
    s_add_u32 s39, s39, s40
    s_add_u32 m0, s39, {L_P0}
    s_lshl_b32 s40, s13, 17
    """)
    k.poll(8, "s36", 9, boot=True)
    k.stamp("a_flag")
    k(f"""
    buffer_load_dwordx4 v1, {AS}, s41 offen sc1 lds
    s_add_u32 m0, m0, 4096
    buffer_load_dwordx4 {vr(Q,4)}, v1, {AS}, s37 offen sc1
    buffer_load_dwordx4 v1, {AS}, s42 offen sc1 lds
    buffer_load_dwordx4 {vr(Q+4,4)}, v1, {AS}, s38 offen sc1
    s_add_u32 s50, s37, {RO-RQ:#x}
    s_lshl_b32 s39, s17, 13
    s_add_u32 s39, s39, {L_P0}
    v_add_u32 v8, s39, v1
    v_and_b32 v9, 0x1ff, v2
    v_add_u32 v10, {L_ONES}, v9
    s_add_u32 s39, s39, 4096
    v_add_u32 v9, s39, v9
    v_and_b32 v124, 16, v0
    v_cmp_ne_u32 vcc, 0, v124
    v_cndmask_b32 v9, v9, v10
    v_mov_b32 v10, 0x4000
    v_cndmask_b32 v10, v10, 0, vcc
    s_lshl_b32 s43, s19, 2
    s_add_u32 s43, s43, s16
    s_lshl_b32 s43, s43, 7
    s_add_u32 s43, s43, {FKV:#x}
    v_and_b32 v124, 15, v0
    v_lshlrev_b32 v124, 2, v124
    """)
    k(f"""
    s_and_b32 s36, s16, 1
    s_lshl_b32 s36, s36, 10
    s_mul_i32 s44, s21, {WO_CT}
    s_add_u32 s44, s44, {WOF:#x}
    s_add_u32 s44, s44, s36
    s_add_u32 s45, s44, 2048
    s_movk_i32 s46, 4096
    s_mul_i32 s47, s21, {W2_CT}
    s_mul_i32 s48, s16, {28*2048}
    s_add_u32 s47, s47, s48
    s_add_u32 s47, s47, {W2F:#x}
    s_add_u32 s48, s47, s36
    s_xor_b32 s36, s36, 1024
    s_add_u32 s49, s47, s36
    s_cmp_eq_u32 s17, 0
    s_cselect_b32 s44, s44, s48
    s_cselect_b32 s45, s45, s49
    s_cselect_b32 s46, s46, 2048
    s_mul_i32 s36, s19, {W1_CT}
    s_add_u32 s36, s36, {W1F:#x}
    v_add_u32 v125, s36, v1
    s_lshl_b32 s99, s14, 3
    s_add_u32 s99, s99, s3
    s_cmp_eq_u32 s99, 7
    s_waitcnt vmcnt(0)
    s_barrier
    s_cbranch_scc1 {k.L('fwr')}
    """)
    k.label("fwrd")
    k.stamp("a_b0")

    def fwr():
        k.label("fwr")
        k(f"""
        s_lshl_b32 s36, s12, 5
        s_add_u32 s36, s36, s13
        s_lshl_b32 s36, s36, 2
        s_add_u32 s36, s36, {FWR:#x}
        v_mov_b32 v126, 1
        s_mov_b64 exec, 1
        buffer_store_dword v126, off, s[8:11], s36 sc1
        s_mov_b64 exec, -1
        s_branch {k.L('fwrd')}
        """, vm="skip")
        k.label("fwl")
        k(f"""
        s_movk_i32 s36, {FWR:#x}
        buffer_load_dwordx4 v[128:131], v1, s[8:11], s36 offen sc1
        s_branch {k.L('fwld')}
        """, vm="skip")
        k.label("fwc")
        k(f"""
        s_cmp_lg_u32 s97, 0
        s_waitcnt vmcnt(0)
        s_cbranch_scc1 {k.L('fwc2')}
        v_and_b32 v128, v128, v129
        v_and_b32 v130, v130, v131
        v_and_b32 v128, v128, v130
        v_cmp_ne_u32 vcc, 1, v128
        s_movk_i32 s36, {FWR:#x}
        s_cbranch_vccz {k.L('fwc2')}
        """)
        k.poll(1, "s36", 128, acquire=False, boot=True, wide=True)
        k.label("fwc2")
        k(f"""
        v_mov_b32 v128, {L_MODE}
        v_mov_b32 v129, s97
        ds_write_b32 v128, v129
        s_waitcnt lgkmcnt(0)
        s_branch {k.L('fwcd')}
        """)
        k.label("fwv")
        k(f"""
        v_mov_b32 v128, {L_MODE}
        ds_read_b32 v128, v128
        s_waitcnt lgkmcnt(0)
        v_cmp_ne_u32 vcc, 0, v128
        s_cbranch_vccz {k.L('fwvd')}
        """)
        restart(k)
    k.deferred.append(fwr)

    def rdk(t):
        k(f"ds_read_b128 {vr(KR+4*(t&1),4)}, v8 offset:{(t&3)*1024}")

    def rdv(t):
        for h in range(2):
            k(f"ds_read_b128 {vr(VR+8*(t&1)+4*h,4)}, v9 offset:{(t&3)*1024+h*512}")

    def smf(u):
        k(f"{MF} {vr(S+16*(u&1),16)}, {vr(KR+4*((u>>1)&1),4)}, {vr(Q+4*(u&1),4)}, 0")

    def pv(u, h, zero=False):
        o = vr(O + 16 * (u & 1), 16)
        k(f"{MF} {o}, {vr(VR+8*((u>>1)&1)+4*h,4)}, {vr(P+8*(u&1)+4*h,4)}, {'0' if zero else o}")

    def segment(nb, zero, extra):
        rdk(0)
        rdk(1)
        rdv(0)
        k("s_waitcnt lgkmcnt(3)")
        smf(0)
        for u in range(nb):
            x = extra(u)
            i = u >> 1
            if x.get("pre"):
                x["pre"]()
            if u & 1:
                k("s_waitcnt lgkmcnt(0)")
            if u + 1 < nb:
                smf(u + 1)
            if u & 1:
                if 2 * (i + 2) < nb:
                    if (i + 2) & 3 == 0:
                        k("v_add_u32 v8, 0x4000, v8")
                    rdk(i + 2)
                if 2 * (i + 1) < nb:
                    if (i + 1) & 3 == 0:
                        k("v_add_u32 v9, v10, v9")
                    rdv(i + 1)
            s, p = S + 16 * (u & 1), P + 8 * (u & 1)
            ex = [f"v_exp_f32 v{s+r}, v{s+r}" for r in range(16)]
            cv = [f"v_cvt_pk_bf16_f32 v{p+r}, v{s+2*r}, v{s+2*r+1}" for r in range(8)]
            k("\n".join(ex[:4]))
            if u:
                pv(u - 1, 0, zero and u <= 2)
            k("\n".join(ex[4:8] + cv[:2]))
            if u:
                pv(u - 1, 1)
            if x.get("mid"):
                x["mid"]()
            k("\n".join(ex[8:] + cv[2:]))
        pv(nb - 1, 0)
        pv(nb - 1, 1)

    k(f"""
    buffer_load_dword v126, v124, s[8:11], s43 offen sc1
    s_add_u32 s40, s40, {KVG:#x}
    s_add_u32 s41, s12, s17
    s_add_u32 s41, s41, 1
    s_and_b32 s41, s41, 7
    s_lshl_b32 s41, s41, 14
    s_add_u32 s41, s41, s40
    s_lshl_b32 s42, s16, 10
    s_add_u32 s41, s41, s42
    s_lshl_b32 s55, s17, 14
    s_add_u32 s42, s42, s55
    s_add_u32 s42, s42, 0x4000
    s_mov_b32 s55, 0
    """, vm="skip")

    def kv12():
        k("s_mov_b32 m0, s42")
        for j in range(4):
            k("buffer_load_dwordx4 v1, s[8:11], s41 offen sc1 lds", vm="skip")
            if j < 3:
                k("s_add_u32 m0, m0, 4096\ns_add_u32 s41, s41, 4096")

    def early():
        k(f"""
        s_waitcnt vmcnt(0)
        v_cmp_ne_u32 vcc, 1, v126
        s_cbranch_vccnz {k.L('a_late')}
        s_mov_b32 s55, 1
        """)
        kv12()
        k.label("a_late")
    segment(8, True, lambda u: {"pre": early} if u == EARLY else {})
    k.stamp("a_segA")
    k(f"s_cmp_eq_u32 s55, 0\ns_cbranch_scc1 {k.L('a_poll')}")
    k.label("a_polled")

    def late():
        k.label("a_poll")
        k.poll(124, "s43", 126, acquire=False, boot=True)
        kv12()
        k(f"s_branch {k.L('a_polled')}")
    k.deferred.append(late)
    for r in "CH":
        k.paths[r][0].append(("kv", 2))
    k(f"v_add_u32 v8, {(16384 - L_P0) & 0xffffffff:#x}, v8\nv_mad_i32_i24 v9, v10, -7, v9")
    k(f"""
    s_mul_i32 s51, s18, {112*1024}
    s_mul_i32 s52, s19, {7*1024}
    s_add_u32 s51, s51, s52
    s_add_u32 s51, s51, {RH:#x}
    s_add_u32 s52, s51, 3584
    s_add_u32 s53, s22, {XB:#x}
    s_add_u32 s54, s23, {STB:#x}
    v_mul_u32_u24 v11, 56, v0
    v_mov_b32 v124, v11
    s_cmp_eq_u32 s17, 0
    s_cselect_b32 s51, s53, s51
    s_cselect_b32 s52, s54, s52
    s_cselect_b64 exec, -1, 0
    v_lshlrev_b32 v11, 5, v0
    v_mov_b32 v124, v5
    s_mov_b64 exec, -1
    """)
    k(f"s_cbranch_scc0 {k.L('a_now')}\ns_waitcnt vmcnt(0)")
    k.label("a_now")
    k("s_barrier")
    k.stamp("a_b1")

    side = {}

    def pfl(j):
        k(f"buffer_load_dwordx4 {vr(128+4*j,4)}, v2, s[4:7], s{44+(j&1)} offen")
        k(f"s_add_u32 s{44+(j&1)}, s{44+(j&1)}, s46")

    def w1d(reg, j):
        if j == 0:
            k(f"s_lshl_b32 s36, s3, 11\ns_add_u32 m0, s36, {reg*16384}")
        k(f"buffer_load_dwordx4 v125, s[4:7], m0 offen offset:{j*1024} lds")

    def kvd(p, j):
        if j == 0:
            k(f"""
            s_add_u32 s41, s12, {p}
            s_and_b32 s41, s41, 7
            s_lshl_b32 s41, s41, 14
            s_add_u32 s41, s41, s40
            s_add_u32 m0, s42, {p*16384}
            """)
        k(f"buffer_load_dwordx4 v1, s[8:11], s41 offen offset:{j*1024} sc1 lds", vm=("kv", p))
    k("s_lshl_b32 s42, s3, 11\ns_add_u32 s40, s40, s42")
    qa = [lambda j=j: pfl(j) for j in range(32)]
    for p in range(3, 8):
        for j in range(2):
            side[8 * (p - 3) + KV0 + j] = lambda p=p, j=j: kvd(p, j)
    for r in range(6):
        for j in range(2):
            side[8 * r + 6 + j] = lambda r=r, j=j: w1d(r, j)
    for u in range(PF0, 56):
        if u not in side and qa:
            side[u] = qa.pop(0)
            if u in (10, 12):
                side[u] = lambda a=side[u], b=qa.pop(0): (a(), b())
    assert not qa

    def fwl():
        k(f"s_cmp_eq_u32 s99, 7\ns_cbranch_scc1 {k.L('fwl')}")
        k.label("fwld")
    side[FWL] = fwl

    def extra(u):
        d = {}
        if u & 7 == 5 and u < 48:
            def pre(p=(u >> 3) + 2):
                k.wait(vm=("kv", p))
                if p == 2:
                    k(f"s_cmp_eq_u32 s99, 7\ns_cbranch_scc1 {k.L('fwc')}")
                    k.label("fwcd")
                    k("s_cmp_eq_u32 s14, 0")
                k("s_barrier")
                if p == 2:
                    k(f"s_cbranch_scc1 {k.L('fwv')}")
                    k.label("fwvd")
                    k.stamp("a_ver")
            d["pre"] = pre
        if u in side:
            d["mid"] = side[u]
        if TOUCH and u in (40, 42, 44):
            a, so = {40: ("v1", "s50"), 42: ("v11", "s51"), 44: ("v124", "s52")}[u]
            d["pre"] = lambda: k(f"buffer_load_dword v126, {a}, {AS}, {so} offen sc1")
        return d
    segment(56, False, extra)
    k.stamp("a_segB")
    k(f"""
    s_mul_i32 s36, s3, 2560
    s_add_u32 s36, s36, {L_CMB}
    v_add_u32 v8, s36, v1
    v_lshlrev_b32 v9, 2, v0
    v_add_u32 v10, s36, v9
    s_xor_b32 s37, s3, 4
    s_mul_i32 s37, s37, 2560
    s_add_u32 s37, s37, {L_CMB}
    v_add_u32 v11, s37, v1
    v_add_u32 v9, s37, v9
    s_lshl_b32 s39, s33, 7
    s_lshl_b32 s41, s13, 2
    s_add_u32 s39, s39, s41
    s_add_u32 s39, s39, {FO:#x}
    s_mov_b32 s41, {f32(2.0**-60)}
    ds_write_b128 v8, {vr(O+16,4)}
    ds_write_b128 v8, {vr(O+20,4)} offset:1024
    ds_write_b32 v10, v{O+24} offset:2048
    s_waitcnt lgkmcnt(0)
    s_barrier
    ds_read_b32 v{O+24}, v9 offset:2048
    ds_read_b128 {vr(O+16,4)}, v11
    ds_read_b128 {vr(O+20,4)}, v11 offset:1024
    s_waitcnt lgkmcnt(2)
    v_add_f32 v{O+8}, v{O+8}, v{O+24}
    v_cmp_gt_f32 vcc, {f32(2.0**60)}, v{O+8}
    v_cmp_lt_f32 s[36:37], s41, v{O+8}
    v_rcp_f32 v11, v{O+8}
    s_and_b64 s[36:37], s[36:37], vcc
    s_cmp_eq_u64 s[36:37], exec
    s_waitcnt lgkmcnt(0)
    s_cbranch_scc0 {k.L('a_fb')}
    """)
    for r in range(8):
        k(f"v_add_f32 v{O+r}, v{O+r}, v{O+16+r}")
    k.label("a_out")
    for r in range(8):
        k(f"v_mul_f32 v{O+r}, v11, v{O+r}")
    for r in range(4):
        k(f"v_cvt_pk_bf16_f32 v{P+r}, v{O+2*r}, v{O+2*r+1}")
    k(f"buffer_store_dwordx4 {vr(P,4)}, v1, {AS}, s50 offen")
    k.signal("s39", 8)
    k.stamp("a_sig")

    def fb():
        C = S + 16
        k.label("a_fb")
        k(f"""
        s_lshl_b32 s40, s13, 17
        s_add_u32 s40, s40, {KVG:#x}
        s_mov_b32 s41, 0
        v_mov_b32 v11, 0xff7fffff
        """)
        k.label("a_fb1")
        k(f"""
        s_lshr_b32 s36, s41, 2
        s_lshl_b32 s36, s36, 12
        s_lshl_b32 s37, s41, 10
        s_add_u32 s36, s36, s37
        s_add_u32 s36, s36, s40
        buffer_load_dwordx4 {vr(KR,4)}, v1, s[8:11], s36 offen sc1
        s_waitcnt vmcnt(0)
        {MF} {vr(S,16)}, {vr(KR,4)}, {vr(Q,4)}, 0
        """, vm="skip")
        for r in range(8):
            k(f"v_max3_f32 v11, v11, v{S+2*r}, v{S+2*r+1}")
        k(f"""
        s_add_u32 s41, s41, 1
        s_cmp_lt_u32 s41, 64
        s_cbranch_scc1 {k.L('a_fb1')}
        v_mov_b32 v10, v11
        v_permlane32_swap_b32 v10, v11
        v_max_f32 v11, v10, v11
        v_and_b32 v9, 0x1ff, v2
        v_add_u32 v9, 4096, v9
        v_and_b32 v10, 16, v0
        v_cmp_ne_u32 vcc, 0, v10
        s_mov_b32 s41, 0
        """)
        for r in range(16):
            k(f"v_sub_f32 v{C+r}, 0, v11\nv_mov_b32 v{O+r}, 0")
        k.label("a_fb2")
        k(f"""
        s_lshr_b32 s36, s41, 2
        s_lshl_b32 s36, s36, 12
        s_lshl_b32 s37, s41, 10
        s_add_u32 s36, s36, s37
        s_add_u32 s36, s36, s40
        buffer_load_dwordx4 {vr(KR,4)}, v1, s[8:11], s36 offen sc1
        buffer_load_dwordx4 {vr(VR,4)}, v9, s[8:11], s36 offen sc1
        buffer_load_dwordx4 {vr(VR+4,4)}, v9, s[8:11], s36 offen offset:512 sc1
        s_waitcnt vmcnt(0)
        {MF} {vr(S,16)}, {vr(KR,4)}, {vr(Q,4)}, {vr(C,16)}
        """, vm="skip")
        for r in range(8):
            k(f"v_cndmask_b32 v{VR+r}, v{VR+r}, v6")
        for r in range(16):
            k(f"v_exp_f32 v{S+r}, v{S+r}")
        for r in range(8):
            k(f"v_cvt_pk_bf16_f32 v{P+r}, v{S+2*r}, v{S+2*r+1}")
        for h in range(2):
            k(f"{MF} {vr(O,16)}, {vr(VR+4*h,4)}, {vr(P+4*h,4)}, {vr(O,16)}")
        k(f"""
        s_add_u32 s41, s41, 1
        s_cmp_lt_u32 s41, 64
        s_cbranch_scc1 {k.L('a_fb2')}
        v_rcp_f32 v11, v{O+8}
        s_nop 1
        s_branch {k.L('a_out')}
        """)
    k.deferred.append(fb)


def phase_wo(k):
    ACC, RES, WS = 64, 80, 32
    k(f"""
    s_lshl_b32 s36, s3, 11
    s_add_u32 s37, s22, {XA:#x}
    s_cmp_eq_u32 s14, 0
    s_cbranch_scc1 {k.L('res0')}
    buffer_load_dwordx4 {vr(RES,4)}, v1, {AS}, s37 offen sc1
    buffer_load_dwordx4 {vr(RES+4,4)}, v1, {AS}, s37 offen offset:1024 sc1
    """)
    k.label("res0d")

    def res0():
        k.label("res0")
        k(f"""
        s_and_b32 s38, s22, 0x7fff
        s_sub_u32 s37, s22, s38
        s_lshr_b32 s38, s38, 5
        s_add_u32 s37, s37, s38
        v_and_b32 v8, 31, v0
        v_lshrrev_b32 v9, 5, v0
        v_lshlrev_b32 v8, 10, v8
        v_lshl_add_u32 v8, v9, 3, v8
        """)
        for q in range(4):
            k(f"buffer_load_dwordx2 {vr(RES+2*q,2)}, v8, {XS}, s37 offen offset:{q*16}")
        k(f"s_branch {k.L('res0d')}")
    k.deferred.append(res0)
    k(f"""
    s_add_u32 m0, s36, {L_OB}
    v_bfe_u32 v8, v0, 2, 1
    v_and_b32 v9, 3, v0
    v_lshlrev_b32 v8, 7, v8
    v_lshl_add_u32 v8, v9, 5, v8
    s_lshl_b32 s36, s20, 7
    s_lshl_b32 s37, s3, 2
    s_add_u32 s36, s36, s37
    s_add_u32 s36, s36, {FO:#x}
    s_mul_i32 s37, s20, {RBS}
    s_lshl_b32 s38, s3, 10
    s_add_u32 s37, s37, s38
    s_add_u32 s37, s37, {RO:#x}
    s_add_u32 s38, s37, {RBS-1024}
    s_lshr_b32 s39, s16, 1
    s_lshl_b32 s39, s39, 10
    s_add_u32 s39, s39, {L_OB}
    v_add_u32 v10, s39, v1
    s_barrier
    """)
    k.poll(8, "s36", 9)
    k.stamp("w_flag")
    for j in range(4):
        k(f"buffer_load_dwordx4 v1, {AS}, s37 offen sc1 lds", vm=("o", j))
        k(f"buffer_load_dwordx4 v1, {AS}, s38 offen offset:1024 sc1 lds", vm=("o", j))
        if j < 3:
            k("s_add_u32 m0, m0, 16384\ns_add_u32 s37, s37, 8192\ns_add_u32 s38, s38, 8192")
    k(f"s_cmp_lg_u32 s17, 0\ns_cbranch_scc1 {k.L('wo_h')}")
    k.ctx(["C"])
    unpack(k, ACC, RES)

    def bar(j):
        k.wait(vm=("o", j))
        k("s_barrier")
    AH = 5
    ops = []
    for s in range(32):
        ops.append(dict(off=s * 2048, mf=lambda w, s=s: f"{MF} {vr(ACC,16)}, {vr(128+4*s,4)}, {vr(w,4)}, {vr(ACC,16)}"))
    ops[0]["pre"] = lambda: bar(0)
    for j in (1, 2, 3):
        ops[8 * j - AH]["pre"] = lambda j=j: bar(j)
    ops[31]["post"] = lambda: k("s_barrier")
    gemm_stream(k, ops, WS, [], 0, ahead=AH, areg="v10")
    k.stamp("w_mf")
    tile_epilogue(k, ACC, XB, STB, F1, 8)
    k.stamp("w_sig")


def phase_up(k):
    SR, AUG, RS, WS, ACC, A = 8, 24, 28, 32, 64, 128
    lda = load_x(k, XB, STB, F1, SR, A, "u_flag")
    PD = 12
    for s in range(PD):
        lda(s)
    c0 = -2.0 * math.sqrt(2.0 / math.pi) * LOG2E
    c1 = c0 * 0.044715
    k(f"""
    s_mul_i32 s40, s18, {112*1024}
    s_mul_i32 s41, s19, {7*1024}
    s_add_u32 s40, s40, s41
    s_add_u32 s40, s40, {RH:#x}
    s_add_u32 s41, s40, 4096
    s_lshl_b32 s43, s18, 7
    s_lshl_b32 s36, s19, 2
    s_add_u32 s43, s43, s36
    s_add_u32 s43, s43, {FH:#x}
    """)
    k.wait(vm="st")
    k.stamp("u_st")
    stats_math(k, SR, AUG, RS, "w1")
    k(f"""
    v_mov_b32 v31, v{SR+6}
    v_mul_f32 v29, {f32(c0)}, v{RS}
    v_mul_f32 v30, v{RS}, v{RS}
    v_mul_f32 v30, v30, v{RS}
    v_mul_f32 v30, {f32(c1)}, v30
    """)
    ops = []

    def op(s, t, **kw):
        b = vr(A + 4 * s, 4) if s < 32 else vr(AUG, 4)
        c = "0" if s == 0 else vr(ACC + 16 * t, 16)
        ops.append(dict(off=s * 3584 + t * 1024, mf=lambda w: f"{MF} {vr(ACC+16*t,16)}, {vr(w,4)}, {b}, {c}", **kw))
    for s in range(33):
        op(s, 0, vm=("a", s) if s < 32 else None, post=lambda s=s: lda(s + PD))
        op(s, 1)
    for t in (2, 3):
        for s in range(33):
            op(s, t)
    ops[48]["pre"] = lambda: k("s_barrier")
    ops[-1]["post"] = lambda: k("s_barrier")
    fill = []
    for u in range(7):
        a, T = ACC + 8 * u, 8 + (u & 1) * 8
        rdy = 67 if u < 4 else (100 if u < 6 else 1000)
        R = range(8)
        fill += [(f"v_mul_f32 v{T+r}, v{a+r}, v{a+r}", 4, rdy) for r in R]
        fill += [(f"v_fma_f32 v{T+r}, v{T+r}, v30, v29", 4, rdy) for r in R]
        fill += [(f"v_mul_f32 v{T+r}, v{T+r}, v{a+r}", 4, rdy) for r in R]
        fill += [(f"v_exp_f32 v{T+r}, v{T+r}", 8, rdy) for r in R]
        fill += [(f"v_fma_f32 v{T+r}, v{T+r}, v31, v31", 4, rdy) for r in R]
        fill += [(f"v_rcp_f32 v{T+r}, v{T+r}", 8, rdy) for r in R]
        fill += [(f"v_mul_f32 v{a+r}, v{T+r}, v{a+r}", 4, rdy) for r in R]
        fill += [(f"v_cvt_pk_bf16_f32 v{a+r}, v{a+2*r}, v{a+2*r+1}", 4, rdy) for r in range(4)]
        fill += [(f"buffer_store_dwordx4 {vr(a,4)}, v1, {AS}, s{40+(u>>2)} offen offset:{(u&3)*1024}", 4, rdy)]
    rest = gemm_stream(k, ops, WS, fill, UPB)
    k.stamp("u_mf")
    flush_fill(k, rest)
    k.signal("s43", 8)
    k.stamp("u_sig")
    k.stamp_flush(8)
    k(f"""
    s_cmp_lg_u32 s14, 0
    s_cbranch_scc1 {k.L('cfin')}
    s_mov_b32 s14, 1
    s_mov_b32 s96, 0
    s_add_u32 s8, s8, {LSTRIDE:#x}
    s_addc_u32 s9, s9, 0
    s_add_u32 s56, s56, {ASTRIDE:#x}
    s_addc_u32 s57, s57, 0
    """)
    k("s_barrier")
    k.stamp("start")
    wq_dma(k, 0, 10)
    wq_dma(k, 1, 10)
    k(f"s_branch {k.L('qkv_c')}")


def phase_dn(k):
    ACC, W = 64, 128
    k.label("wo_h")
    k.ctx(["H"])
    for j in range(4):
        k.wait(vm=("o", j))
        k("s_barrier")
    k(f"""
    s_mul_i32 s36, s16, 5120
    s_add_u32 m0, s36, 98304
    s_mul_i32 s40, s16, 12288
    s_add_u32 s41, s40, {L_Y}
    s_add_u32 s40, s40, {L_X}
    s_add_u32 s36, s47, {16*2048}
    s_sub_u32 s36, s36, s40
    v_add_u32 v8, s36, v1
    s_add_u32 s36, s47, {22*2048}
    s_sub_u32 s36, s36, s41
    v_add_u32 v9, s36, v1
    s_barrier
    """)
    k.dma_lin(125, "s[4:7]", 5, vm="w1")
    k("s_add_u32 m0, s40, 4096")
    k.dma_lin(8, "s[4:7]", 8)
    k(f"""
    s_add_u32 s37, s22, {XB:#x}
    s_and_b32 s38, s22, 0x7fff
    s_lshr_b32 s38, s38, 5
    v_lshrrev_b32 v10, 5, v0
    v_lshlrev_b32 v10, 3, v10
    """)
    for g in range(4):
        k(f"buffer_load_dwordx2 {vr(24+2*g,2)}, v10, s[24:27], s38 offen offset:{g*16}", vm="b2")
    k.wait(vm="w1")
    k("s_barrier")
    k(f"buffer_load_dwordx4 {vr(16,4)}, v1, {AS}, s37 offen sc1", vm="res")
    k(f"buffer_load_dwordx4 {vr(20,4)}, v1, {AS}, s37 offen offset:1024 sc1", vm="res")
    k(f"""
    s_and_b32 s36, s16, 1
    s_lshl_b32 s36, s36, 10
    v_add_u32 v10, s36, v2
    v_xor_b32 v11, 0x400, v10
    s_lshl_b32 s36, s20, 7
    s_lshl_b32 s37, s16, 4
    s_add_u32 s36, s36, s37
    s_add_u32 s36, s36, {FH:#x}
    s_lshr_b32 s37, s16, 1
    s_xor_b32 s38, s37, 1
    s_add_u32 s37, s37, s20
    s_add_u32 s38, s38, s20
    s_mul_i32 s37, s37, {112*1024}
    s_mul_i32 s38, s38, {112*1024}
    s_mul_i32 s39, s16, {28*1024}
    s_add_u32 s39, s39, {RH:#x}
    s_add_u32 s37, s37, s39
    s_add_u32 s38, s38, s39
    v_add_u32 v124, s41, v10
    v_add_u32 v125, s41, v11
    v_bfe_u32 v12, v0, 2, 1
    v_and_b32 v13, 3, v0
    v_lshlrev_b32 v12, 7, v12
    v_lshl_add_u32 v12, v13, 2, v12
    """)
    k.wait(vm="res")
    unpack(k, ACC, 16)
    unpack(k, ACC, 24, 14, add=True)
    k("s_mov_b32 m0, s40")
    k("s_barrier")
    k.dma_lin(8, "s[4:7]", 4)
    k("s_mov_b32 m0, s41")
    k.dma_lin(9, "s[4:7]", 12)
    k.poll(12, "s36", 13)
    k.stamp("d_flag")
    k("v_mov_b32 v8, v124\nv_mov_b32 v9, v125")
    free = list(range(12, 64, 4))
    steps = [(1, i) for i in range(28)] + [(0, i) for i in list(range(16, 28)) + list(range(16))]
    hreg, wreg = {}, {}
    nh, nw = [0], [0]
    wsteps = [n for n, (m, i) in enumerate(steps) if i >= 16]

    def ldh():
        n = nh[0]
        m, i = steps[n]
        r = free.pop(0)
        hreg[n] = r
        if i & 3 == 0:
            k(f"s_add_u32 s39, s{37+m}, {(i>>2)*4096}")
        k(f"buffer_load_dwordx4 {vr(r,4)}, v1, {AS}, s39 offen offset:{(i&3)*1024} sc1", vm=("h", n))
        nh[0] += 1

    def ldw():
        n = wsteps[nw[0]]
        i = steps[n][1]
        off = (i - 22) * 2048 if i >= 22 else (i - 16) * 2048 + L_X - L_Y
        wreg[n] = (free.pop(0), free.pop(0))
        for a in range(2):
            k(f"ds_read_b128 {vr(wreg[n][a],4)}, v{8+a} offset:{off}", lg=("w", n))
        nw[0] += 1

    def refill(n, cap):
        while nw[0] < len(wsteps) and wsteps[nw[0]] <= n + 2 and len(free) >= 2:
            ldw()
        resv = 2 if nw[0] < len(wsteps) and wsteps[nw[0]] <= n + 3 else 0
        c = 0
        while nh[0] < len(steps) and len(free) > resv and c < cap:
            ldh()
            c += 1

    def mf(n, a):
        m, i = steps[n]
        w = wreg[n][a] if i >= 16 else W + 8 * i + 4 * a
        t = ACC + 16 * (2 * m + a)
        first = (n == 0) or (n == 28 and a == 1)
        k(f"{MF} {vr(t,16)}, {vr(w,4)}, {vr(hreg[n],4)}, {'0' if first else vr(t,16)}")
    k("v_add_u32 v10, s40, v1")
    wr = [(a, q) for a in (2, 3) for q in range(4)]
    refill(-1, 99)
    NS = 4
    for n in range(56 - NS):
        m, i = steps[n]
        k.wait(vm=("h", n), lg=("w", n) if i >= 16 else None)
        mf(n, 0)
        refill(n, 1)
        mf(n, 1)
        free.append(hreg[n])
        if i >= 16:
            free += list(wreg[n])
        elif m == 0:
            free += [W + 8 * i, W + 8 * i + 4]
        refill(n, 2)
        if n >= 36 and wr:
            a, q = wr.pop(0)
            k(f"ds_write_b128 v10, {vr(ACC+16*a+4*q,4)} offset:{(a-1)*4096+q*1024}")
    assert not wr and nh[0] == 56
    for a in (1, 2, 3):
        k(f"s_xor_b32 s36, s16, {a}\ns_mul_i32 s36, s36, 12288\ns_add_u32 s36, s36, {L_X+(a-1)*4096}\nv_add_u32 v{96+a}, s36, v1")
    for n in range(56 - NS, 56):
        k.wait(vm=("h", n))
        mf(n, 1)
    mf(56 - NS, 0)
    mf(57 - NS, 0)
    for q in range(4):
        k(f"ds_write_b128 v10, {vr(ACC+16+4*q,4)} offset:{q*1024}")
        if q + 2 < NS:
            mf(58 - NS + q, 0)
    k("s_waitcnt lgkmcnt(0)\ns_barrier")
    k.stamp("d_mf")
    for a in (1, 2, 3):
        for q in range(4):
            k(f"ds_read_b128 {vr(16*a+4*q,4)}, v{96+a} offset:{q*1024}", lg=("p", a))
    for a in (1, 2, 3):
        k.wait(lg=("p", a))
        for r in range(16):
            k(f"v_add_f32 v{ACC+r}, v{ACC+r}, v{16*a+r}")
    k(f"s_cmp_lg_u32 s14, 0\ns_cbranch_scc1 {k.L('final')}")
    tile_epilogue(k, ACC, XA + ASTRIDE, STA + ASTRIDE, FX + LSTRIDE, 8)
    k.stamp("d_sig")
    k.stamp_flush(8)
    k(f"""
    s_mov_b32 s14, 1
    s_mov_b32 s96, 0
    s_add_u32 s8, s8, {LSTRIDE:#x}
    s_addc_u32 s9, s9, 0
    s_add_u32 s56, s56, {ASTRIDE:#x}
    s_addc_u32 s57, s57, 0
    """)
    k.stamp("start")
    k(f"s_branch {k.L('qkv_h')}")
    k.label("final")
    O = 16
    for r in range(8):
        k(f"v_cvt_pk_bf16_f32 v{O+r}, v{ACC+2*r}, v{ACC+2*r+1}")
    k(f"""
    s_and_b32 s36, s22, 0x7fff
    s_sub_u32 s37, s22, s36
    s_lshr_b32 s36, s36, 5
    s_add_u32 s36, s36, s37
    v_and_b32 v8, 31, v0
    v_lshrrev_b32 v9, 5, v0
    v_lshlrev_b32 v8, 10, v8
    v_lshl_add_u32 v8, v9, 4, v8
    v_permlane32_swap_b32 v{O}, v{O+2}
    v_permlane32_swap_b32 v{O+1}, v{O+3}
    v_permlane32_swap_b32 v{O+4}, v{O+6}
    v_permlane32_swap_b32 v{O+5}, v{O+7}
    buffer_store_dwordx4 {vr(O,4)}, v8, s[28:31], s36 offen
    buffer_store_dwordx4 {vr(O+4,4)}, v8, s[28:31], s36 offen offset:32
    """)
    if PROF:
        k("s_waitcnt vmcnt(0)")
    k.stamp("d_sig")
    k.stamp_flush(8)
    if DIAG:
        k(f"""
        v_readlane_b32 s36, v7, 0
        v_readlane_b32 s37, v7, 1
        s_memrealtime s[62:63]
        s_sub_u32 s36, s37, s36
        {'s_lshr_b32 s36, s36, 3' if DIAG.startswith('clk') else 's_lshl_b32 s36, s36, 1'}
        s_min_u32 s36, s36, 100000
        s_waitcnt lgkmcnt(0)
        s_mov_b32 s37, s62
        s_mov_b32 s35, 0
        """)
        if DIAG.startswith("fix"):
            k("v_readlane_b32 s37, v7, 0\ns_movk_i32 s36, 9000")
        if DIAG == "fix:1":
            k(f"s_sub_u32 s38, s3, 4\ns_or_b32 s38, s38, s13\ns_cmp_lg_u32 s38, 0\ns_cbranch_scc1 {k.L('dspin')}\ns_sleep 127\ns_sleep 127\nbuffer_wbl2 sc1\ns_waitcnt vmcnt(0)")
        k.label("dspin")
        k(f"""
        s_sleep 1
        s_memrealtime s[62:63]
        s_add_u32 s35, s35, 1
        s_cmp_gt_u32 s35, 100000
        s_cbranch_scc1 {k.L('end')}
        s_waitcnt lgkmcnt(0)
        s_sub_u32 s38, s62, s37
        s_cmp_lt_u32 s38, s36
        s_cbranch_scc1 {k.L('dspin')}
        """)


UPB = 20
FWL = int(os.environ.get("FWL", "2"))


def gen_mega():
    k = MK("mega_kernel", 256, 512, 163840, vgpr=256, sgpr=102)
    prologue(k)
    phase_qkv0_h(k)
    k(f"s_branch {k.L('att')}")
    phase_qkv0_c(k)
    phase_qkv_h(k)
    k(f"s_branch {k.L('att')}")
    phase_qkv_c(k)
    phase_att(k)
    phase_wo(k)
    phase_up(k)
    phase_dn(k)
    k.label("end")
    k("s_endpgm")
    k.label("cfin")
    if WBL == 1:
        k(f"s_cmp_lg_u32 s3, 0\ns_cbranch_scc1 {k.L('end')}\nbuffer_wbl2 sc1")
    if WBL == 2:
        k(f"s_or_b32 s36, s3, s13\ns_cmp_lg_u32 s36, 0\ns_cbranch_scc1 {k.L('end')}\ns_sleep 8\nbuffer_wbl2 sc1")
    k("s_endpgm")
    i = 0
    while i < len(k.deferred):
        k.deferred[i]()
        i += 1
    k.label("cend")
    return k


def main(path):
    ks = [gen_mega()]
    hdr = ["; 2 x (MHA block + channel MLP) for gfx950; generated by gen/gen4.py",
           "; kernarg: x,wqkv,wo,(unused),w1,b1,w2,b2,out,debug,ws"]
    emit_file(path, hdr, ["mega_kernel"], ks)
    if PROF:
        import json
        json.dump(STAMPS, open(path + ".stamps", "w"))
    return ks


if __name__ == "__main__":
    main(sys.argv[1] if len(sys.argv) > 1 else "v2.s")
```
